```python
import torch

def _softmax(x, axis=-1):
    return torch.softmax(x, dim=axis)
def _gelu(x):
    return torch.nn.functional.gelu(x, approximate="tanh")
def _silu(x):
    return torch.nn.functional.silu(x)
def _sigmoid(x):
    return torch.sigmoid(x)
def _layernorm(x, axis=-1, eps=1e-5):
    m = x.mean(dim=axis, keepdim=True)
    v = x.var(dim=axis, keepdim=True, unbiased=False)
    return (x - m) / torch.sqrt(v + eps)
def _scatter_add(tgt, idx, src, axis=0):
    return tgt.clone().index_add_(axis, idx, src)
def _segment_sum(src, seg, n):
    out = torch.zeros((n,) + src.shape[1:], dtype=src.dtype)
    return out.index_add_(0, seg, src)
def _pad(x, pw):
    flat = tuple(v for pair in reversed(pw) for v in pair)
    return torch.nn.functional.pad(x, flat)

kernel_name = 'recurrent_scan__sliding_local_dilated__mixer_token_mlp__prompt'

def setup_inputs():

    _w = (lambda a: (lambda t: t.to(torch.bfloat16) if t.is_floating_point() else t)(torch.as_tensor(a)))
    def _A_setup():
        B, S, D = 1, 2048, 448
        return {
            "x": _w((lambda *s: torch.randn(*s, dtype=torch.bfloat16) * 0.05)(B, S, D)),
            "wqkv": _w((lambda *s: torch.randn(*s, dtype=torch.bfloat16) * 0.2)(D, 3 * D)),
            "wo": _w((lambda *s: torch.randn(*s, dtype=torch.bfloat16) * 0.2)(D, D)),
        }
    _A_in = _A_setup()

    def _B_setup():
        B, S, D, F = 1, 2048, 448, 1792
        return {
            "x": _w((lambda *s: torch.randn(*s, dtype=torch.bfloat16) * 0.05)(B, S, D)),
            "w1": _w((lambda *s: torch.randn(*s, dtype=torch.bfloat16) * 0.8)(S, F) * (S ** -0.5)),
            "b1": _w((lambda *s: torch.randn(*s, dtype=torch.bfloat16) * 0.8)(F) * 0.02),
            "w2": _w((lambda *s: torch.randn(*s, dtype=torch.bfloat16) * 0.1)(F, S) * (F ** -0.5)),
            "b2": _w((lambda *s: torch.randn(*s, dtype=torch.bfloat16) * 0.1)(S) * 0.02),
        }
    _B_in = _B_setup()

    return {
        "A_x": _A_in["x"],
        "A_wqkv": _A_in["wqkv"],
        "A_wo": _A_in["wo"],
        "B_x": _B_in["x"],
        "B_w1": _B_in["w1"],
        "B_b1": _B_in["b1"],
        "B_w2": _B_in["w2"],
        "B_b2": _B_in["b2"],
    }

def reference(A_x, A_wqkv, A_wo, B_x, B_w1, B_b1, B_w2, B_b2):
    def _A_ref(x, wqkv, wo):
        B, S, D = x.shape
        H = 16; Dh = D // H
        W, dil = 8, 2
        qkv = (lambda x, *d: x.permute(*d))((x @ wqkv).reshape(B, S, 3, H, Dh), 2, 0, 3, 1, 4)
        q, k, v = qkv[0], qkv[1], qkv[2]
        scale = Dh ** -0.5
        pos = torch.arange(S)
        off = torch.arange(W) * dil
        idx = pos[:, None] - off[None, :]
        mask = idx >= 0
        idx_c = torch.where(mask, idx, 0).reshape(-1)
        kg = k[:, :, idx_c, :].reshape(B, H, S, W, Dh)
        vg = v[:, :, idx_c, :].reshape(B, H, S, W, Dh)
        logits = torch.einsum("bhsd,bhswd->bhsw", q, kg) * scale
        logits = torch.where(mask[None, None, :, :], logits, -1e9)
        attn = _softmax(logits, axis=-1)
        o = torch.einsum("bhsw,bhswd->bhsd", attn, vg)
        return (lambda x, *d: x.permute(*d))(o, 0, 2, 1, 3).reshape(B, S, D) @ wo

    def _B_ref(x, w1, b1, w2, b2):
        B, S, D = x.shape
        h = _layernorm(x, axis=-1)
        u = torch.einsum("bsd,sf->bdf", h, w1) + b1
        u = _gelu(u)
        y = torch.einsum("bdf,fs->bds", u, w2) + b2
        return (lambda x, *d: x.permute(*d))(y, 0, 2, 1)

    x = A_x
    xn = _layernorm(x, axis=-1)
    s = _A_ref(xn, A_wqkv, A_wo)
    g = _silu(_B_ref(xn, B_w1, B_b1, B_w2, B_b2))
    return x + s * g
```

```python
import re, subprocess

REG_RE = re.compile(r'^(-|abs\(|\|)?([vas])(\d+)\)?\|?$')
RNG_RE = re.compile(r'^(-|abs\(|\|)?([vas])\[(\d+):(\d+)\]\)?\|?$')
TRANS = ('v_exp_f32', 'v_log_f32', 'v_rcp_f32', 'v_rsq_f32', 'v_sqrt_f32', 'v_sin_f32', 'v_cos_f32', 'v_rcp_iflag_f32')

def regs_of(op):
    op = op.strip()
    m = REG_RE.match(op)
    if m: return {(m.group(2), int(m.group(3)))}
    m = RNG_RE.match(op)
    if m: return {(m.group(2), k) for k in range(int(m.group(3)), int(m.group(4)) + 1)}
    if op == 'vcc': return {('s', 'vcc')}
    if op == 'exec': return {('s', 'exec')}
    if op == 'm0': return {('s', 'm0')}
    return set()

class I:
    __slots__ = ('text', 'mn', 'ops', 'mods', 'kind', 'dst', 'src', 'srcA', 'srcB', 'srcC', 'dpp', 'states', 'label', 'target', 'data', 'lds')
    def __init__(self, text):
        self.text = text
        t = text.split(';')[0].strip()
        self.label = None; self.target = None
        self.kind = 'other'; self.dst = set(); self.src = set(); self.srcA = self.srcB = self.srcC = set()
        self.dpp = False; self.states = 1; self.data = set(); self.lds = False; self.mn = ''; self.ops = []
        if not t or t.startswith('.'):
            self.kind = 'nop0'; self.states = 0; return
        if t.endswith(':'):
            self.kind = 'label'; self.label = t[:-1]; self.states = 0; return
        parts = t.split(None, 1)
        mn = parts[0]; self.mn = mn
        rest = parts[1] if len(parts) > 1 else ''
        ops = []; depth = 0; cur = ''
        for ch in rest:
            if ch in '[(': depth += 1
            if ch in '])': depth -= 1
            if ch == ',' and depth == 0: ops.append(cur.strip()); cur = ''
            else: cur += ch
        if cur.strip(): ops.append(cur.strip())
        mods = ''
        if ops:
            last = ops[-1].split(None, 1)
            if len(last) > 1 and not ops[-1].startswith('hwreg') and not mn.startswith('s_waitcnt'):
                ops[-1] = last[0]; mods = last[1]
        self.ops = ops; self.mods = mods
        R = [regs_of(o) for o in ops]
        U = lambda l: set().union(*l) if l else set()
        if mn == 's_nop':
            self.kind = 'salu'; self.states = int(ops[0], 0) + 1
        elif mn.startswith('s_cbranch') or mn == 's_branch':
            self.kind = 'branch'; self.target = ops[0]
        elif mn == 's_endpgm':
            self.kind = 'end'
        elif mn.startswith('s_'):
            self.kind = 'salu'
            if mn.startswith('s_cmp') or mn in ('s_waitcnt', 's_barrier', 's_sleep', 's_setprio', 's_bitcmp0_b32', 's_bitcmp1_b32'):
                self.src = U(R)
            else:
                self.dst = R[0] if R else set(); self.src = U(R[1:])
                if 'saveexec' in mn: self.dst = self.dst | {('s', 'exec')}
            if mn.startswith('s_load') or mn.startswith('s_mem'): self.kind = 'smem'
        elif mn.startswith('v_mfma'):
            self.kind = 'mfma'; self.dst = R[0]; self.srcA, self.srcB, self.srcC = R[1], R[2], R[3]
            self.src = R[1] | R[2] | R[3]
        elif mn.startswith('v_'):
            self.kind = 'valu'
            self.dst = R[0]; self.src = U(R[1:])
            if mn.startswith('v_permlane'):
                self.dst = R[0] | R[1]; self.src = R[0] | R[1]
            if mn.startswith(('v_fmac', 'v_dot2c', 'v_pk_fmac')): self.src |= R[0]
            if mn.startswith(('v_add_co', 'v_sub_co', 'v_addc_co', 'v_mad_u64')): self.dst = R[0] | R[1]; self.src = U(R[2:])
            if '_dpp' in mn or 'row_' in mods or 'quad_perm' in mods: self.dpp = True; self.src |= R[0]
        elif mn.startswith('buffer_') or mn.startswith('global_'):
            self.kind = 'vmem'
            self.lds = bool(re.search(r'\blds\b', mods)) or '_lds_' in mn
            if 'load' in mn and not self.lds:
                self.dst = R[0]; self.src = U(R[1:])
            else:
                self.src = U(R)
                if 'store' in mn:
                    self.data = R[0] if mn.startswith('buffer_') else R[1]
            if self.lds: self.src |= {('s', 'm0')}
        elif mn.startswith('ds_'):
            self.kind = 'ds'
            if mn.startswith(('ds_read', 'ds_bpermute', 'ds_permute', 'ds_swizzle')):
                self.dst = R[0]; self.src = U(R[1:])
            else:
                self.src = U(R)
            if 'addtid' in mn: self.src |= {('s', 'm0')}; self.lds = True
        else:
            raise ValueError('unknown instr: ' + text)

def vonly(s): return {r for r in s if r[0] in 'va'}
def sonly(s): return {r for r in s if r[0] == 's'}

def required(p, c):
    n = 0
    if p.kind == 'valu':
        pv = vonly(p.dst); ps = sonly(p.dst)
        dl = p.mn.startswith('v_dot')
        if c.kind == 'mfma' and pv & c.src: n = max(n, 3 if dl else 2)
        if c.kind == 'valu':
            if c.dpp and pv & c.src: n = max(n, 2)
            if c.mn.startswith('v_permlane') and pv & c.src: n = max(n, 2)
            if c.mn.startswith(('v_readlane', 'v_readfirstlane')) and pv & c.src: n = max(n, 1)
            if p.mn.replace('_e32', '').replace('_e64', '') in TRANS and pv & c.src: n = max(n, 1)
            if ('sdwa' in p.mn or 'op_sel:' in p.mods) and not p.mn.startswith('v_pk') and pv & (c.src | c.dst): n = max(n, 1)
            if ps & c.src: n = max(n, 4 if c.mn.startswith(('v_readlane', 'v_writelane')) else 2)
            if dl and pv & (c.src | c.dst):
                same = c.mn == p.mn
                if not same or pv & (regs_of(c.ops[1]) | regs_of(c.ops[2])): n = max(n, 3)
        if dl and c.kind in ('vmem', 'ds') and pv & c.src: n = max(n, 3)
        if c.kind == 'vmem' and ps & c.src: n = max(n, 5)
        if c.kind in ('salu', 'smem', 'branch') and ps & c.src: n = max(n, 1)
        if ('s', 'exec') in ps: raise ValueError('VALU exec write not supported: ' + p.text)
    if p.kind == 'mfma':
        big = '32x32' in p.mn
        d = p.dst
        if c.kind == 'mfma':
            if d & (c.srcA | c.srcB): n = max(n, 12 if big else 8)
            if d & c.srcC and not (c.srcC == d and ('32x32' in c.mn) == big): n = max(n, 10 if big else 6)
            if d & c.dst and not d & c.srcC: n = max(n, 10 if big else 6)
        elif c.kind == 'valu':
            if d & (c.src | c.dst): n = max(n, 12 if big else 8)
            if p.srcC & c.dst: n = max(n, 7 if big else 3)
        elif c.kind in ('vmem', 'ds'):
            if d & (c.src | c.dst): n = max(n, 12 if big else 8)
    if p.kind == 'salu' and ('s', 'm0') in p.dst and c.lds: n = max(n, 1)
    if p.kind == 'vmem' and p.data and len(p.data) >= 3:
        if c.kind == 'valu' and p.data & c.dst: n = max(n, 2)
        elif p.data & c.dst: n = max(n, 1)
    return n

def hazard_fix(lines):
    ins = [I(l) for l in lines]
    out = []
    br = {}
    for x in ins:
        if x.kind == 'branch': br.setdefault(x.target, []).append(x)
    pos = {}
    inserted = 0
    def need_for(c, seq, posmap, idx):
        best = 0
        stack = [(idx - 1, 0)]
        seen = set()
        while stack:
            j, dist = stack.pop()
            while j >= 0 and dist < 20:
                if (j, dist) in seen: break
                seen.add((j, dist))
                p = seq[j]
                if p.kind == 'label':
                    for b in br.get(p.label, []):
                        if id(b) in posmap: stack.append((posmap[id(b)], dist))
                    k = j - 1
                    while k >= 0 and seq[k].kind in ('nop0', 'label'): k -= 1
                    if k >= 0 and (seq[k].kind == 'end' or seq[k].mn == 's_branch'):
                        kk = j - 1
                        while kk > k:
                            if seq[kk].kind == 'label':
                                for b in br.get(seq[kk].label, []):
                                    if id(b) in posmap: stack.append((posmap[id(b)], dist))
                            kk -= 1
                        break
                    j -= 1; continue
                if p.kind != 'nop0':
                    r = required(p, c)
                    if r - dist > best: best = r - dist
                dist += p.states
                j -= 1
        return best
    seq = ins
    for _ in range(4):
        posmap = {id(x): k for k, x in enumerate(seq)}
        add = {}
        changed = False
        new = []
        newpos = {}
        for k, c in enumerate(seq):
            if c.kind not in ('label', 'nop0'):
                n1 = need_for(c, new, newpos, len(new))
                n = n1
                if n > 0:
                    while n > 0:
                        m = min(n, 16)
                        new.append(I(f's_nop {m-1}')); n -= m
                    inserted += 1; changed = True
            newpos[id(c)] = len(new)
            new.append(c)
        seq = new
        posmap = {id(x): k for k, x in enumerate(seq)}
        new = []
        for k, c in enumerate(seq):
            if c.kind not in ('label', 'nop0'):
                n = need_for(c, seq, posmap, k)
                if n > 0:
                    new.append(I(f's_nop {n-1}')); changed = True; inserted += 1
            new.append(c)
        seq = new
        if not changed: break
    return [x.text for x in seq], inserted

class KB:
    def __init__(self):
        self.lines = []
        self.uid = 0
        self.vm = []
        self.lg = []
    def __call__(self, s):
        for l in s.strip('\n').split('\n'):
            l = l.strip()
            if l: self.lines.append(l)
    def label(self, n): self.lines.append(n + ':')
    def newlabel(self, base):
        self.uid += 1
        return f'{base}_{self.uid}'
    def vmem(self, text, tok=None):
        if len(self.vm) >= 56:
            self('s_waitcnt vmcnt(55)'); self.vm = self.vm[-55:]
        self(text)
        self.vm.append(tok)
        return tok
    def vwait(self, tok, slack=0):
        idx = [k for k, t in enumerate(self.vm) if t == tok]
        if not idx: return
        n = len(self.vm) - 1 - idx[-1]
        n = max(0, min(n - slack, 63))
        self(f's_waitcnt vmcnt({n})')
        self.vm = self.vm[len(self.vm) - n:] if n else []
    def vwait_all(self):
        self('s_waitcnt vmcnt(0)'); self.vm = []
    def ds(self, text, tok=None):
        self(text)
        self.lg.append(tok)
    def lwait(self, tok):
        idx = [k for k, t in enumerate(self.lg) if t == tok]
        if not idx: return
        n = min(len(self.lg) - 1 - idx[-1], 15)
        self(f's_waitcnt lgkmcnt({n})')
        self.lg = self.lg[len(self.lg) - n:] if n else []
    def lwait_all(self):
        self('s_waitcnt lgkmcnt(0)'); self.lg = []

def vr(b, n=1, k='v'):
    return f'{k}{b}' if n == 1 else f'{k}[{b}:{b+n-1}]'
def ar(b, n=1): return vr(b, n, 'a')
def sr(b, n=1): return vr(b, n, 's')
```

```python
import sys, struct, math, os
sys.path.insert(0, os.path.dirname(os.path.abspath(__file__)))
from kb import *

NAME = "recurrent_scan__sliding_local_dilated__mixer_token_mlp__prompt"
S, D, F = 2048, 448, 1792

class Cfg:
    FS = 128
    NR = 5
    PD1 = 20
    PD2 = 20
    WAUX = " nt"
    QAUX = ""
    XAUX = ""
    OAUX = ""
    STAMPS = False
    SPIN = 200000
    LNW = 3
    CODEPF = True

WS_EPOCH = 0
WS_FH = 0x1000
WS_FU = 0x9000
WS_FO = 0xF000
WS_STATS = 0x14000
WS_TS = 0x18000
WS_HT = 0x40000
WS_U = 0x240000
WS_O = 0x440000
O_PAR = 66 * 16384
WS_END = 0x680000
KS = 28 * 1024
OOB = 0x80000000

def f2u(x): return struct.unpack('<I', struct.pack('<f', x))[0]

sWG, sWAVE = 2, 3
sX, sWQKV, sWO, sW1, sW2, sB1, sB2, sOUT, sWS = 8, 12, 16, 20, 24, 28, 32, 36, 40
sTAG = 44
sXCD, sIDX = 46, 47
sST, sDJ = 48, 49
sFT, sJ = 50, 51
sRING = 52
sWOFF, sWLO, sWHI = 53, 54, 55
sAOFF, sALO, sAHI = 56, 57, 58
sW2OFF, sW2LO, sW2HI = 59, 60, 61
sG, sPAR, sBLK = 62, 63, 64
sT0 = 66
sSTAMP = 80

def lds_red(c): return 4 * c.NR * 4096
LN_PITCH = 960

class Gen:
    def __init__(self, c):
        self.c = c
        self.k = KB()
        self.LDS_RED = lds_red(c)
        self.LDS_LN = 153600
        self.LDS_SIZE = 163840

    def stamp(self, i):
        if self.c.STAMPS:
            self.k(f"s_memrealtime s[{sSTAMP+2*i}:{sSTAMP+2*i+1}]")

    def prologue(self):
        k, c = self.k, self.c
        self.stamp(0)
        k(f"s_cmp_ge_u32 s{sWG}, 256\ns_cbranch_scc1 L_end")
        for reg, off in ((sX, 0), (sWS, 80), (sW1, 32), (sWQKV, 8), (sWO, 16), (sB1, 40), (sW2, 48), (sB2, 56), (sOUT, 64)):
            k(f"s_load_dwordx2 s[{reg}:{reg+1}], s[0:1], {off}")
        for reg, n in ((sX, S*D*2), (sWS, WS_END), (sW1, S*F*2), (sWQKV, D*3*D*2), (sWO, D*D*2), (sB1, F*2), (sW2, F*S*2), (sB2, S*2), (sOUT, S*D*2)):
            k(f"s_mov_b32 s{reg+2}, {n}\ns_mov_b32 s{reg+3}, 0x20000")
        if c.STAMPS:
            for i in range(1, 11): k(f"s_mov_b64 s[{sSTAMP+2*i}:{sSTAMP+2*i+1}], 0")
        k(f"""v_and_b32 v1, 63, v0
              v_lshrrev_b32 v2, 6, v0
              v_lshrrev_b32 v3, 5, v0
              v_readfirstlane_b32 s{sWAVE}, v2
              s_lshl_b32 s{sT0}, s{sWG}, 3
              v_add_u32 v4, s{sT0}, v3
              v_mul_u32_u24 v4, 896, v4
              v_and_b32 v5, 31, v0
              v_lshl_add_u32 v4, v5, 4, v4
              v_cmp_gt_u32 vcc, 28, v5
              v_bfrev_b32 v6, 1
              v_cndmask_b32 v4, v6, v4, vcc
              s_and_b32 s{sXCD}, s{sWG}, 7
              s_lshr_b32 s{sIDX}, s{sWG}, 3
              s_waitcnt lgkmcnt(0)""")
        k.vmem(f"buffer_load_dwordx4 v[40:43], v4, s[{sX}:{sX+3}], 0 offen{c.XAUX}", 'lnx')
        k.vmem(f"buffer_load_dwordx4 v[44:47], v4, s[{sX}:{sX+3}], 0 offen offset:448{c.XAUX}", 'lnx')
        k(f"s_load_dword s{sTAG}, s[{sWS}:{sWS+1}], {WS_EPOCH}")
        if c.CODEPF:
            k(f"s_getpc_b64 s[{sT0}:{sT0+1}]")
            k.label("L_pc")
            k(f"""s_lshl_b32 s{sT0+4}, s{sIDX}, 2
                  s_add_u32 s{sT0+4}, s{sT0+4}, s{sWAVE}
                  s_lshl_b32 s{sT0+4}, s{sT0+4}, 9
                  v_and_b32 v7, 3, v0
                  v_lshlrev_b32 v7, 7, v7
                  v_add_u32 v7, s{sT0+4}, v7
                  v_min_u32 v7, CODE_BYTES, v7""")
            k.vmem(f"global_load_dword v39, v7, s[{sT0}:{sT0+1}]", 'cpf')
        k(f"""s_mul_i32 s{sT0}, s{sIDX}, 37
              s_lshr_b32 s{sT0}, s{sT0}, 8
              s_mul_i32 s{sT0+1}, s{sT0}, 7
              s_sub_u32 s{sDJ}, s{sIDX}, s{sT0+1}
              s_lshl_b32 s{sST}, s{sXCD}, 2
              s_add_u32 s{sST}, s{sST}, s{sT0}
              s_mul_i32 s{sRING}, s{sWAVE}, {c.NR*4096}""")
        k(f"""v_mul_u32_u24 v9, {LN_PITCH}, v3
              v_lshl_add_u32 v9, v5, 4, v9
              v_add_u32 v9, {self.LDS_LN}, v9""")
        k(f"""v_lshrrev_b32 v10, 5, v1
              v_lshlrev_b32 v10, 4, v10
              v_lshl_add_u32 v10, v2, 2, v10
              v_add_u32 v10, {self.LDS_LN + 7680}, v10
              s_mov_b32 s{sT0+2}, 0x3f803f80""")

    def ln(self):
        k, c = self.k, self.c
        k.vwait('lnx')
        self.stamp(1)
        X = 40
        k(f"v_dot2_f32_bf16 v12, v{X}, s{sT0+2}, 0\nv_dot2_f32_bf16 v13, v{X}, v{X}, 0")
        for i in range(1, 8):
            k(f"v_dot2_f32_bf16 v12, v{X+i}, s{sT0+2}, v12\nv_dot2_f32_bf16 v13, v{X+i}, v{X+i}, v13")
        un = []
        for i in range(8):
            un.append(f"v_lshlrev_b32 v{48+2*i}, 16, v{X+i}")
            un.append(f"v_and_b32 v{49+2*i}, 0xffff0000, v{X+i}")
        def fill(n):
            for _ in range(n):
                if un: k(un.pop(0))
        fill(3)
        for m in ("quad_perm:[1,0,3,2]", "quad_perm:[2,3,0,1]", "row_half_mirror", "row_mirror"):
            k(f"v_add_f32_dpp v12, v12, v12 {m} row_mask:0xf bank_mask:0xf")
            k(f"v_add_f32_dpp v13, v13, v13 {m} row_mask:0xf bank_mask:0xf")
            fill(1)
        k("v_mov_b32 v14, v12\nv_mov_b32 v15, v13")
        fill(2)
        k("v_permlane16_swap_b32 v12, v14\nv_permlane16_swap_b32 v13, v15")
        fill(1)
        k(f"""v_add_f32 v12, v12, v14
              v_add_f32 v13, v13, v15
              v_mul_f32 v12, {f2u(1.0/D):#x}, v12
              v_mul_f32 v13, {f2u(1.0/D):#x}, v13
              v_fma_f32 v13, -v12, v12, v13
              v_max_f32 v13, 0, v13
              v_add_f32 v14, {f2u(1e-5):#x}, v13
              v_rsq_f32 v14, v14""")
        fill(2)
        k(f"""v_mul_f32 v15, v14, v14
              v_mov_b32 v16, {f2u(1e-5):#x}
              v_fmac_f32 v16, v13, v15
              v_rsq_f32 v16, v16
              v_mul_f32 v15, -v12, v14""")
        fill(16)
        k("v_mul_f32 v18, v14, v16\nv_mul_f32 v19, v15, v16")
        k.ds("ds_write2_b32 v10, v14, v15 offset1:8")
        for i in range(8):
            k(f"v_pk_fma_f32 v[{48+2*i}:{49+2*i}], v[{48+2*i}:{49+2*i}], v[18:19], v[18:19] op_sel:[0,0,1] op_sel_hi:[1,0,1]")
        for i in range(8):
            k(f"v_cvt_pk_bf16_f32 v{X+i}, v{48+2*i}, v{49+2*i}")
        k.ds(f"ds_write_b128 v9, v[{X}:{X+3}]")
        k.ds(f"ds_write_b128 v9, v[{X+4}:{X+7}] offset:448")
        k.lwait_all()
        k(f"""s_mul_i32 s{sTAG+1}, s{sTAG}, 0x2c9277b5
              s_mul_i32 s{sTAG}, s{sTAG}, 0x9e3779b1
              s_add_u32 s{sTAG+1}, s{sTAG+1}, 0x5bd1e995
              s_add_u32 s{sTAG}, s{sTAG}, 0x7f4a7c15
              s_barrier""")
        skip = k.newlabel("L_lnskip")
        k(f"s_cmp_lg_u32 s{sWAVE}, {c.LNW}\ns_cbranch_scc1 {skip}")
        save = list(k.vm)
        k(f"""v_bfe_u32 v12, v1, 2, 2
              v_mul_u32_u24 v12, {LN_PITCH}, v12
              v_lshrrev_b32 v13, 4, v1
              v_lshl_add_u32 v12, v13, 5, v12
              v_and_b32 v14, 3, v1
              v_lshl_add_u32 v12, v14, 3, v12
              v_add_u32 v12, {self.LDS_LN}, v12""")
        for q in range(7):
            for h in range(2):
                k.ds(f"ds_read_b64_tr_b16 v[{40+4*q+2*h}:{41+4*q+2*h}], v12 offset:{h*4*LN_PITCH + q*128}", ('q', q))
        k(f"v_lshlrev_b32 v16, 4, v14\nv_add_u32 v16, {self.LDS_LN + 7680}, v16")
        k.ds("ds_read_b128 v[68:71], v16", 'st')
        k(f"""v_and_b32 v15, 15, v1
              v_lshlrev_b32 v15, 4, v15
              v_lshl_add_u32 v15, v13, 10, v15
              s_lshr_b32 s{sT0}, s{sWG}, 2
              s_mul_i32 s{sT0}, s{sT0}, {KS}
              s_and_b32 s{sT0+1}, s{sWG}, 3
              s_lshl_b32 s{sT0+1}, s{sT0+1}, 8
              s_add_u32 s{sT0}, s{sT0}, s{sT0+1}
              s_add_u32 s{sT0}, s{sT0}, {WS_HT}""")
        for q in range(7):
            k.lwait(('q', q))
            k.vmem(f"buffer_store_dwordx4 v[{40+4*q}:{43+4*q}], v15, s[{sWS}:{sWS+3}], s{sT0} offen sc1", 'hst')
            if q < 6: k(f"s_add_u32 s{sT0}, s{sT0}, 4096")
        k(f"""v_lshlrev_b32 v16, 12, v1
              v_cmp_gt_u32 vcc, 4, v1
              v_bfrev_b32 v17, 1
              s_lshl_b32 s{sT0}, s{sWG}, 4
              v_cndmask_b32 v16, v17, v16, vcc
              s_add_u32 s{sT0}, s{sT0}, {WS_STATS}""")
        k.lwait('st')
        k.vmem(f"buffer_store_dwordx4 v[68:71], v16, s[{sWS}:{sWS+3}], s{sT0} offen sc1", 'hst')
        k(f"s_mul_i32 s{sT0}, s{sWG}, {c.FS}\ns_add_u32 s{sT0}, s{sT0}, {WS_FH}")
        k.vwait_all()
        self.flag_store(sT0)
        k.label(skip)
        k.vm = save
        self.stamp(2)

    def flag_store(self, soff):
        k = self.k
        k(f"""v_cmp_eq_u32 vcc, 0, v1
              v_bfrev_b32 v17, 1
              v_mov_b32 v18, s{sTAG}
              v_cndmask_b32 v17, v17, 0, vcc
              v_mov_b32 v19, s{sTAG+1}""")
        k.vmem(f"buffer_store_dwordx2 v[18:19], v17, s[{sWS}:{sWS+3}], s{soff} offen sc1", 'flag')

    def poll(self, vaddr, vt):
        k, c = self.k, self.c
        lp, done = k.newlabel("L_poll"), k.newlabel("L_polled")
        k(f"s_mov_b32 s{sT0+13}, 0")
        k.label(lp)
        k(f"""buffer_load_dwordx2 v[{vt}:{vt+1}], v{vaddr}, s[{sWS}:{sWS+3}], 0 offen sc1
              s_waitcnt vmcnt(0)
              v_cmp_ne_u64 vcc, s[{sTAG}:{sTAG+1}], v[{vt}:{vt+1}]
              s_add_u32 s{sT0+13}, s{sT0+13}, 1
              s_cbranch_vccz {done}
              s_cmp_lt_u32 s{sT0+13}, {c.SPIN}
              s_cbranch_scc1 {lp}""")
        k.label(done)
        k.vm = []

    def w_addr_setup(self, vq, stride):
        k = self.k
        k(f"""v_lshrrev_b32 v12, 3, v1
              v_lshrrev_b32 v13, 5, v1
              v_and_b32 v14, 3, v12
              v_lshl_add_u32 v13, v13, 3, v14
              v_mul_u32_u24 v13, {stride}, v13
              v_and_b32 v14, 6, v12
              v_and_b32 v15, 7, v1
              v_xor_b32 v14, v14, v15
              v_lshl_add_u32 v{vq}, v14, 4, v13""")
        for q in range(1, 4):
            h, G = q >> 1, q & 1
            k(f"v_add_u32 v{vq+q}, {(16*G + 4*h)*stride - q*1024}, v{vq}")

    def w_tr_setup(self, vt):
        k = self.k
        k(f"""v_bfe_u32 v12, v1, 2, 3
              v_lshrrev_b32 v13, 5, v1
              v_lshlrev_b32 v13, 10, v13
              v_lshl_add_u32 v13, v12, 7, v13
              v_and_b32 v14, 3, v1
              v_lshl_add_u32 v13, v14, 3, v13
              v_add_u32 v13, s{sRING}, v13
              v_lshrrev_b32 v12, 1, v12""")
        for a in range(4):
            k(f"""s_add_u32 s{sT0}, s{sWAVE}, {a}
                  s_and_b32 s{sT0}, s{sT0}, 3
                  v_xor_b32 v14, s{sT0}, v12
                  v_lshl_add_u32 v{vt+a}, v14, 5, v13""")

    def w_dma_ops(self, n, srd, vq, soff, slo, shi, stride, tag):
        k, c = self.k, self.c
        slot = n % c.NR
        ops = []
        for q in range(4):
            def op(q=q):
                if q == 0: k(f"s_add_u32 m0, s{sRING}, {slot*4096}")
                off = f" offset:{q*1024}" if q else ""
                k.vmem(f"buffer_load_dwordx4 v{vq+q}, s[{srd}:{srd+3}], s{soff} offen{off}{c.WAUX} lds", (tag, n))
                if q == 3:
                    k(f"s_add_u32 s{soff}, s{soff}, {32*stride}\ns_cmp_ge_u32 s{soff}, s{shi}\ns_cselect_b32 s{soff}, s{slo}, s{soff}")
            ops.append(op)
        return ops

    def w_stream(self, ns, pre, srd, vq, soff, slo, shi, stride, tag, vt, extra=()):
        k, c = self.k, self.c
        issued = pre
        extra = list(extra)
        while issued < min(ns, c.NR):
            for op in self.w_dma_ops(issued, srd, vq, soff, slo, shi, stride, tag): op()
            issued += 1
        for n in range(ns):
            k.vwait((tag, n))
            slot = n % c.NR
            for a in range(4):
                for h in range(2):
                    b = 16*n + 4*a + 2*h
                    k.ds(f"ds_read_b64_tr_b16 a[{b}:{b+1}], v{vt+a} offset:{slot*4096 + h*2048}", (tag, n))
            if n >= 1:
                if issued < ns:
                    k.lwait((tag, n-1))
                    for op in self.w_dma_ops(issued, srd, vq, soff, slo, shi, stride, tag): op()
                    issued += 1
                else:
                    for _ in range(4):
                        if extra: extra.pop(0)()
        for op in extra: op()
        k.lwait_all()

    def p2_setup(self):
        k = self.k
        self.w_addr_setup(20, 4096)
        k(f"""s_and_b32 s{sT0}, s{sST}, 3
              s_mul_i32 s{sT0}, s{sT0}, 7
              s_add_u32 s{sT0}, s{sT0}, 1
              s_lshr_b32 s{sT0}, s{sT0}, 1
              s_lshl_b32 s{sT0+1}, s{sDJ}, 1
              s_add_u32 s{sT0}, s{sT0}, s{sT0+1}
              s_sub_u32 s{sT0+1}, s{sT0}, 14
              s_cmp_ge_u32 s{sT0}, 14
              s_cselect_b32 s65, s{sT0+1}, s{sT0}
              s_mul_i32 s{sW2LO}, s{sWAVE}, {448*4096}
              s_lshl_b32 s{sT0+1}, s{sST}, 7
              s_add_u32 s{sW2LO}, s{sW2LO}, s{sT0+1}
              s_add_u32 s{sW2HI}, s{sW2LO}, {448*4096}
              s_mul_i32 s{sT0+1}, s65, {32*4096}
              s_add_u32 s{sW2OFF}, s{sW2LO}, s{sT0+1}""")

    NPRE = 5
    def w2_pre_ops(self):
        ops = []
        for n in range(self.NPRE):
            ops += self.w_dma_ops(n, sW2, 20, sW2OFF, sW2LO, sW2HI, 4096, 'W2')
        return ops

    def m1(self):
        k, c = self.k, self.c
        ACC, STG = 32, 112
        k(f"""s_mul_i32 s{sT0}, s{sIDX}, 43
              s_lshr_b32 s{sT0}, s{sT0}, 8
              s_mul_i32 s{sT0+1}, s{sT0}, 6
              s_sub_u32 s{sJ}, s{sIDX}, s{sT0+1}
              s_lshr_b32 s{sT0+1}, s{sXCD}, 1
              s_mul_i32 s{sT0+1}, s{sT0+1}, 7
              s_and_b32 s{sT0+2}, s{sXCD}, 1
              s_lshl_b32 s{sT0+3}, s{sT0+2}, 2
              s_add_u32 s{sT0+1}, s{sT0+1}, s{sT0+3}
              s_add_u32 s{sFT}, s{sT0+1}, s{sT0}
              s_add_u32 s{sT0+2}, s{sT0+2}, 4
              s_mul_i32 s{sT0}, s{sT0}, s{sT0+2}
              s_mul_i32 s{sT0+1}, s{sJ}, 43
              s_add_u32 s{sT0+1}, s{sT0+1}, 8
              s_lshr_b32 s{sT0+1}, s{sT0+1}, 4
              s_add_u32 s{sT0}, s{sT0}, s{sT0+1}
              s_and_b32 s{sT0}, s{sT0}, 15
              s_mul_i32 s{sWLO}, s{sWAVE}, {512*3584}
              s_lshl_b32 s{sT0+1}, s{sFT}, 7
              s_add_u32 s{sWLO}, s{sWLO}, s{sT0+1}
              s_add_u32 s{sWHI}, s{sWLO}, {512*3584}
              s_mul_i32 s{sT0+1}, s{sT0}, {32*3584}
              s_add_u32 s{sWOFF}, s{sWLO}, s{sT0+1}
              s_mul_i32 s{sALO}, s{sWAVE}, {16*KS}
              s_mul_i32 s{sT0+1}, s{sJ}, 5120
              s_add_u32 s{sALO}, s{sALO}, s{sT0+1}
              s_add_u32 s{sALO}, s{sALO}, {WS_HT}
              s_add_u32 s{sAHI}, s{sALO}, {16*KS}
              s_mul_i32 s{sT0+1}, s{sT0}, {KS}
              s_add_u32 s{sAOFF}, s{sALO}, s{sT0+1}""")
        self.w_addr_setup(2, 3584)
        for n in range(c.NR):
            for op in self.w_dma_ops(n, sW1, 2, sWOFF, sWLO, sWHI, 3584, 'W1'): op()
        self.w_tr_setup(6)
        self.p2_setup()
        k(f"""v_lshlrev_b32 v10, 4, v1
              s_cmp_eq_u32 s{sJ}, 5
              s_cselect_b32 s{sT0}, {OOB:#x}, 0
              s_add_u32 s{sT0}, s{sT0}, 3072
              v_add_u32 v11, s{sT0}, v10
              v_lshrrev_b32 v12, 4, v1
              v_lshlrev_b32 v12, 3, v12
              s_lshl_b32 s{sT0}, s{sFT}, 7
              s_lshl_b32 s{sT0+1}, s{sWAVE}, 5
              s_add_u32 s{sT0}, s{sT0}, s{sT0+1}""")
        k.vmem(f"buffer_load_dwordx2 v[24:25], v12, s[{sB1}:{sB1+3}], s{sT0} offen", 'b1')
        k(f"""s_mul_i32 s{sT0}, s{sWAVE}, {64*c.FS}
              s_add_u32 s{sT0}, s{sT0}, {WS_FH}
              v_mul_u32_u24 v26, {c.FS}, v1
              v_add_u32 v26, s{sT0}, v26""")
        self.w_stream(16, c.NR, sW1, 2, sWOFF, sWLO, sWHI, 3584, 'W1', 6)
        self.stamp(3)
        self.poll(26, 28)
        self.stamp(4)
        NF = 80
        def hload(n):
            i, t = divmod(n, 5)
            b = STG + 4*(n % c.PD1)
            va, off = (10, t*1024) if t < 3 else (11, (t-3)*1024)
            o = f" offset:{off}" if off else ""
            k.vmem(f"buffer_load_dwordx4 v[{b}:{b+3}], v{va}, s[{sWS}:{sWS+3}], s{sAOFF} offen{o} sc1", ('H', n))
            if t == 4:
                k(f"s_add_u32 s{sAOFF}, s{sAOFF}, {KS}\ns_cmp_ge_u32 s{sAOFF}, s{sAHI}\ns_cselect_b32 s{sAOFF}, s{sALO}, s{sAOFF}")
        for n in range(c.PD1): hload(n)
        pre = self.w2_pre_ops()
        for n in range(NF):
            i, t = divmod(n, 5)
            b = STG + 4*(n % c.PD1)
            k.vwait(('H', n))
            for a in range(4):
                d = ACC + 20*a + 4*t
                cin = "0" if i == 0 else f"v[{d}:{d+3}]"
                k(f"v_mfma_f32_16x16x32_bf16 v[{d}:{d+3}], a[{16*i+4*a}:{16*i+4*a+3}], v[{b}:{b+3}], {cin}")
            if n + c.PD1 < NF: hload(n + c.PD1)
            elif pre: pre.pop(0)()
        for op in pre: op()
        self.stamp(5)
        RED = self.LDS_RED
        for a in range(1, 4):
            k(f"""s_add_u32 s{sT0}, s{sWAVE}, {a}
                  s_and_b32 s{sT0}, s{sT0}, 3
                  s_mul_i32 s{sT0}, s{sT0}, 15360
                  s_add_u32 s{sT0}, s{sT0}, {RED + (a-1)*5120}
                  v_add_u32 v{11+a}, s{sT0}, v10""")
        for a in range(1, 4):
            for t in range(5):
                d = ACC + 20*a + 4*t
                k.ds(f"ds_write_b128 v{11+a}, v[{d}:{d+3}] offset:{t*1024}")
        k(f"""s_mul_i32 s{sT0}, s{sWAVE}, 15360
              s_add_u32 s{sT0}, s{sT0}, {RED}
              v_add_u32 v15, s{sT0}, v10
              v_lshlrev_b32 v28, 16, v24
              v_and_b32 v29, 0xffff0000, v24
              v_lshlrev_b32 v30, 16, v25
              v_and_b32 v31, 0xffff0000, v25""")
        for t in range(5):
            d = ACC + 4*t
            k(f"v_pk_add_f32 v[{d}:{d+1}], v[{d}:{d+1}], v[28:29]\nv_pk_add_f32 v[{d+2}:{d+3}], v[{d+2}:{d+3}], v[30:31]")
        k.lwait_all()
        k("s_barrier")
        for t in range(5):
            for a in range(3):
                b = STG + 12*t + 4*a
                k.ds(f"ds_read_b128 v[{b}:{b+3}], v15 offset:{a*5120 + t*1024}", ('r', t))
        k(f"""v_lshrrev_b32 v12, 4, v1
              v_and_b32 v13, 1, v12
              v_lshrrev_b32 v12, 1, v12
              v_lshlrev_b32 v12, 8, v12
              v_and_b32 v14, 15, v1
              v_lshl_add_u32 v12, v14, 4, v12
              v_lshl_add_u32 v16, v13, 10, v12
              v_lshl_add_u32 v17, v13, 31, v12
              s_cmp_eq_u32 s{sJ}, 5
              s_cselect_b64 vcc, -1, 0
              s_cselect_b32 s{sT0}, {OOB:#x}, 0
              v_cndmask_b32 v18, v16, v17, vcc
              v_add_u32 v17, 4096, v17
              v_or_b32 v17, s{sT0}, v17
              s_lshl_b32 s{sT0}, s{sFT}, 1
              s_lshr_b32 s{sT0+1}, s{sWAVE}, 1
              s_add_u32 s{sT0}, s{sT0}, s{sT0+1}
              s_mul_i32 s{sT0}, s{sT0}, {KS}
              s_mul_i32 s{sT0+1}, s{sJ}, 5120
              s_add_u32 s{sT0}, s{sT0}, s{sT0+1}
              s_and_b32 s{sT0+1}, s{sWAVE}, 1
              s_lshl_b32 s{sT0+1}, s{sT0+1}, 9
              s_add_u32 s{sT0}, s{sT0}, s{sT0+1}
              s_add_u32 s{sT0}, s{sT0}, {WS_U}""")
        c1 = -2.0 * math.sqrt(2.0 / math.pi) * math.log2(math.e)
        k(f"""v_mov_b32 v28, {f2u(c1):#x}
              v_mov_b32 v29, {f2u(c1*0.044715):#x}""")
        T = ACC + 20
        PK = ACC + 60
        for t in range(5):
            d = ACC + 4*t; b = STG + 12*t; e = T + 4*t
            k.lwait(('r', t))
            for h in (0, 2):
                k(f"v_pk_add_f32 v[{b+h}:{b+h+1}], v[{b+h}:{b+h+1}], v[{b+4+h}:{b+5+h}]")
                k(f"v_pk_add_f32 v[{d+h}:{d+h+1}], v[{d+h}:{d+h+1}], v[{b+8+h}:{b+9+h}]")
            for h in (0, 2):
                k(f"v_pk_add_f32 v[{d+h}:{d+h+1}], v[{d+h}:{d+h+1}], v[{b+h}:{b+h+1}]")
            for h in (0, 2):
                k(f"v_pk_mul_f32 v[{e+h}:{e+h+1}], v[{d+h}:{d+h+1}], v[{d+h}:{d+h+1}]")
            for h in (0, 2):
                k(f"v_pk_fma_f32 v[{e+h}:{e+h+1}], v[{e+h}:{e+h+1}], v[28:29], v[28:29] op_sel:[0,1,0] op_sel_hi:[1,1,0]")
            for h in (0, 2):
                k(f"v_pk_mul_f32 v[{e+h}:{e+h+1}], v[{e+h}:{e+h+1}], v[{d+h}:{d+h+1}]")
            for r in range(4): k(f"v_exp_f32 v{e+r}, v{e+r}")
            for h in (0, 2):
                k(f"v_pk_add_f32 v[{e+h}:{e+h+1}], v[{e+h}:{e+h+1}], 1.0 op_sel_hi:[1,0]")
            for r in range(4): k(f"v_rcp_f32 v{e+r}, v{e+r}")
            for h in (0, 2):
                k(f"v_pk_mul_f32 v[{d+h}:{d+h+1}], v[{d+h}:{d+h+1}], v[{e+h}:{e+h+1}]")
            k(f"v_cvt_pk_bf16_f32 v{PK+2*t}, v{d}, v{d+1}\nv_cvt_pk_bf16_f32 v{PK+2*t+1}, v{d+2}, v{d+3}")
            if t in (1, 3, 4):
                p = PK + 4*(t >> 1)
                k(f"v_permlane16_swap_b32 v{p}, v{p+2}\nv_permlane16_swap_b32 v{p+1}, v{p+3}")
                va, off = {1: (16, ""), 3: (18, " offset:2048"), 4: (17, "")}[t]
                k.vmem(f"buffer_store_dwordx4 v[{p}:{p+3}], v{va}, s[{sWS}:{sWS+3}], s{sT0} offen{off} sc1", 'ust')
        k.vwait('ust')
        k("s_barrier")
        skip = k.newlabel("L_uflag")
        k(f"s_cmp_lg_u32 s{sWAVE}, 0\ns_cbranch_scc1 {skip}")
        k(f"""s_mul_i32 s{sT0}, s{sFT}, 6
              s_add_u32 s{sT0}, s{sT0}, s{sJ}
              s_mul_i32 s{sT0}, s{sT0}, {c.FS}
              s_add_u32 s{sT0}, s{sT0}, {WS_FU}""")
        self.flag_store(sT0)
        k(f"s_cmp_lg_u32 s{sWG}, 0\ns_cbranch_scc1 {skip}")
        k(f"buffer_store_dword v18, v17, s[{sWS}:{sWS+3}], 0 offen sc1")
        k.label(skip)
        self.stamp(6)
        k("s_branch L_p2")

    def p2(self):
        k, c = self.k, self.c
        k.label("L_p2")
        k.vm = [('W2', n) for n in range(self.NPRE) for _ in range(4)]
        k.lg = []
        ACC, SAC, STG, OF = 32, 96, 112, 192
        WO = self.LDS_RED
        k(f"""v_lshlrev_b32 v10, 4, v1
              v_lshrrev_b32 v12, 3, v1
              v_mul_u32_u24 v13, 896, v12
              v_and_b32 v14, 6, v12
              v_and_b32 v15, 7, v1
              v_xor_b32 v14, v14, v15
              v_lshl_add_u32 v2, v14, 4, v13
              s_mul_i32 s{sT0+4}, s{sWAVE}, {112*896}
              s_lshl_b32 s{sT0+5}, s{sDJ}, 7
              s_add_u32 s{sT0+4}, s{sT0+4}, s{sT0+5}
              s_mul_i32 s{sT0+6}, s{sWAVE}, {14*1024}
              s_add_u32 s{sT0+6}, s{sT0+6}, {WO}""")
        k(f"""v_and_b32 v12, 15, v1
              v_mul_u32_u24 v3, 896, v12
              v_bfe_u32 v13, v1, 4, 1
              v_lshl_add_u32 v3, v13, 5, v3
              v_lshrrev_b32 v13, 5, v1
              v_lshl_add_u32 v3, v13, 4, v3
              v_lshlrev_b32 v4, 1, v12
              s_lshl_b32 s{sT0}, s{sST}, 2
              s_add_u32 s{sT0}, s{sT0}, s{sWAVE}
              s_mul_i32 s{sT0+7}, s{sT0}, {16*896}
              s_add_u32 s{sT0+7}, s{sT0+7}, s{sT0+5}
              s_lshl_b32 s{sT0+8}, s{sT0}, 5
              s_lshr_b32 s{sT0+10}, s{sT0}, 1
              s_lshl_b32 s{sT0+9}, s{sT0+10}, 14
              s_and_b32 s{sT0+1}, s{sT0}, 1
              s_lshl_b32 s{sT0+1}, s{sT0+1}, 7
              s_add_u32 s{sT0+9}, s{sT0+9}, s{sT0+1}
              s_add_u32 s{sT0+9}, s{sT0+9}, {WS_O}""")
        sWOOFF, sWOM0, sXOFF, sB2OFF, sOOFF, sU = sT0+4, sT0+6, sT0+7, sT0+8, sT0+9, sT0+10
        extra = []
        for e in range(15):
            def op(e=e):
                k(f"s_add_u32 m0, s{sWOM0}, {e*1024}")
                k.vmem(f"buffer_load_dwordx4 v2, s[{sWO}:{sWO+3}], s{sWOOFF} offen lds", 'Wo')
                k(f"s_add_u32 s{sWOOFF}, s{sWOOFF}, {8*896}")
            extra.append(op)
        extra.append(lambda: k.vmem(f"buffer_load_dwordx4 v[24:27], v3, s[{sX}:{sX+3}], s{sXOFF} offen", 'x'))
        extra.append(lambda: k.vmem(f"buffer_load_dwordx4 v[28:31], v3, s[{sX}:{sX+3}], s{sXOFF} offen offset:64", 'x'))
        extra.append(lambda: k.vmem(f"buffer_load_ushort v5, v4, s[{sB2}:{sB2+3}], s{sB2OFF} offen", 'x'))
        k(f"""s_mul_i32 s{sALO}, s{sWAVE}, {14*KS}
              s_lshl_b32 s{sT0+1}, s{sDJ}, 12
              s_add_u32 s{sALO}, s{sALO}, s{sT0+1}
              s_add_u32 s{sALO}, s{sALO}, {WS_U}
              s_add_u32 s{sAHI}, s{sALO}, {14*KS}
              s_mul_i32 s{sT0+1}, s65, {KS}
              s_add_u32 s{sAOFF}, s{sALO}, s{sT0+1}
              v_min_u32 v12, 13, v1
              v_and_b32 v13, 1, v12
              v_mul_u32_u24 v13, 3, v13
              s_lshl_b32 s{sT0+1}, s{sDJ}, 2
              v_add_u32 v13, s{sT0+1}, v13
              v_mul_u32_u24 v13, 52, v13
              v_lshrrev_b32 v13, 8, v13
              v_lshrrev_b32 v12, 1, v12
              s_mul_i32 s{sT0+1}, s{sWAVE}, 7
              v_add_u32 v12, s{sT0+1}, v12
              v_mad_u32_u24 v12, v12, 6, v13
              v_mul_u32_u24 v12, {c.FS}, v12
              v_add_u32 v11, {WS_FU}, v12""")
        k(f"""v_and_b32 v12, 7, v1
              v_add_u32 v13, 2, v12
              v_and_b32 v13, 4, v13
              v_cmp_eq_u32 vcc, 0, v13
              s_lshr_b32 s{sT0+1}, s{sU}, 3
              s_mul_i32 s{sT0+2}, s{sU}, 205
              s_lshr_b32 s{sT0+2}, s{sT0+2}, 10
              v_mov_b32 v13, s{sT0+1}
              v_mov_b32 v14, s{sT0+2}
              v_cndmask_b32 v13, v13, v14, vcc
              v_lshl_add_u32 v12, v12, 4, v13
              v_mul_u32_u24 v12, {c.FS}, v12
              v_add_u32 v16, {WS_FO}, v12
              v_and_b32 v12, 1, v1
              v_mul_u32_u24 v12, {O_PAR}, v12
              v_lshrrev_b32 v13, 4, v1
              v_lshl_add_u32 v12, v13, 8, v12
              v_bfe_u32 v13, v1, 1, 3
              v_lshl_add_u32 v17, v13, 4, v12""")
        self.w_stream(14, self.NPRE, sW2, 20, sW2OFF, sW2LO, sW2HI, 4096, 'W2', 6, extra)
        self.stamp(7)
        self.poll(11, 18)
        self.stamp(8)
        NF = 56
        def uload(n):
            i, t = divmod(n, 4)
            b = STG + 4*(n % c.PD2)
            o = f" offset:{t*1024}" if t else ""
            k.vmem(f"buffer_load_dwordx4 v[{b}:{b+3}], v10, s[{sWS}:{sWS+3}], s{sAOFF} offen{o} sc1", ('U', n))
            if t == 3:
                k(f"s_add_u32 s{sAOFF}, s{sAOFF}, {KS}\ns_cmp_ge_u32 s{sAOFF}, s{sAHI}\ns_cselect_b32 s{sAOFF}, s{sALO}, s{sAOFF}")
        for n in range(c.PD2): uload(n)
        k(f"""v_permlane16_swap_b32 v24, v26
              v_permlane16_swap_b32 v25, v27
              v_permlane16_swap_b32 v28, v30
              v_permlane16_swap_b32 v29, v31
              v_lshlrev_b32 v5, 16, v5
              v_lshrrev_b32 v12, 2, v1
              v_lshlrev_b32 v13, 7, v12
              v_and_b32 v14, 3, v1
              v_lshl_add_u32 v13, v14, 3, v13
              v_add_u32 v13, {WO}, v13
              v_bfe_u32 v12, v1, 3, 2""")
        for a in range(4):
            k(f"v_xor_b32 v14, {a}, v12\nv_lshl_add_u32 v{20+a}, v14, 5, v13")
        for n in range(NF):
            i, t = divmod(n, 4)
            b = STG + 4*(n % c.PD2)
            k.vwait(('U', n))
            for a in range(4):
                d = ACC + 16*a + 4*t
                cin = "0" if i == 0 else f"v[{d}:{d+3}]"
                k(f"v_mfma_f32_16x16x32_bf16 v[{d}:{d+3}], v[{b}:{b+3}], a[{16*i+4*a}:{16*i+4*a+3}], {cin}")
            if n + c.PD2 < NF: uload(n + c.PD2)
        self.stamp(9)
        self.poll(16, 18)
        for hd in range(16):
            o = f" offset:{(hd&3)*1024}" if hd & 3 else ""
            k.vmem(f"buffer_load_dwordx4 v[{OF+4*hd}:{OF+4*hd+3}], v17, s[{sWS}:{sWS+3}], s{sOOFF} offen{o} sc1", ('O', hd))
            if hd & 3 == 3 and hd < 15: k(f"s_add_u32 s{sOOFF}, s{sOOFF}, 4096")
        k(f"v_add_u32 v12, s{sRING}, v10")
        for a in range(1, 4):
            for t in range(4):
                d = ACC + 16*a + 4*t
                k.ds(f"ds_write_b128 v12, v[{d}:{d+3}] offset:{(a-1)*4096 + t*1024}")
        for a in range(1, 4):
            k(f"""s_sub_u32 s{sT0}, s{sWAVE}, {a}
                  s_and_b32 s{sT0}, s{sT0}, 3
                  s_mul_i32 s{sT0}, s{sT0}, {c.NR*4096}
                  s_add_u32 s{sT0}, s{sT0}, {(a-1)*4096}
                  v_add_u32 v{12+a}, s{sT0}, v10""")
        for t in range(4):
            d = ACC + 4*t
            for h in (0, 2):
                k(f"v_pk_add_f32 v[{d+h}:{d+h+1}], v[{d+h}:{d+h+1}], v[4:5] op_sel:[0,1] op_sel_hi:[1,1]")
        k.lwait_all()
        k("s_barrier")
        for t in range(4):
            for a in range(3):
                b = STG + 12*t + 4*a
                k.ds(f"ds_read_b128 v[{b}:{b+3}], v{13+a} offset:{t*1024}", ('r', t))
        k(f"s_mov_b32 s{sT0}, {f2u(-math.log2(math.e)):#x}\ns_mov_b32 s{sT0+1}, s{sT0}")
        T = ACC + 16
        for t in range(4):
            d = ACC + 4*t; b = STG + 12*t; e = T + 4*t
            k.lwait(('r', t))
            for h in (0, 2):
                k(f"v_pk_add_f32 v[{b+h}:{b+h+1}], v[{b+h}:{b+h+1}], v[{b+4+h}:{b+5+h}]")
                k(f"v_pk_add_f32 v[{d+h}:{d+h+1}], v[{d+h}:{d+h+1}], v[{b+8+h}:{b+9+h}]")
            for h in (0, 2):
                k(f"v_pk_add_f32 v[{d+h}:{d+h+1}], v[{d+h}:{d+h+1}], v[{b+h}:{b+h+1}]")
            for h in (0, 2):
                k(f"v_pk_mul_f32 v[{e+h}:{e+h+1}], v[{d+h}:{d+h+1}], s[{sT0}:{sT0+1}]")
            for r in range(4): k(f"v_exp_f32 v{e+r}, v{e+r}")
            for h in (0, 2):
                k(f"v_pk_add_f32 v[{e+h}:{e+h+1}], v[{e+h}:{e+h+1}], 1.0 op_sel_hi:[1,0]")
            for r in range(4): k(f"v_rcp_f32 v{e+r}, v{e+r}")
            for h in (0, 2):
                k(f"v_pk_mul_f32 v[{d+h}:{d+h+1}], v[{d+h}:{d+h+1}], v[{e+h}:{e+h+1}]")
        XF = ACC + 32
        for i in range(8):
            k(f"v_lshlrev_b32 v{XF+2*i}, 16, v{24+i}\nv_and_b32 v{XF+2*i+1}, 0xffff0000, v{24+i}")
        def woread(hd):
            base = 16 * (hd % 3)
            for t in range(4):
                for hh in range(2):
                    b = base + 4*t + 2*hh
                    k.ds(f"ds_read_b64_tr_b16 a[{b}:{b+1}], v{20 + (t ^ (2*(hd & 1)))} offset:{(28*hd + 16*hh)*128}", ('wo', hd))
        woread(0)
        for hd in range(16):
            if hd + 1 < 16: woread(hd + 1)
            k.vwait(('O', hd))
            k.lwait(('wo', hd))
            base = 16 * (hd % 3)
            for t in range(4):
                d = SAC + 4*t
                cin = "0" if hd == 0 else f"v[{d}:{d+3}]"
                k(f"v_mfma_f32_16x16x32_bf16 v[{d}:{d+3}], a[{base+4*t}:{base+4*t+3}], v[{OF+4*hd}:{OF+4*hd+3}], {cin}")
        for t in range(4):
            d = ACC + 4*t; s_ = SAC + 4*t; x = XF + 4*t
            for h in (0, 2):
                k(f"v_pk_fma_f32 v[{d+h}:{d+h+1}], v[{d+h}:{d+h+1}], v[{s_+h}:{s_+h+1}], v[{x+h}:{x+h+1}]")
            k(f"v_cvt_pk_bf16_f32 v{24+2*t}, v{d}, v{d+1}\nv_cvt_pk_bf16_f32 v{25+2*t}, v{d+2}, v{d+3}")
            if t & 1:
                p = 24 + 4*(t >> 1)
                k(f"v_permlane16_swap_b32 v{p}, v{p+2}\nv_permlane16_swap_b32 v{p+1}, v{p+3}")
                o = " offset:64" if t == 3 else ""
                k.vmem(f"buffer_store_dwordx4 v[{p}:{p+3}], v3, s[{sOUT}:{sOUT+3}], s{sXOFF} offen{o}{c.OAUX}", 'out')
        k("s_branch L_fin")

    def attn(self, NT, duty):
        k, c = self.k, self.c
        k.lg = []
        WSLOT, NW = 24576, 4
        XB = NW * WSLOT
        XSLOT, NX = NT * 2048, 3
        nx = 2*NT - 1
        nxe = (nx + 3) // 4
        nxmin = nx // 4
        sWO0, sWO1, sXO, sWM, sXM, sU0 = sWOFF, sWLO, sWHI, sAOFF, sALO, sAHI
        vW, vX, vXR, vWR = 2, 3, 8, 10
        Q, K, V0 = 40, 40 + 8*NT, 40 + 16*NT
        V1 = V0 + 4*NT
        assert V1 + 4*NT <= 256
        k(f"s_mul_i32 s{sU0}, s{sBLK}, {NT-1}")
        k(f"""s_and_b32 s{sT0}, s{sWAVE}, 1
              s_lshl_b32 s{sT0}, s{sT0}, 3
              v_subrev_u32 v12, s{sT0}, v1
              v_mul_u32_u24 v13, 147, v12
              v_lshrrev_b32 v13, 11, v13
              v_mul_u32_u24 v14, 14, v13
              v_sub_u32 v14, v12, v14
              s_lshl_b32 s{sT0}, s{sWAVE}, 3
              v_add_u32 v13, s{sT0}, v13
              v_mul_u32_u24 v13, 2688, v13
              v_lshl_add_u32 v13, v14, 4, v13
              s_mul_i32 s{sT0}, s{sG}, 224
              v_add_u32 v13, s{sT0}, v13
              v_cmp_gt_u32 vcc, 56, v12
              v_bfrev_b32 v14, 1
              s_lshl_b32 s{sWM}, s{sWAVE}, 10
              v_cndmask_b32 v{vW}, v14, v13, vcc
              s_add_u32 s{sXM}, s{sWM}, {XB + 1024}""")
        k(f"""s_lshl_b32 s{sT0}, s{sBLK}, 1
              s_add_u32 s{sT0}, s{sT0}, s{sG}
              s_mul_i32 s{sT0+1}, s{sT0}, 37
              s_lshr_b32 s{sT0+1}, s{sT0+1}, 8
              s_mul_i32 s{sT0+1}, s{sT0+1}, 7
              s_sub_u32 s{sT0}, s{sT0}, s{sT0+1}
              s_lshl_b32 s{sXO}, s{sT0}, 7
              s_mul_i32 s{sWO0}, s{sT0}, {64*2688}
              s_add_u32 s{sWO1}, s{sWO0}, {4*2688}""")
        k(f"""s_lshl_b32 s{sT0}, s{sU0}, 4
              s_lshl_b32 s{sT0+1}, s{sWAVE}, 3
              s_add_u32 s{sT0}, s{sT0}, s{sT0+1}
              s_sub_u32 s{sT0}, s{sT0}, 8
              v_lshrrev_b32 v12, 3, v1
              v_add_u32 v13, s{sT0}, v12
              s_add_u32 s{sT0+1}, s{sWAVE}, 1
              s_and_b32 s{sT0+1}, s{sT0+1}, 1
              s_lshl_b32 s{sT0+1}, s{sT0+1}, 2
              v_lshrrev_b32 v12, 1, v12
              v_add_u32 v12, s{sT0+1}, v12
              v_and_b32 v14, 7, v1
              v_xor_b32 v12, v12, v14
              v_lshlrev_b32 v12, 4, v12
              s_mul_i32 s{sT0+1}, s{sPAR}, 896
              v_add_u32 v12, s{sT0+1}, v12
              s_movk_i32 s{sT0+2}, 1023
              s_movk_i32 s{sT0+3}, 1792""")
        for e in range(nxe):
            k(f"""v_add_u32 v14, {32*e}, v13
                  v_med3_i32 v14, v14, 0, s{sT0+2}
                  v_mad_u32_u24 v{vX+e}, v14, s{sT0+3}, v12""")
        def wdma(i):
            ops = []
            slot = i % NW
            for sec in range(3):
                for h in range(2):
                    def op(sec=sec, h=h):
                        k(f"s_add_u32 m0, s{sWM}, {slot*WSLOT + (2*sec+h)*4096 - sec*896}")
                        o = f" offset:{sec*896}" if sec else ""
                        k.vmem(f"buffer_load_dwordx4 v{vW}, s[{sWQKV}:{sWQKV+3}], s{sWO1 if h else sWO0} offen{o}{c.QAUX} lds", ('W', i))
                        if sec == 2 and h == 1:
                            k(f"s_add_u32 s{sWO0}, s{sWO0}, {32*2688}")
                            if i & 1: k(f"s_cmp_ge_u32 s{sWO0}, {448*2688}\ns_cselect_b32 s{sWO0}, 0, s{sWO0}")
                            k(f"s_add_u32 s{sWO1}, s{sWO0}, {4*2688}")
                    ops.append(op)
            return ops
        def xdma(ch):
            ops = []
            slot = ch % NX
            for e in reversed(range(nxe)):
                def op(e=e):
                    opt = e >= nxmin
                    if opt:
                        l = k.newlabel("L_xs")
                        k(f"s_cmp_ge_u32 s{sWAVE}, {nx - 4*nxmin}\ns_cbranch_scc1 {l}")
                    k(f"s_add_u32 m0, s{sXM}, {slot*XSLOT + e*4096}")
                    t = f"buffer_load_dwordx4 v{vX+e}, s[{sX}:{sX+3}], s{sXO} offen{c.XAUX} lds"
                    if opt:
                        k(t); k.label(l)
                    else:
                        k.vmem(t, ('X', ch))
                    if e == 0:
                        k(f"s_add_u32 s{sXO}, s{sXO}, 128\ns_cmp_ge_u32 s{sXO}, 896\ns_cselect_b32 s{sXO}, 0, s{sXO}")
                ops.append(op)
            return ops
        for op in xdma(0) + wdma(0) + wdma(1) + xdma(1) + wdma(2) + wdma(3) + xdma(2): op()
        k(f"""v_mov_b32 v12, 0x3f803f80
              v_lshlrev_b32 v13, 2, v0
              v_add_u32 v13, {XB}, v13""")
        for sl in range(NX):
            k.ds(f"ds_write_b32 v13, v12 offset:{sl*XSLOT}")
        k(f"""v_and_b32 v12, 15, v1
              v_lshrrev_b32 v13, 4, v1
              v_lshrrev_b32 v14, 1, v12
              v_xor_b32 v14, v14, v13
              v_lshlrev_b32 v14, 4, v14
              v_lshl_add_u32 v14, v12, 7, v14
              v_add_u32 v{vXR}, {XB}, v14
              v_xor_b32 v{vXR+1}, 64, v{vXR}
              v_lshlrev_b32 v14, 10, v13
              v_and_b32 v15, 1, v13
              v_lshl_add_u32 v14, v15, 7, v14
              v_bfe_u32 v15, v1, 2, 2
              v_mul_u32_u24 v15, 224, v15
              v_add_u32 v14, v14, v15
              v_and_b32 v15, 3, v1
              v_lshl_add_u32 v14, v15, 3, v14
              s_mul_i32 s{sT0}, s{sWAVE}, 56
              v_add_u32 v{vWR}, s{sT0}, v14
              v_add_u32 v{vWR+1}, {2*WSLOT}, v{vWR}""")
        FB = 4*NT + 24
        def fx(i, t): return (i & 1)*FB + 4*t
        def fw(i, sec, a): return (i & 1)*FB + 4*NT + 8*sec + 4*a
        def reads(i):
            ops = []
            ws = i % NW; xs = (i >> 1) % NX
            for sec in range(3):
                for a in range(2):
                    for h in range(2):
                        b = fw(i, sec, a) + 2*h
                        ops.append(f"ds_read_b64_tr_b16 a[{b}:{b+1}], v{vWR + (ws >> 1)} offset:{(ws & 1)*WSLOT + (2*sec+h)*4096 + a*32}")
            for t in range(NT):
                b = fx(i, t)
                ops.append(f"ds_read_b128 a[{b}:{b+3}], v{vXR + (i & 1)} offset:{xs*XSLOT + t*2048}")
            return ops
        def mfmas(i):
            ops = []
            for t in range(NT):
                x = f"a[{fx(i,t)}:{fx(i,t)+3}]"
                for sec in range(3):
                    for a in range(2):
                        w = f"a[{fw(i,sec,a)}:{fw(i,sec,a)+3}]"
                        d = (Q + 8*t + 4*a, K + 8*t + 4*a, (V1 if a else V0) + 4*t)[sec]
                        cin = "0" if i == 0 else f"v[{d}:{d+3}]"
                        A, B = (x, w) if sec == 2 else (w, x)
                        ops.append(f"v_mfma_f32_16x16x32_bf16 v[{d}:{d+3}], {A}, {B}, {cin}")
            return ops
        k.vwait(('W', 0))
        k.lwait_all()
        k("s_barrier")
        for r in reads(0): k.ds(r)
        self.stamp(3)
        xq = []
        for i in range(14):
            if i + 1 < 14:
                k.vwait(('W', i+1))
                if (i+1) % 2 == 0: k.vwait(('X', (i+1)//2))
            k.lwait_all()
            k("s_barrier")
            dm = []
            if i % 2 == 1 and (i-1)//2 + NX < 7: xq = xdma((i-1)//2 + NX)
            half = (len(xq) + 1)//2 if i % 2 == 1 else len(xq)
            dm += xq[:half]; xq = xq[half:]
            if i + NW < 14: dm += wdma(i + NW)
            rd = reads(i+1) if i + 1 < 14 else []
            mf = mfmas(i)
            for n, m in enumerate(mf):
                k(m)
                if rd: k.ds(rd.pop(0))
                elif dm and n % 2 == 0: dm.pop(0)()
            for r in rd: k.ds(r)
            for op in dm: op()
        self.stamp(4)
        k(f"""s_lshl_b32 s{sT0}, s{sU0}, 2
              s_sub_u32 s{sT0}, s{sT0}, 4
              v_min_u32 v12, {4*NT-1}, v1
              v_add_u32 v12, s{sT0}, v12
              s_movk_i32 s{sT0+1}, 255
              v_med3_i32 v12, v12, 0, s{sT0+1}
              v_mul_u32_u24 v13, {c.FS}, v12
              v_add_u32 v13, {WS_FH}, v13
              v_lshlrev_b32 v12, 4, v12
              s_lshl_b32 s{sT0}, s{sPAR}, 12
              s_add_u32 s{sT0}, s{sT0}, {WS_STATS}
              s_add_u32 s{sT0+1}, s{sT0}, 8192""")
        self.poll(13, 14)
        k.vmem(f"buffer_load_dwordx4 v[16:19], v12, s[{sWS}:{sWS+3}], s{sT0} offen sc1", 'st')
        k.vmem(f"buffer_load_dwordx4 v[20:23], v12, s[{sWS}:{sWS+3}], s{sT0+1} offen sc1", 'st')
        SB = self.LDS_LN
        CSK, CSV = 24, 32
        k(f"""s_lshl_b32 s{sT0}, s{sWAVE}, 11
              s_add_u32 s{sT0}, s{sT0}, {SB}
              v_lshl_add_u32 v2, v1, 4, s{sT0}
              v_and_b32 v12, 15, v1
              v_lshl_add_u32 v3, v12, 2, s{sT0}
              v_lshrrev_b32 v13, 4, v1
              v_lshl_add_u32 v4, v13, 4, s{sT0}""")
        for r in range(8):
            k(f"v_mov_b32_dpp v{CSK+r}, v{K+r} row_newbcast:0 row_mask:0xf bank_mask:0xf")
            k(f"v_mov_b32_dpp v{Q+r}, v{Q+r} row_newbcast:0 row_mask:0xf bank_mask:0xf")
        k(f"""v_mov_b32 v{CSV}, v{V0}
              v_mov_b32 v{CSV+2}, v{V0}
              v_mov_b32 v{CSV+1}, v{V1}
              v_mov_b32 v{CSV+3}, v{V1}
              v_permlane32_swap_b32 v{CSV}, v{CSV+2}
              v_permlane32_swap_b32 v{CSV+1}, v{CSV+3}""")
        qs = (28 ** -0.5) * math.log2(math.e)
        k(f"s_mov_b32 s{sT0+2}, {f2u(qs):#x}\ns_mov_b32 s{sT0+3}, s{sT0+2}")
        k(f"s_mov_b32 s{sT0+4}, -1\ns_mov_b32 s{sT0+5}, 0x0000ffff")
        sPADM = sT0 + 4
        k.vwait('st')
        k.ds("ds_write_b128 v2, v[16:19]")
        k.ds("ds_write_b128 v2, v[20:23] offset:1024")
        def sregs(t): return ((6, 8, 12), (36, 16, 20))[t & 1]
        def sread(t):
            p, R, N = sregs(t)
            k.ds(f"ds_read2st64_b32 v[{p}:{p+1}], v3 offset0:0 offset1:4", ('s', t)) if t == 0 else None
            if t > 0:
                k.ds(f"ds_read_b32 v{p}, v3 offset:{64*t}", ('s', t))
                k.ds(f"ds_read_b32 v{p+1}, v3 offset:{64*t + 1024}", ('s', t))
            k.ds(f"ds_read_b128 v[{R}:{R+3}], v4 offset:{64*t}", ('s', t))
            k.ds(f"ds_read_b128 v[{N}:{N+3}], v4 offset:{64*t + 1024}", ('s', t))
        sread(0)
        for t in range(NT):
            if t + 1 < NT: sread(t + 1)
            k.lwait(('s', t))
            p, R, N = sregs(t)
            for h in range(0, 8, 2):
                d = K + 8*t + h
                k(f"v_pk_mul_f32 v[{d}:{d+1}], v[{d}:{d+1}], v[{p}:{p+1}] op_sel_hi:[1,0]")
            for h in range(0, 8, 2):
                d = K + 8*t + h
                k(f"v_pk_fma_f32 v[{d}:{d+1}], v[{CSK+h}:{CSK+h+1}], v[{p}:{p+1}], v[{d}:{d+1}] op_sel:[0,1,0] op_sel_hi:[1,1,1]")
            if t > 0: k(f"v_pk_mul_f32 v[{p}:{p+1}], v[{p}:{p+1}], s[{sT0+2}:{sT0+3}]")
            for h in range(4):
                k(f"v_cvt_pk_bf16_f32 v{K+8*t+h}, v{K+8*t+2*h}, v{K+8*t+2*h+1}")
            for h in (2, 3):
                k(f"v_cndmask_b32 v{K+8*t+h}, 0, v{K+8*t+h}, s[{sPADM}:{sPADM+1}]")
            if t > 0:
                for h in range(0, 8, 2):
                    d = Q + 8*t + h
                    k(f"v_pk_mul_f32 v[{d}:{d+1}], v[{d}:{d+1}], v[{p}:{p+1}] op_sel_hi:[1,0]")
                for h in range(0, 8, 2):
                    d = Q + 8*t + h
                    k(f"v_pk_fma_f32 v[{d}:{d+1}], v[{Q+h}:{Q+h+1}], v[{p}:{p+1}], v[{d}:{d+1}] op_sel:[0,1,0] op_sel_hi:[1,1,1]")
                for h in range(4):
                    k(f"v_cvt_pk_bf16_f32 v{Q+8*t+h}, v{Q+8*t+2*h}, v{Q+8*t+2*h+1}")
                for h in (2, 3):
                    k(f"v_cndmask_b32 v{Q+8*t+h}, 0, v{Q+8*t+h}, s[{sPADM}:{sPADM+1}]")
            for a, VB in enumerate((V0, V1)):
                for h in (0, 2):
                    d = VB + 4*t + h
                    k(f"v_pk_mul_f32 v[{d}:{d+1}], v[{d}:{d+1}], v[{R+h}:{R+h+1}]")
            for a, VB in enumerate((V0, V1)):
                for h in (0, 2):
                    d = VB + 4*t + h
                    sel = "op_sel:[0,1,0] op_sel_hi:[1,1,1]" if a else "op_sel_hi:[1,0,1]"
                    k(f"v_pk_fma_f32 v[{d}:{d+1}], v[{N+h}:{N+h+1}], v[{CSV}:{CSV+1}], v[{d}:{d+1}] {sel}")
            for a, VB in enumerate((V0, V1)):
                for h in range(2):
                    k(f"v_cvt_pk_bf16_f32 v{VB+2*t+h}, v{VB+4*t+2*h}, v{VB+4*t+2*h+1}")
        MC, AP = 8, 12
        k(f"""v_lshrrev_b32 v2, 4, v1
              v_lshlrev_b32 v2, 2, v2
              v_and_b32 v3, 15, v1
              v_sub_u32 v2, v2, v3
              v_mov_b32 v4, {f2u(-1e30):#x}
              v_mov_b32 v5, 0xffff
              v_mov_b32 v6, 0xffff0000""")
        SEL = [4, 6, 72, 74]
        for r in range(4):
            k(f"""v_add_u32 v3, {r+7}, v2
                  v_cmp_gt_u32 vcc, 8, v3
                  v_cmp_lt_i32 s[{SEL[r]}:{SEL[r]+1}], 15, v3
                  v_cndmask_b32 v{MC+r}, v4, 0, vcc""")
        for h in range(2):
            k(f"""v_cndmask_b32 v{AP+h}, 0, v5, s[{SEL[2*h]}:{SEL[2*h]+1}]
                  v_cndmask_b32 v3, 0, v6, s[{SEL[2*h+1]}:{SEL[2*h+1]+1}]
                  v_or_b32 v{AP+h}, v{AP+h}, v3""")
        k(f"""s_cmp_eq_u32 s{sBLK}, 0
              s_cselect_b32 s{sT0}, {f2u(-1e30):#x}, 0
              v_mov_b32 v16, s{sT0}
              v_mov_b32 v17, s{sT0}
              v_mov_b32 v18, s{sT0}
              v_mov_b32 v19, s{sT0}""")
        TS = range(1, NT)
        SP = lambda t: Q + 8*t + 4
        SC = lambda t: K + 8*t + 4
        MX = lambda t: V0 + 2*NT + 2*(t-1)
        for t in TS:
            cp = "v[16:19]" if t == 1 else "0"
            k(f"v_mfma_f32_16x16x32_bf16 v[{SP(t)}:{SP(t)+3}], v[{K+8*(t-1)}:{K+8*(t-1)+3}], v[{Q+8*t}:{Q+8*t+3}], {cp}")
            k(f"v_mfma_f32_16x16x32_bf16 v[{SC(t)}:{SC(t)+3}], v[{K+8*t}:{K+8*t+3}], v[{Q+8*t}:{Q+8*t+3}], v[{MC}:{MC+3}]")
        k(f"""v_lshlrev_b32 v14, 4, v1
              s_mul_i32 s{sT0}, s{sPAR}, {O_PAR}
              s_lshl_b32 s{sT0+1}, s{sU0}, 14
              s_add_u32 s{sT0}, s{sT0}, s{sT0+1}
              s_lshl_b32 s{sT0+1}, s{sG}, 2
              s_add_u32 s{sT0+1}, s{sT0+1}, s{sWAVE}
              s_lshl_b32 s{sT0+1}, s{sT0+1}, 10
              s_add_u32 s{sT0}, s{sT0}, s{sT0+1}
              s_add_u32 s{sT0}, s{sT0}, {WS_O}""")
        for t in TS:
            for r in range(4):
                k(f"v_cndmask_b32 v{SC(t)+r}, v{SC(t)+r}, v{SP(t)+r}, s[{SEL[r]}:{SEL[r]+1}]")
            k(f"v_max3_f32 v{MX(t)}, v{SC(t)}, v{SC(t)+1}, v{SC(t)+2}")
            k(f"v_max_f32 v{MX(t)}, v{MX(t)}, v{SC(t)+3}")
        def xreduce(op):
            for sw in ("v_permlane16_swap_b32", "v_permlane32_swap_b32"):
                for t in TS: k(f"v_mov_b32 v{MX(t)+1}, v{MX(t)}")
                for t in TS: k(f"{sw} v{MX(t)}, v{MX(t)+1}")
                for t in TS: k(f"{op} v{MX(t)}, v{MX(t)}, v{MX(t)+1}")
        xreduce("v_max_f32")
        for t in TS:
            for h in (0, 2):
                k(f"v_pk_add_f32 v[{SC(t)+h}:{SC(t)+h+1}], v[{SC(t)+h}:{SC(t)+h+1}], v[{MX(t)}:{MX(t)+1}] op_sel_hi:[1,0] neg_lo:[0,1] neg_hi:[0,1]")
        for t in TS:
            for r in range(4): k(f"v_exp_f32 v{SC(t)+r}, v{SC(t)+r}")
        for t in TS:
            k(f"v_pk_add_f32 v[{MX(t)}:{MX(t)+1}], v[{SC(t)}:{SC(t)+1}], v[{SC(t)+2}:{SC(t)+3}]")
        for t in TS:
            k(f"v_add_f32 v{MX(t)}, v{MX(t)}, v{MX(t)+1}")
        xreduce("v_add_f32")
        for t in TS: k(f"v_rcp_f32 v{MX(t)}, v{MX(t)}")
        for t in TS:
            P = Q + 8*t
            for h in (0, 2):
                k(f"v_pk_mul_f32 v[{SC(t)+h}:{SC(t)+h+1}], v[{SC(t)+h}:{SC(t)+h+1}], v[{MX(t)}:{MX(t)+1}] op_sel_hi:[1,0]")
            for h in range(2):
                k(f"v_cvt_pk_bf16_f32 v{P+2+h}, v{SC(t)+2*h}, v{SC(t)+2*h+1}")
            for h in range(2):
                k(f"v_and_b32 v{P+h}, v{AP+h}, v{P+2+h}")
            for h in range(2):
                k(f"v_xor_b32 v{P+2+h}, v{P+h}, v{P+2+h}")
        for t in TS:
            P = Q + 8*t
            k(f"v_mfma_f32_16x16x32_bf16 v[{SP(t)}:{SP(t)+3}], v[{V0+2*(t-1)}:{V0+2*(t-1)+3}], v[{P}:{P+3}], 0")
            k(f"v_mfma_f32_16x16x32_bf16 v[{SC(t)}:{SC(t)+3}], v[{V1+2*(t-1)}:{V1+2*(t-1)+3}], v[{P}:{P+3}], 0")
        for t in TS:
            P = Q + 8*t
            k(f"""v_cvt_pk_bf16_f32 v{P}, v{SP(t)}, v{SP(t)+1}
                  v_cvt_pk_bf16_f32 v{P+1}, v{SP(t)+2}, v{SP(t)+3}
                  v_cvt_pk_bf16_f32 v{P+2}, v{SC(t)}, v{SC(t)+1}
                  v_cvt_pk_bf16_f32 v{P+3}, v{SC(t)+2}, v{SC(t)+3}
                  v_cndmask_b32 v{P+2}, 0, v{P+2}, s[{sPADM}:{sPADM+1}]
                  v_cndmask_b32 v{P+3}, 0, v{P+3}, s[{sPADM}:{sPADM+1}]""")
            k.vmem(f"buffer_store_dwordx4 v[{P}:{P+3}], v14, s[{sWS}:{sWS+3}], s{sT0} offen sc1", 'ost')
            k(f"s_add_u32 s{sT0}, s{sT0}, 16384")
        self.stamp(5)
        if duty:
            self.w_tr_setup(6)
            self.p2_setup()
            for op in self.w2_pre_ops(): op()
        k.vwait('ost')
        k("s_barrier")
        skip = k.newlabel("L_oflag")
        k(f"s_cmp_lg_u32 s{sWAVE}, 0\ns_cbranch_scc1 {skip}")
        k(f"""s_lshl_b32 s{sT0}, s{sG}, 1
              s_add_u32 s{sT0}, s{sT0}, s{sPAR}
              s_lshl_b32 s{sT0}, s{sT0}, 4
              s_add_u32 s{sT0}, s{sT0}, s{sBLK}
              s_mul_i32 s{sT0}, s{sT0}, {c.FS}
              s_add_u32 s{sT0}, s{sT0}, {WS_FO}""")
        self.flag_store(sT0)
        k.label(skip)
        self.stamp(6)
        k("s_branch L_p2" if duty else "s_branch L_fin")

    def build(self):
        k, c = self.k, self.c
        self.prologue()
        self.ln()
        base_vm = list(k.vm)
        k(f"""s_and_b32 s{sT0}, s{sXCD}, 1
              s_mul_i32 s{sT0+1}, s{sT0}, 6
              s_sub_u32 s{sT0+1}, 24, s{sT0+1}
              s_cmp_ge_u32 s{sIDX}, s{sT0+1}
              s_cbranch_scc1 L_attn""")
        self.m1()
        k.label("L_attn")
        k(f"""s_bfe_u32 s{sPAR}, s{sXCD}, 0x10001
              s_lshr_b32 s{sT0+2}, s{sXCD}, 2
              s_cmp_ge_u32 s{sIDX}, 28
              s_cbranch_scc1 L_heavy
              s_mul_i32 s{sG}, s{sT0+2}, 3
              s_sub_u32 s{sBLK}, s{sIDX}, s{sT0+1}
              s_lshl_b32 s{sT0}, s{sT0}, 2
              s_add_u32 s{sBLK}, s{sBLK}, s{sT0}
              s_cmp_lt_u32 s{sBLK}, 13
              s_cbranch_scc1 L_light""")
        k.vm = list(base_vm)
        self.w_tr_setup(6)
        self.p2_setup()
        for op in self.w2_pre_ops(): op()
        k("s_branch L_p2")
        k.label("L_light")
        k.vm = list(base_vm)
        self.attn(6, True)
        k.label("L_heavy")
        k(f"""s_add_u32 s{sG}, s{sT0+2}, 1
              s_lshl_b32 s{sT0}, s{sT0}, 2
              s_sub_u32 s{sBLK}, s{sIDX}, 28
              s_add_u32 s{sBLK}, s{sBLK}, s{sT0}""")
        k.vm = list(base_vm)
        self.attn(9, False)
        self.p2()
        k.label("L_fin")
        if c.STAMPS:
            k("s_waitcnt vmcnt(0)")
            self.stamp(10)
            k("s_waitcnt lgkmcnt(0)")
            for i in range(22): k(f"v_mov_b32 v{8+i}, s{sSTAMP+i}")
            k(f"""s_lshl_b32 s{sT0}, s{sWG}, 2
                  s_add_u32 s{sT0}, s{sT0}, s{sWAVE}
                  s_lshl_b32 s{sT0}, s{sT0}, 7
                  s_add_u32 s{sT0}, s{sT0}, {WS_TS}
                  v_cmp_eq_u32 vcc, 0, v1
                  v_bfrev_b32 v2, 1
                  v_mov_b32 v30, 0
                  v_mov_b32 v31, 0
                  v_cndmask_b32 v2, v2, 0, vcc""")
            for i in range(6):
                k(f"buffer_store_dwordx4 v[{8+4*i}:{11+4*i}], v2, s[{sWS}:{sWS+3}], s{sT0} offen offset:{16*i}")
        k.label("L_end")
        k("s_endpgm")
        lines, nins = hazard_fix(k.lines)
        hdr = open(os.path.join(os.path.dirname(os.path.abspath(__file__)), "..", "cdna_kernels", NAME + ".s.ref")).read().split("; Override launch")[0]
        out = hdr
        out += f"; @launch grid=(256,1,1) block=(256,1,1) lds={self.LDS_SIZE}\n"
        out += f'.amdgcn_target "amdgcn-amd-amdhsa--gfx950"\n.text\n.globl {NAME}_kernel\n.p2align 8\n.type {NAME}_kernel,@function\n{NAME}_kernel:\n'
        body = "\n".join(l if l.endswith(":") else "    " + l for l in lines)
        body = body.replace("CODE_BYTES", "L_end-L_pc")
        out += body + "\n"
        out += f""".section .rodata,"a"
.p2align 6
.amdhsa_kernel {NAME}_kernel
  .amdhsa_next_free_vgpr 512
  .amdhsa_next_free_sgpr 102
  .amdhsa_accum_offset 256
  .amdhsa_group_segment_fixed_size 0
  .amdhsa_kernarg_size 88
  .amdhsa_user_sgpr_count 2
  .amdhsa_user_sgpr_kernarg_segment_ptr 1
  .amdhsa_system_sgpr_workgroup_id_x 1
.end_amdhsa_kernel
"""
        return out, nins, len(lines)

if __name__ == "__main__":
    c = Cfg()
    outp = sys.argv[1]
    for a in sys.argv[2:]:
        kk, v = a.split("=", 1)
        old = getattr(c, kk)
        if isinstance(old, bool): v = v not in ("0", "False")
        elif isinstance(old, int): v = int(v, 0)
        else: v = (" " + v.replace("+", " ")) if v else ""
        setattr(c, kk, v)
    txt, nins, nl = Gen(c).build()
    open(outp, "w").write(txt)
    print(f"wrote {outp}: {nl} lines, {nins} hazard pads")
```

```python
import sys, struct, math, os
sys.path.insert(0, os.path.dirname(os.path.abspath(__file__)))
from kb import *

NAME = "recurrent_scan__sliding_local_dilated__mixer_token_mlp__prompt"
S, D, F = 2048, 448, 1792

class Cfg:
    FS = 128
    NR = 5
    PD1 = 20
    PD2 = 20
    WAUX = " nt"
    QAUX = ""
    XAUX = ""
    OAUX = ""
    STAMPS = False
    SPIN = 200000
    LNW = 3
    CODEPF = True
    DIAG = -1
    DIAGWG = 0

WS_EPOCH = 0
WS_FH = 0x1000
WS_FU = 0x9000
WS_FO = 0xF000
WS_STATS = 0x14000
WS_TS = 0x18000
WS_HT = 0x40000
WS_U = 0x240000
WS_O = 0x440000
O_PAR = 66 * 16384
WS_END = 0x680000
KS = 28 * 1024
OOB = 0x80000000

def f2u(x): return struct.unpack('<I', struct.pack('<f', x))[0]

sWG, sWAVE = 2, 3
sX, sWQKV, sWO, sW1, sW2, sB1, sB2, sOUT, sWS = 8, 12, 16, 20, 24, 28, 32, 36, 40
sTAG = 44
sXCD, sIDX = 46, 47
sST, sDJ = 48, 49
sFT, sJ = 50, 51
sRING = 52
sWOFF, sWLO, sWHI = 53, 54, 55
sAOFF, sALO, sAHI = 56, 57, 58
sW2OFF, sW2LO, sW2HI = 59, 60, 61
sG, sPAR, sBLK = 62, 63, 64
sT0 = 66
sSTAMP = 80

def lds_red(c): return 4 * c.NR * 4096
LN_PITCH = 960

class Gen:
    def __init__(self, c):
        self.c = c
        self.k = KB()
        self.LDS_RED = lds_red(c)
        self.LDS_LN = 153600
        self.LDS_SIZE = 163840

    def stamp(self, i):
        if self.c.STAMPS:
            self.k(f"s_memrealtime s[{sSTAMP+2*i}:{sSTAMP+2*i+1}]")

    def prologue(self):
        k, c = self.k, self.c
        self.stamp(0)
        if c.STAMPS: k("s_memtime s[4:5]")
        k(f"s_cmp_ge_u32 s{sWG}, 256\ns_cbranch_scc1 L_end")
        for reg, off in ((sX, 0), (sWS, 80), (sW1, 32), (sWQKV, 8), (sWO, 16), (sB1, 40), (sW2, 48), (sB2, 56), (sOUT, 64)):
            k(f"s_load_dwordx2 s[{reg}:{reg+1}], s[0:1], {off}")
        for reg, n in ((sX, S*D*2), (sWS, WS_END), (sW1, S*F*2), (sWQKV, D*3*D*2), (sWO, D*D*2), (sB1, F*2), (sW2, F*S*2), (sB2, S*2), (sOUT, S*D*2)):
            k(f"s_mov_b32 s{reg+2}, {n}\ns_mov_b32 s{reg+3}, 0x20000")
        if c.STAMPS:
            for i in range(1, 11): k(f"s_mov_b64 s[{sSTAMP+2*i}:{sSTAMP+2*i+1}], 0")
        k(f"""v_and_b32 v1, 63, v0
              v_lshrrev_b32 v2, 6, v0
              v_lshrrev_b32 v3, 5, v0
              v_readfirstlane_b32 s{sWAVE}, v2
              s_lshl_b32 s{sT0}, s{sWG}, 3
              v_add_u32 v4, s{sT0}, v3
              v_mul_u32_u24 v4, 896, v4
              v_and_b32 v5, 31, v0
              v_lshl_add_u32 v4, v5, 4, v4
              v_cmp_gt_u32 vcc, 28, v5
              v_bfrev_b32 v6, 1
              v_cndmask_b32 v4, v6, v4, vcc
              s_and_b32 s{sXCD}, s{sWG}, 7
              s_lshr_b32 s{sIDX}, s{sWG}, 3
              s_waitcnt lgkmcnt(0)""")
        if c.STAMPS: k("s_mov_b32 s77, s4")
        k.vmem(f"buffer_load_dwordx4 v[40:43], v4, s[{sX}:{sX+3}], 0 offen{c.XAUX}", 'lnx')
        k.vmem(f"buffer_load_dwordx4 v[44:47], v4, s[{sX}:{sX+3}], 0 offen offset:448{c.XAUX}", 'lnx')
        k(f"s_load_dword s{sTAG}, s[{sWS}:{sWS+1}], {WS_EPOCH}")
        if c.CODEPF:
            k(f"s_getpc_b64 s[{sT0}:{sT0+1}]")
            k.label("L_pc")
            k(f"""s_lshl_b32 s{sT0+4}, s{sIDX}, 2
                  s_add_u32 s{sT0+4}, s{sT0+4}, s{sWAVE}
                  s_lshl_b32 s{sT0+4}, s{sT0+4}, 9
                  v_and_b32 v7, 3, v0
                  v_lshlrev_b32 v7, 7, v7
                  v_add_u32 v7, s{sT0+4}, v7
                  v_min_u32 v7, CODE_BYTES, v7""")
            k.vmem(f"global_load_dword v39, v7, s[{sT0}:{sT0+1}]", 'cpf')
        k(f"""s_mul_i32 s{sT0}, s{sIDX}, 37
              s_lshr_b32 s{sT0}, s{sT0}, 8
              s_mul_i32 s{sT0+1}, s{sT0}, 7
              s_sub_u32 s{sDJ}, s{sIDX}, s{sT0+1}
              s_lshl_b32 s{sST}, s{sXCD}, 2
              s_add_u32 s{sST}, s{sST}, s{sT0}
              s_mul_i32 s{sRING}, s{sWAVE}, {c.NR*4096}""")
        k(f"""v_mul_u32_u24 v9, {LN_PITCH}, v3
              v_lshl_add_u32 v9, v5, 4, v9
              v_add_u32 v9, {self.LDS_LN}, v9""")
        k(f"""v_lshrrev_b32 v10, 5, v1
              v_lshlrev_b32 v10, 4, v10
              v_lshl_add_u32 v10, v2, 2, v10
              v_add_u32 v10, {self.LDS_LN + 7680}, v10
              s_mov_b32 s{sT0+2}, 0x3f803f80""")

    def ln(self):
        k, c = self.k, self.c
        k.vwait('lnx')
        self.stamp(1)
        X = 40
        k(f"v_dot2_f32_bf16 v12, v{X}, s{sT0+2}, 0\nv_dot2_f32_bf16 v13, v{X}, v{X}, 0")
        for i in range(1, 8):
            k(f"v_dot2_f32_bf16 v12, v{X+i}, s{sT0+2}, v12\nv_dot2_f32_bf16 v13, v{X+i}, v{X+i}, v13")
        un = []
        for i in range(8):
            un.append(f"v_lshlrev_b32 v{48+2*i}, 16, v{X+i}")
            un.append(f"v_and_b32 v{49+2*i}, 0xffff0000, v{X+i}")
        def fill(n):
            for _ in range(n):
                if un: k(un.pop(0))
        fill(3)
        for m in ("quad_perm:[1,0,3,2]", "quad_perm:[2,3,0,1]", "row_half_mirror", "row_mirror"):
            k(f"v_add_f32_dpp v12, v12, v12 {m} row_mask:0xf bank_mask:0xf")
            k(f"v_add_f32_dpp v13, v13, v13 {m} row_mask:0xf bank_mask:0xf")
            fill(1)
        k("v_mov_b32 v14, v12\nv_mov_b32 v15, v13")
        fill(2)
        k("v_permlane16_swap_b32 v12, v14\nv_permlane16_swap_b32 v13, v15")
        fill(1)
        k(f"""v_add_f32 v12, v12, v14
              v_add_f32 v13, v13, v15
              v_mul_f32 v12, {f2u(1.0/D):#x}, v12
              v_mul_f32 v13, {f2u(1.0/D):#x}, v13
              v_fma_f32 v13, -v12, v12, v13
              v_max_f32 v13, 0, v13
              v_add_f32 v14, {f2u(1e-5):#x}, v13
              v_rsq_f32 v14, v14""")
        fill(2)
        k(f"""v_mul_f32 v15, v14, v14
              v_mov_b32 v16, {f2u(1e-5):#x}
              v_fmac_f32 v16, v13, v15
              v_rsq_f32 v16, v16
              v_mul_f32 v15, -v12, v14""")
        fill(16)
        k("v_mul_f32 v18, v14, v16\nv_mul_f32 v19, v15, v16")
        k.ds("ds_write2_b32 v10, v14, v15 offset1:8")
        for i in range(8):
            k(f"v_pk_fma_f32 v[{48+2*i}:{49+2*i}], v[{48+2*i}:{49+2*i}], v[18:19], v[18:19] op_sel:[0,0,1] op_sel_hi:[1,0,1]")
        for i in range(8):
            k(f"v_cvt_pk_bf16_f32 v{X+i}, v{48+2*i}, v{49+2*i}")
        k.ds(f"ds_write_b128 v9, v[{X}:{X+3}]")
        k.ds(f"ds_write_b128 v9, v[{X+4}:{X+7}] offset:448")
        k.lwait_all()
        k(f"""s_mul_i32 s{sTAG+1}, s{sTAG}, 0x2c9277b5
              s_mul_i32 s{sTAG}, s{sTAG}, 0x9e3779b1
              s_add_u32 s{sTAG+1}, s{sTAG+1}, 0x5bd1e995
              s_add_u32 s{sTAG}, s{sTAG}, 0x7f4a7c15
              s_barrier""")
        skip = k.newlabel("L_lnskip")
        k(f"s_cmp_lg_u32 s{sWAVE}, {c.LNW}\ns_cbranch_scc1 {skip}")
        save = list(k.vm)
        k(f"""v_bfe_u32 v12, v1, 2, 2
              v_mul_u32_u24 v12, {LN_PITCH}, v12
              v_lshrrev_b32 v13, 4, v1
              v_lshl_add_u32 v12, v13, 5, v12
              v_and_b32 v14, 3, v1
              v_lshl_add_u32 v12, v14, 3, v12
              v_add_u32 v12, {self.LDS_LN}, v12""")
        for q in range(7):
            for h in range(2):
                k.ds(f"ds_read_b64_tr_b16 v[{40+4*q+2*h}:{41+4*q+2*h}], v12 offset:{h*4*LN_PITCH + q*128}", ('q', q))
        k(f"v_lshlrev_b32 v16, 4, v14\nv_add_u32 v16, {self.LDS_LN + 7680}, v16")
        k.ds("ds_read_b128 v[68:71], v16", 'st')
        k(f"""v_and_b32 v15, 15, v1
              v_lshlrev_b32 v15, 4, v15
              v_lshl_add_u32 v15, v13, 10, v15
              s_lshr_b32 s{sT0}, s{sWG}, 2
              s_mul_i32 s{sT0}, s{sT0}, {KS}
              s_and_b32 s{sT0+1}, s{sWG}, 3
              s_lshl_b32 s{sT0+1}, s{sT0+1}, 8
              s_add_u32 s{sT0}, s{sT0}, s{sT0+1}
              s_add_u32 s{sT0}, s{sT0}, {WS_HT}""")
        for q in range(7):
            k.lwait(('q', q))
            k.vmem(f"buffer_store_dwordx4 v[{40+4*q}:{43+4*q}], v15, s[{sWS}:{sWS+3}], s{sT0} offen sc1", 'hst')
            if q < 6: k(f"s_add_u32 s{sT0}, s{sT0}, 4096")
        k(f"""v_lshlrev_b32 v16, 12, v1
              v_cmp_gt_u32 vcc, 4, v1
              v_bfrev_b32 v17, 1
              s_lshl_b32 s{sT0}, s{sWG}, 4
              v_cndmask_b32 v16, v17, v16, vcc
              s_add_u32 s{sT0}, s{sT0}, {WS_STATS}""")
        k.lwait('st')
        k.vmem(f"buffer_store_dwordx4 v[68:71], v16, s[{sWS}:{sWS+3}], s{sT0} offen sc1", 'hst')
        k(f"s_mul_i32 s{sT0}, s{sWG}, {c.FS}\ns_add_u32 s{sT0}, s{sT0}, {WS_FH}")
        k.vwait_all()
        self.flag_store(sT0)
        k.label(skip)
        k.vm = save
        self.stamp(2)

    def flag_store(self, soff):
        k = self.k
        k(f"""v_cmp_eq_u32 vcc, 0, v1
              v_bfrev_b32 v17, 1
              v_mov_b32 v18, s{sTAG}
              v_cndmask_b32 v17, v17, 0, vcc
              v_mov_b32 v19, s{sTAG+1}""")
        k.vmem(f"buffer_store_dwordx2 v[18:19], v17, s[{sWS}:{sWS+3}], s{soff} offen sc1", 'flag')

    def poll(self, vaddr, vt):
        k, c = self.k, self.c
        lp, done = k.newlabel("L_poll"), k.newlabel("L_polled")
        k(f"s_mov_b32 s{sT0+13}, 0")
        k.label(lp)
        k(f"""buffer_load_dwordx2 v[{vt}:{vt+1}], v{vaddr}, s[{sWS}:{sWS+3}], 0 offen sc1
              s_waitcnt vmcnt(0)
              v_cmp_ne_u64 vcc, s[{sTAG}:{sTAG+1}], v[{vt}:{vt+1}]
              s_add_u32 s{sT0+13}, s{sT0+13}, 1
              s_cbranch_vccz {done}
              s_cmp_lt_u32 s{sT0+13}, {c.SPIN}
              s_cbranch_scc1 {lp}""")
        k.label(done)
        k.vm = []

    def w_addr_setup(self, vq, stride):
        k = self.k
        k(f"""v_lshrrev_b32 v12, 3, v1
              v_lshrrev_b32 v13, 5, v1
              v_and_b32 v14, 3, v12
              v_lshl_add_u32 v13, v13, 3, v14
              v_mul_u32_u24 v13, {stride}, v13
              v_and_b32 v14, 6, v12
              v_and_b32 v15, 7, v1
              v_xor_b32 v14, v14, v15
              v_lshl_add_u32 v{vq}, v14, 4, v13""")
        for q in range(1, 4):
            h, G = q >> 1, q & 1
            k(f"v_add_u32 v{vq+q}, {(16*G + 4*h)*stride - q*1024}, v{vq}")

    def w_tr_setup(self, vt):
        k = self.k
        k(f"""v_bfe_u32 v12, v1, 2, 3
              v_lshrrev_b32 v13, 5, v1
              v_lshlrev_b32 v13, 10, v13
              v_lshl_add_u32 v13, v12, 7, v13
              v_and_b32 v14, 3, v1
              v_lshl_add_u32 v13, v14, 3, v13
              v_add_u32 v13, s{sRING}, v13
              v_lshrrev_b32 v12, 1, v12""")
        for a in range(4):
            k(f"""s_add_u32 s{sT0}, s{sWAVE}, {a}
                  s_and_b32 s{sT0}, s{sT0}, 3
                  v_xor_b32 v14, s{sT0}, v12
                  v_lshl_add_u32 v{vt+a}, v14, 5, v13""")

    def w_dma_ops(self, n, srd, vq, soff, slo, shi, stride, tag):
        k, c = self.k, self.c
        slot = n % c.NR
        ops = []
        for q in range(4):
            def op(q=q):
                if q == 0: k(f"s_add_u32 m0, s{sRING}, {slot*4096}")
                off = f" offset:{q*1024}" if q else ""
                k.vmem(f"buffer_load_dwordx4 v{vq+q}, s[{srd}:{srd+3}], s{soff} offen{off}{c.WAUX} lds", (tag, n))
                if q == 3:
                    k(f"s_add_u32 s{soff}, s{soff}, {32*stride}\ns_cmp_ge_u32 s{soff}, s{shi}\ns_cselect_b32 s{soff}, s{slo}, s{soff}")
            ops.append(op)
        return ops

    def w_stream(self, ns, pre, srd, vq, soff, slo, shi, stride, tag, vt, extra=()):
        k, c = self.k, self.c
        issued = pre
        extra = list(extra)
        while issued < min(ns, c.NR):
            for op in self.w_dma_ops(issued, srd, vq, soff, slo, shi, stride, tag): op()
            issued += 1
        for n in range(ns):
            k.vwait((tag, n))
            slot = n % c.NR
            for a in range(4):
                for h in range(2):
                    b = 16*n + 4*a + 2*h
                    k.ds(f"ds_read_b64_tr_b16 a[{b}:{b+1}], v{vt+a} offset:{slot*4096 + h*2048}", (tag, n))
            if n >= 1:
                if issued < ns:
                    k.lwait((tag, n-1))
                    for op in self.w_dma_ops(issued, srd, vq, soff, slo, shi, stride, tag): op()
                    issued += 1
                else:
                    for _ in range(4):
                        if extra: extra.pop(0)()
        for op in extra: op()
        k.lwait_all()

    def p2_setup(self):
        k = self.k
        self.w_addr_setup(20, 4096)
        k(f"""s_and_b32 s{sT0}, s{sST}, 3
              s_mul_i32 s{sT0}, s{sT0}, 7
              s_add_u32 s{sT0}, s{sT0}, 1
              s_lshr_b32 s{sT0}, s{sT0}, 1
              s_lshl_b32 s{sT0+1}, s{sDJ}, 1
              s_add_u32 s{sT0}, s{sT0}, s{sT0+1}
              s_sub_u32 s{sT0+1}, s{sT0}, 14
              s_cmp_ge_u32 s{sT0}, 14
              s_cselect_b32 s65, s{sT0+1}, s{sT0}
              s_mul_i32 s{sW2LO}, s{sWAVE}, {448*4096}
              s_lshl_b32 s{sT0+1}, s{sST}, 7
              s_add_u32 s{sW2LO}, s{sW2LO}, s{sT0+1}
              s_add_u32 s{sW2HI}, s{sW2LO}, {448*4096}
              s_mul_i32 s{sT0+1}, s65, {32*4096}
              s_add_u32 s{sW2OFF}, s{sW2LO}, s{sT0+1}""")

    NPRE = 5
    def w2_pre_ops(self):
        ops = []
        for n in range(self.NPRE):
            ops += self.w_dma_ops(n, sW2, 20, sW2OFF, sW2LO, sW2HI, 4096, 'W2')
        return ops

    def m1(self):
        k, c = self.k, self.c
        ACC, STG = 32, 112
        k(f"""s_mul_i32 s{sT0}, s{sIDX}, 43
              s_lshr_b32 s{sT0}, s{sT0}, 8
              s_mul_i32 s{sT0+1}, s{sT0}, 6
              s_sub_u32 s{sJ}, s{sIDX}, s{sT0+1}
              s_lshr_b32 s{sT0+1}, s{sXCD}, 1
              s_mul_i32 s{sT0+1}, s{sT0+1}, 7
              s_and_b32 s{sT0+2}, s{sXCD}, 1
              s_lshl_b32 s{sT0+3}, s{sT0+2}, 2
              s_add_u32 s{sT0+1}, s{sT0+1}, s{sT0+3}
              s_add_u32 s{sFT}, s{sT0+1}, s{sT0}
              s_add_u32 s{sT0+2}, s{sT0+2}, 4
              s_mul_i32 s{sT0}, s{sT0}, s{sT0+2}
              s_mul_i32 s{sT0+1}, s{sJ}, 43
              s_add_u32 s{sT0+1}, s{sT0+1}, 8
              s_lshr_b32 s{sT0+1}, s{sT0+1}, 4
              s_add_u32 s{sT0}, s{sT0}, s{sT0+1}
              s_and_b32 s{sT0}, s{sT0}, 15
              s_mul_i32 s{sWLO}, s{sWAVE}, {512*3584}
              s_lshl_b32 s{sT0+1}, s{sFT}, 7
              s_add_u32 s{sWLO}, s{sWLO}, s{sT0+1}
              s_add_u32 s{sWHI}, s{sWLO}, {512*3584}
              s_mul_i32 s{sT0+1}, s{sT0}, {32*3584}
              s_add_u32 s{sWOFF}, s{sWLO}, s{sT0+1}
              s_mul_i32 s{sALO}, s{sWAVE}, {16*KS}
              s_mul_i32 s{sT0+1}, s{sJ}, 5120
              s_add_u32 s{sALO}, s{sALO}, s{sT0+1}
              s_add_u32 s{sALO}, s{sALO}, {WS_HT}
              s_add_u32 s{sAHI}, s{sALO}, {16*KS}
              s_mul_i32 s{sT0+1}, s{sT0}, {KS}
              s_add_u32 s{sAOFF}, s{sALO}, s{sT0+1}""")
        self.w_addr_setup(2, 3584)
        for n in range(c.NR):
            for op in self.w_dma_ops(n, sW1, 2, sWOFF, sWLO, sWHI, 3584, 'W1'): op()
        self.w_tr_setup(6)
        self.p2_setup()
        k(f"""v_lshlrev_b32 v10, 4, v1
              s_cmp_eq_u32 s{sJ}, 5
              s_cselect_b32 s{sT0}, {OOB:#x}, 0
              s_add_u32 s{sT0}, s{sT0}, 3072
              v_add_u32 v11, s{sT0}, v10
              v_lshrrev_b32 v12, 4, v1
              v_lshlrev_b32 v12, 3, v12
              s_lshl_b32 s{sT0}, s{sFT}, 7
              s_lshl_b32 s{sT0+1}, s{sWAVE}, 5
              s_add_u32 s{sT0}, s{sT0}, s{sT0+1}""")
        k.vmem(f"buffer_load_dwordx2 v[24:25], v12, s[{sB1}:{sB1+3}], s{sT0} offen", 'b1')
        k(f"""s_mul_i32 s{sT0}, s{sWAVE}, {64*c.FS}
              s_add_u32 s{sT0}, s{sT0}, {WS_FH}
              v_mul_u32_u24 v26, {c.FS}, v1
              v_add_u32 v26, s{sT0}, v26""")
        self.w_stream(16, c.NR, sW1, 2, sWOFF, sWLO, sWHI, 3584, 'W1', 6)
        self.stamp(3)
        self.poll(26, 28)
        self.stamp(4)
        NF = 80
        def hload(n):
            i, t = divmod(n, 5)
            b = STG + 4*(n % c.PD1)
            va, off = (10, t*1024) if t < 3 else (11, (t-3)*1024)
            o = f" offset:{off}" if off else ""
            k.vmem(f"buffer_load_dwordx4 v[{b}:{b+3}], v{va}, s[{sWS}:{sWS+3}], s{sAOFF} offen{o} sc1", ('H', n))
            if t == 4:
                k(f"s_add_u32 s{sAOFF}, s{sAOFF}, {KS}\ns_cmp_ge_u32 s{sAOFF}, s{sAHI}\ns_cselect_b32 s{sAOFF}, s{sALO}, s{sAOFF}")
        for n in range(c.PD1): hload(n)
        pre = self.w2_pre_ops()
        for n in range(NF):
            i, t = divmod(n, 5)
            b = STG + 4*(n % c.PD1)
            k.vwait(('H', n))
            for a in range(4):
                d = ACC + 20*a + 4*t
                cin = "0" if i == 0 else f"v[{d}:{d+3}]"
                k(f"v_mfma_f32_16x16x32_bf16 v[{d}:{d+3}], a[{16*i+4*a}:{16*i+4*a+3}], v[{b}:{b+3}], {cin}")
            if n + c.PD1 < NF: hload(n + c.PD1)
            elif pre: pre.pop(0)()
        for op in pre: op()
        self.stamp(5)
        RED = self.LDS_RED
        for a in range(1, 4):
            k(f"""s_add_u32 s{sT0}, s{sWAVE}, {a}
                  s_and_b32 s{sT0}, s{sT0}, 3
                  s_mul_i32 s{sT0}, s{sT0}, 15360
                  s_add_u32 s{sT0}, s{sT0}, {RED + (a-1)*5120}
                  v_add_u32 v{11+a}, s{sT0}, v10""")
        for a in range(1, 4):
            for t in range(5):
                d = ACC + 20*a + 4*t
                k.ds(f"ds_write_b128 v{11+a}, v[{d}:{d+3}] offset:{t*1024}")
        k(f"""s_mul_i32 s{sT0}, s{sWAVE}, 15360
              s_add_u32 s{sT0}, s{sT0}, {RED}
              v_add_u32 v15, s{sT0}, v10
              v_lshlrev_b32 v28, 16, v24
              v_and_b32 v29, 0xffff0000, v24
              v_lshlrev_b32 v30, 16, v25
              v_and_b32 v31, 0xffff0000, v25""")
        for t in range(5):
            d = ACC + 4*t
            k(f"v_pk_add_f32 v[{d}:{d+1}], v[{d}:{d+1}], v[28:29]\nv_pk_add_f32 v[{d+2}:{d+3}], v[{d+2}:{d+3}], v[30:31]")
        k.lwait_all()
        k("s_barrier")
        for t in range(5):
            for a in range(3):
                b = STG + 12*t + 4*a
                k.ds(f"ds_read_b128 v[{b}:{b+3}], v15 offset:{a*5120 + t*1024}", ('r', t))
        k(f"""v_lshrrev_b32 v12, 4, v1
              v_and_b32 v13, 1, v12
              v_lshrrev_b32 v12, 1, v12
              v_lshlrev_b32 v12, 8, v12
              v_and_b32 v14, 15, v1
              v_lshl_add_u32 v12, v14, 4, v12
              v_lshl_add_u32 v16, v13, 10, v12
              v_lshl_add_u32 v17, v13, 31, v12
              s_cmp_eq_u32 s{sJ}, 5
              s_cselect_b64 vcc, -1, 0
              s_cselect_b32 s{sT0}, {OOB:#x}, 0
              v_cndmask_b32 v18, v16, v17, vcc
              v_add_u32 v17, 4096, v17
              v_or_b32 v17, s{sT0}, v17
              s_lshl_b32 s{sT0}, s{sFT}, 1
              s_lshr_b32 s{sT0+1}, s{sWAVE}, 1
              s_add_u32 s{sT0}, s{sT0}, s{sT0+1}
              s_mul_i32 s{sT0}, s{sT0}, {KS}
              s_mul_i32 s{sT0+1}, s{sJ}, 5120
              s_add_u32 s{sT0}, s{sT0}, s{sT0+1}
              s_and_b32 s{sT0+1}, s{sWAVE}, 1
              s_lshl_b32 s{sT0+1}, s{sT0+1}, 9
              s_add_u32 s{sT0}, s{sT0}, s{sT0+1}
              s_add_u32 s{sT0}, s{sT0}, {WS_U}""")
        c1 = -2.0 * math.sqrt(2.0 / math.pi) * math.log2(math.e)
        k(f"""v_mov_b32 v28, {f2u(c1):#x}
              v_mov_b32 v29, {f2u(c1*0.044715):#x}""")
        T = ACC + 20
        PK = ACC + 60
        for t in range(5):
            d = ACC + 4*t; b = STG + 12*t; e = T + 4*t
            k.lwait(('r', t))
            for h in (0, 2):
                k(f"v_pk_add_f32 v[{b+h}:{b+h+1}], v[{b+h}:{b+h+1}], v[{b+4+h}:{b+5+h}]")
                k(f"v_pk_add_f32 v[{d+h}:{d+h+1}], v[{d+h}:{d+h+1}], v[{b+8+h}:{b+9+h}]")
            for h in (0, 2):
                k(f"v_pk_add_f32 v[{d+h}:{d+h+1}], v[{d+h}:{d+h+1}], v[{b+h}:{b+h+1}]")
            for h in (0, 2):
                k(f"v_pk_mul_f32 v[{e+h}:{e+h+1}], v[{d+h}:{d+h+1}], v[{d+h}:{d+h+1}]")
            for h in (0, 2):
                k(f"v_pk_fma_f32 v[{e+h}:{e+h+1}], v[{e+h}:{e+h+1}], v[28:29], v[28:29] op_sel:[0,1,0] op_sel_hi:[1,1,0]")
            for h in (0, 2):
                k(f"v_pk_mul_f32 v[{e+h}:{e+h+1}], v[{e+h}:{e+h+1}], v[{d+h}:{d+h+1}]")
            for r in range(4): k(f"v_exp_f32 v{e+r}, v{e+r}")
            for h in (0, 2):
                k(f"v_pk_add_f32 v[{e+h}:{e+h+1}], v[{e+h}:{e+h+1}], 1.0 op_sel_hi:[1,0]")
            for r in range(4): k(f"v_rcp_f32 v{e+r}, v{e+r}")
            for h in (0, 2):
                k(f"v_pk_mul_f32 v[{d+h}:{d+h+1}], v[{d+h}:{d+h+1}], v[{e+h}:{e+h+1}]")
            k(f"v_cvt_pk_bf16_f32 v{PK+2*t}, v{d}, v{d+1}\nv_cvt_pk_bf16_f32 v{PK+2*t+1}, v{d+2}, v{d+3}")
            if t in (1, 3, 4):
                p = PK + 4*(t >> 1)
                k(f"v_permlane16_swap_b32 v{p}, v{p+2}\nv_permlane16_swap_b32 v{p+1}, v{p+3}")
                va, off = {1: (16, ""), 3: (18, " offset:2048"), 4: (17, "")}[t]
                k.vmem(f"buffer_store_dwordx4 v[{p}:{p+3}], v{va}, s[{sWS}:{sWS+3}], s{sT0} offen{off} sc1", 'ust')
        k.vwait('ust')
        k("s_barrier")
        skip = k.newlabel("L_uflag")
        k(f"s_cmp_lg_u32 s{sWAVE}, 0\ns_cbranch_scc1 {skip}")
        k(f"""s_mul_i32 s{sT0}, s{sFT}, 6
              s_add_u32 s{sT0}, s{sT0}, s{sJ}
              s_mul_i32 s{sT0}, s{sT0}, {c.FS}
              s_add_u32 s{sT0}, s{sT0}, {WS_FU}""")
        self.flag_store(sT0)
        k(f"s_cmp_lg_u32 s{sWG}, 0\ns_cbranch_scc1 {skip}")
        k(f"buffer_store_dword v18, v17, s[{sWS}:{sWS+3}], 0 offen sc1")
        k.label(skip)
        self.stamp(6)
        k("s_branch L_p2")

    def p2(self):
        k, c = self.k, self.c
        k.label("L_p2")
        k.vm = [('W2', n) for n in range(self.NPRE) for _ in range(4)]
        k.lg = []
        ACC, SAC, STG, OF = 32, 96, 112, 192
        WO = self.LDS_RED
        k(f"""v_lshlrev_b32 v10, 4, v1
              v_lshrrev_b32 v12, 3, v1
              v_mul_u32_u24 v13, 896, v12
              v_and_b32 v14, 6, v12
              v_and_b32 v15, 7, v1
              v_xor_b32 v14, v14, v15
              v_lshl_add_u32 v2, v14, 4, v13
              s_mul_i32 s{sT0+4}, s{sWAVE}, {112*896}
              s_lshl_b32 s{sT0+5}, s{sDJ}, 7
              s_add_u32 s{sT0+4}, s{sT0+4}, s{sT0+5}
              s_mul_i32 s{sT0+6}, s{sWAVE}, {14*1024}
              s_add_u32 s{sT0+6}, s{sT0+6}, {WO}""")
        k(f"""v_and_b32 v12, 15, v1
              v_mul_u32_u24 v3, 896, v12
              v_bfe_u32 v13, v1, 4, 1
              v_lshl_add_u32 v3, v13, 5, v3
              v_lshrrev_b32 v13, 5, v1
              v_lshl_add_u32 v3, v13, 4, v3
              v_lshlrev_b32 v4, 1, v12
              s_lshl_b32 s{sT0}, s{sST}, 2
              s_add_u32 s{sT0}, s{sT0}, s{sWAVE}
              s_mul_i32 s{sT0+7}, s{sT0}, {16*896}
              s_add_u32 s{sT0+7}, s{sT0+7}, s{sT0+5}
              s_lshl_b32 s{sT0+8}, s{sT0}, 5
              s_lshr_b32 s{sT0+10}, s{sT0}, 1
              s_lshl_b32 s{sT0+9}, s{sT0+10}, 14
              s_and_b32 s{sT0+1}, s{sT0}, 1
              s_lshl_b32 s{sT0+1}, s{sT0+1}, 7
              s_add_u32 s{sT0+9}, s{sT0+9}, s{sT0+1}
              s_add_u32 s{sT0+9}, s{sT0+9}, {WS_O}""")
        sWOOFF, sWOM0, sXOFF, sB2OFF, sOOFF, sU = sT0+4, sT0+6, sT0+7, sT0+8, sT0+9, sT0+10
        extra = []
        for e in range(15):
            def op(e=e):
                k(f"s_add_u32 m0, s{sWOM0}, {e*1024}")
                k.vmem(f"buffer_load_dwordx4 v2, s[{sWO}:{sWO+3}], s{sWOOFF} offen lds", 'Wo')
                k(f"s_add_u32 s{sWOOFF}, s{sWOOFF}, {8*896}")
            extra.append(op)
        extra.append(lambda: k.vmem(f"buffer_load_dwordx4 v[24:27], v3, s[{sX}:{sX+3}], s{sXOFF} offen", 'x'))
        extra.append(lambda: k.vmem(f"buffer_load_dwordx4 v[28:31], v3, s[{sX}:{sX+3}], s{sXOFF} offen offset:64", 'x'))
        extra.append(lambda: k.vmem(f"buffer_load_ushort v5, v4, s[{sB2}:{sB2+3}], s{sB2OFF} offen", 'x'))
        k(f"""s_mul_i32 s{sALO}, s{sWAVE}, {14*KS}
              s_lshl_b32 s{sT0+1}, s{sDJ}, 12
              s_add_u32 s{sALO}, s{sALO}, s{sT0+1}
              s_add_u32 s{sALO}, s{sALO}, {WS_U}
              s_add_u32 s{sAHI}, s{sALO}, {14*KS}
              s_mul_i32 s{sT0+1}, s65, {KS}
              s_add_u32 s{sAOFF}, s{sALO}, s{sT0+1}
              v_min_u32 v12, 13, v1
              v_and_b32 v13, 1, v12
              v_mul_u32_u24 v13, 3, v13
              s_lshl_b32 s{sT0+1}, s{sDJ}, 2
              v_add_u32 v13, s{sT0+1}, v13
              v_mul_u32_u24 v13, 52, v13
              v_lshrrev_b32 v13, 8, v13
              v_lshrrev_b32 v12, 1, v12
              s_mul_i32 s{sT0+1}, s{sWAVE}, 7
              v_add_u32 v12, s{sT0+1}, v12
              v_mad_u32_u24 v12, v12, 6, v13
              v_mul_u32_u24 v12, {c.FS}, v12
              v_add_u32 v11, {WS_FU}, v12""")
        k(f"""v_and_b32 v12, 7, v1
              v_add_u32 v13, 2, v12
              v_and_b32 v13, 4, v13
              v_cmp_eq_u32 vcc, 0, v13
              s_lshr_b32 s{sT0+1}, s{sU}, 3
              s_mul_i32 s{sT0+2}, s{sU}, 205
              s_lshr_b32 s{sT0+2}, s{sT0+2}, 10
              v_mov_b32 v13, s{sT0+1}
              v_mov_b32 v14, s{sT0+2}
              v_cndmask_b32 v13, v13, v14, vcc
              v_lshl_add_u32 v12, v12, 4, v13
              v_mul_u32_u24 v12, {c.FS}, v12
              v_add_u32 v16, {WS_FO}, v12
              v_and_b32 v12, 1, v1
              v_mul_u32_u24 v12, {O_PAR}, v12
              v_lshrrev_b32 v13, 4, v1
              v_lshl_add_u32 v12, v13, 8, v12
              v_bfe_u32 v13, v1, 1, 3
              v_lshl_add_u32 v17, v13, 4, v12""")
        self.w_stream(14, self.NPRE, sW2, 20, sW2OFF, sW2LO, sW2HI, 4096, 'W2', 6, extra)
        self.stamp(7)
        self.poll(11, 18)
        self.stamp(8)
        NF = 56
        def uload(n):
            i, t = divmod(n, 4)
            b = STG + 4*(n % c.PD2)
            o = f" offset:{t*1024}" if t else ""
            k.vmem(f"buffer_load_dwordx4 v[{b}:{b+3}], v10, s[{sWS}:{sWS+3}], s{sAOFF} offen{o} sc1", ('U', n))
            if t == 3:
                k(f"s_add_u32 s{sAOFF}, s{sAOFF}, {KS}\ns_cmp_ge_u32 s{sAOFF}, s{sAHI}\ns_cselect_b32 s{sAOFF}, s{sALO}, s{sAOFF}")
        for n in range(c.PD2): uload(n)
        k(f"""v_permlane16_swap_b32 v24, v26
              v_permlane16_swap_b32 v25, v27
              v_permlane16_swap_b32 v28, v30
              v_permlane16_swap_b32 v29, v31
              v_lshlrev_b32 v5, 16, v5
              v_lshrrev_b32 v12, 2, v1
              v_lshlrev_b32 v13, 7, v12
              v_and_b32 v14, 3, v1
              v_lshl_add_u32 v13, v14, 3, v13
              v_add_u32 v13, {WO}, v13
              v_bfe_u32 v12, v1, 3, 2""")
        for a in range(4):
            k(f"v_xor_b32 v14, {a}, v12\nv_lshl_add_u32 v{20+a}, v14, 5, v13")
        for n in range(NF):
            i, t = divmod(n, 4)
            b = STG + 4*(n % c.PD2)
            k.vwait(('U', n))
            for a in range(4):
                d = ACC + 16*a + 4*t
                cin = "0" if i == 0 else f"v[{d}:{d+3}]"
                k(f"v_mfma_f32_16x16x32_bf16 v[{d}:{d+3}], v[{b}:{b+3}], a[{16*i+4*a}:{16*i+4*a+3}], {cin}")
            if n + c.PD2 < NF: uload(n + c.PD2)
        self.stamp(9)
        self.poll(16, 18)
        for hd in range(16):
            o = f" offset:{(hd&3)*1024}" if hd & 3 else ""
            k.vmem(f"buffer_load_dwordx4 v[{OF+4*hd}:{OF+4*hd+3}], v17, s[{sWS}:{sWS+3}], s{sOOFF} offen{o} sc1", ('O', hd))
            if hd & 3 == 3 and hd < 15: k(f"s_add_u32 s{sOOFF}, s{sOOFF}, 4096")
        k(f"v_add_u32 v12, s{sRING}, v10")
        for a in range(1, 4):
            for t in range(4):
                d = ACC + 16*a + 4*t
                k.ds(f"ds_write_b128 v12, v[{d}:{d+3}] offset:{(a-1)*4096 + t*1024}")
        for a in range(1, 4):
            k(f"""s_sub_u32 s{sT0}, s{sWAVE}, {a}
                  s_and_b32 s{sT0}, s{sT0}, 3
                  s_mul_i32 s{sT0}, s{sT0}, {c.NR*4096}
                  s_add_u32 s{sT0}, s{sT0}, {(a-1)*4096}
                  v_add_u32 v{12+a}, s{sT0}, v10""")
        for t in range(4):
            d = ACC + 4*t
            for h in (0, 2):
                k(f"v_pk_add_f32 v[{d+h}:{d+h+1}], v[{d+h}:{d+h+1}], v[4:5] op_sel:[0,1] op_sel_hi:[1,1]")
        k.lwait_all()
        k("s_barrier")
        for t in range(4):
            for a in range(3):
                b = STG + 12*t + 4*a
                k.ds(f"ds_read_b128 v[{b}:{b+3}], v{13+a} offset:{t*1024}", ('r', t))
        k(f"s_mov_b32 s{sT0}, {f2u(-math.log2(math.e)):#x}\ns_mov_b32 s{sT0+1}, s{sT0}")
        T = ACC + 16
        for t in range(4):
            d = ACC + 4*t; b = STG + 12*t; e = T + 4*t
            k.lwait(('r', t))
            for h in (0, 2):
                k(f"v_pk_add_f32 v[{b+h}:{b+h+1}], v[{b+h}:{b+h+1}], v[{b+4+h}:{b+5+h}]")
                k(f"v_pk_add_f32 v[{d+h}:{d+h+1}], v[{d+h}:{d+h+1}], v[{b+8+h}:{b+9+h}]")
            for h in (0, 2):
                k(f"v_pk_add_f32 v[{d+h}:{d+h+1}], v[{d+h}:{d+h+1}], v[{b+h}:{b+h+1}]")
            for h in (0, 2):
                k(f"v_pk_mul_f32 v[{e+h}:{e+h+1}], v[{d+h}:{d+h+1}], s[{sT0}:{sT0+1}]")
            for r in range(4): k(f"v_exp_f32 v{e+r}, v{e+r}")
            for h in (0, 2):
                k(f"v_pk_add_f32 v[{e+h}:{e+h+1}], v[{e+h}:{e+h+1}], 1.0 op_sel_hi:[1,0]")
            for r in range(4): k(f"v_rcp_f32 v{e+r}, v{e+r}")
            for h in (0, 2):
                k(f"v_pk_mul_f32 v[{d+h}:{d+h+1}], v[{d+h}:{d+h+1}], v[{e+h}:{e+h+1}]")
        XF = ACC + 32
        for i in range(8):
            k(f"v_lshlrev_b32 v{XF+2*i}, 16, v{24+i}\nv_and_b32 v{XF+2*i+1}, 0xffff0000, v{24+i}")
        def woread(hd):
            base = 16 * (hd % 3)
            for t in range(4):
                for hh in range(2):
                    b = base + 4*t + 2*hh
                    k.ds(f"ds_read_b64_tr_b16 a[{b}:{b+1}], v{20 + (t ^ (2*(hd & 1)))} offset:{(28*hd + 16*hh)*128}", ('wo', hd))
        woread(0)
        for hd in range(16):
            if hd + 1 < 16: woread(hd + 1)
            k.vwait(('O', hd))
            k.lwait(('wo', hd))
            base = 16 * (hd % 3)
            for t in range(4):
                d = SAC + 4*t
                cin = "0" if hd == 0 else f"v[{d}:{d+3}]"
                k(f"v_mfma_f32_16x16x32_bf16 v[{d}:{d+3}], a[{base+4*t}:{base+4*t+3}], v[{OF+4*hd}:{OF+4*hd+3}], {cin}")
        for t in range(4):
            d = ACC + 4*t; s_ = SAC + 4*t; x = XF + 4*t
            for h in (0, 2):
                k(f"v_pk_fma_f32 v[{d+h}:{d+h+1}], v[{d+h}:{d+h+1}], v[{s_+h}:{s_+h+1}], v[{x+h}:{x+h+1}]")
            k(f"v_cvt_pk_bf16_f32 v{24+2*t}, v{d}, v{d+1}\nv_cvt_pk_bf16_f32 v{25+2*t}, v{d+2}, v{d+3}")
            if t & 1:
                p = 24 + 4*(t >> 1)
                k(f"v_permlane16_swap_b32 v{p}, v{p+2}\nv_permlane16_swap_b32 v{p+1}, v{p+3}")
                o = " offset:64" if t == 3 else ""
                k.vmem(f"buffer_store_dwordx4 v[{p}:{p+3}], v3, s[{sOUT}:{sOUT+3}], s{sXOFF} offen{o}{c.OAUX}", 'out')
        k("s_branch L_fin")

    def attn(self, NT, duty):
        k, c = self.k, self.c
        k.lg = []
        WSLOT, NW = 24576, 4
        XB = NW * WSLOT
        XSLOT, NX = NT * 2048, 3
        nx = 2*NT - 1
        nxe = (nx + 3) // 4
        nxmin = nx // 4
        sWO0, sWO1, sXO, sWM, sXM, sU0 = sWOFF, sWLO, sWHI, sAOFF, sALO, sAHI
        vW, vX, vXR, vWR = 2, 3, 8, 10
        Q, K, V0 = 40, 40 + 8*NT, 40 + 16*NT
        V1 = V0 + 4*NT
        assert V1 + 4*NT <= 256
        k(f"s_mul_i32 s{sU0}, s{sBLK}, {NT-1}")
        k(f"""s_and_b32 s{sT0}, s{sWAVE}, 1
              s_lshl_b32 s{sT0}, s{sT0}, 3
              v_subrev_u32 v12, s{sT0}, v1
              v_mul_u32_u24 v13, 147, v12
              v_lshrrev_b32 v13, 11, v13
              v_mul_u32_u24 v14, 14, v13
              v_sub_u32 v14, v12, v14
              s_lshl_b32 s{sT0}, s{sWAVE}, 3
              v_add_u32 v13, s{sT0}, v13
              v_mul_u32_u24 v13, 2688, v13
              v_lshl_add_u32 v13, v14, 4, v13
              s_mul_i32 s{sT0}, s{sG}, 224
              v_add_u32 v13, s{sT0}, v13
              v_cmp_gt_u32 vcc, 56, v12
              v_bfrev_b32 v14, 1
              s_lshl_b32 s{sWM}, s{sWAVE}, 10
              v_cndmask_b32 v{vW}, v14, v13, vcc
              s_add_u32 s{sXM}, s{sWM}, {XB + 1024}""")
        k(f"""s_lshl_b32 s{sT0}, s{sBLK}, 1
              s_add_u32 s{sT0}, s{sT0}, s{sG}
              s_mul_i32 s{sT0+1}, s{sT0}, 37
              s_lshr_b32 s{sT0+1}, s{sT0+1}, 8
              s_mul_i32 s{sT0+1}, s{sT0+1}, 7
              s_sub_u32 s{sT0}, s{sT0}, s{sT0+1}
              s_lshl_b32 s{sXO}, s{sT0}, 7
              s_mul_i32 s{sWO0}, s{sT0}, {64*2688}
              s_add_u32 s{sWO1}, s{sWO0}, {4*2688}""")
        k(f"""s_lshl_b32 s{sT0}, s{sU0}, 4
              s_lshl_b32 s{sT0+1}, s{sWAVE}, 3
              s_add_u32 s{sT0}, s{sT0}, s{sT0+1}
              s_sub_u32 s{sT0}, s{sT0}, 8
              v_lshrrev_b32 v12, 3, v1
              v_add_u32 v13, s{sT0}, v12
              s_add_u32 s{sT0+1}, s{sWAVE}, 1
              s_and_b32 s{sT0+1}, s{sT0+1}, 1
              s_lshl_b32 s{sT0+1}, s{sT0+1}, 2
              v_lshrrev_b32 v12, 1, v12
              v_add_u32 v12, s{sT0+1}, v12
              v_and_b32 v14, 7, v1
              v_xor_b32 v12, v12, v14
              v_lshlrev_b32 v12, 4, v12
              s_mul_i32 s{sT0+1}, s{sPAR}, 896
              v_add_u32 v12, s{sT0+1}, v12
              s_movk_i32 s{sT0+2}, 1023
              s_movk_i32 s{sT0+3}, 1792""")
        for e in range(nxe):
            k(f"""v_add_u32 v14, {32*e}, v13
                  v_med3_i32 v14, v14, 0, s{sT0+2}
                  v_mad_u32_u24 v{vX+e}, v14, s{sT0+3}, v12""")
        def wdma(i):
            ops = []
            slot = i % NW
            for sec in range(3):
                for h in range(2):
                    def op(sec=sec, h=h):
                        k(f"s_add_u32 m0, s{sWM}, {slot*WSLOT + (2*sec+h)*4096 - sec*896}")
                        o = f" offset:{sec*896}" if sec else ""
                        k.vmem(f"buffer_load_dwordx4 v{vW}, s[{sWQKV}:{sWQKV+3}], s{sWO1 if h else sWO0} offen{o}{c.QAUX} lds", ('W', i))
                        if sec == 2 and h == 1:
                            k(f"s_add_u32 s{sWO0}, s{sWO0}, {32*2688}")
                            if i & 1: k(f"s_cmp_ge_u32 s{sWO0}, {448*2688}\ns_cselect_b32 s{sWO0}, 0, s{sWO0}")
                            k(f"s_add_u32 s{sWO1}, s{sWO0}, {4*2688}")
                    ops.append(op)
            return ops
        def xdma(ch):
            ops = []
            slot = ch % NX
            for e in reversed(range(nxe)):
                def op(e=e):
                    opt = e >= nxmin
                    if opt:
                        l = k.newlabel("L_xs")
                        k(f"s_cmp_ge_u32 s{sWAVE}, {nx - 4*nxmin}\ns_cbranch_scc1 {l}")
                    k(f"s_add_u32 m0, s{sXM}, {slot*XSLOT + e*4096}")
                    t = f"buffer_load_dwordx4 v{vX+e}, s[{sX}:{sX+3}], s{sXO} offen{c.XAUX} lds"
                    if opt:
                        k(t); k.label(l)
                    else:
                        k.vmem(t, ('X', ch))
                    if e == 0:
                        k(f"s_add_u32 s{sXO}, s{sXO}, 128\ns_cmp_ge_u32 s{sXO}, 896\ns_cselect_b32 s{sXO}, 0, s{sXO}")
                ops.append(op)
            return ops
        for op in xdma(0) + wdma(0) + wdma(1) + xdma(1) + wdma(2) + wdma(3) + xdma(2): op()
        k(f"""v_mov_b32 v12, 0x3f803f80
              v_lshlrev_b32 v13, 2, v0
              v_add_u32 v13, {XB}, v13""")
        for sl in range(NX):
            k.ds(f"ds_write_b32 v13, v12 offset:{sl*XSLOT}")
        k(f"""v_and_b32 v12, 15, v1
              v_lshrrev_b32 v13, 4, v1
              v_lshrrev_b32 v14, 1, v12
              v_xor_b32 v14, v14, v13
              v_lshlrev_b32 v14, 4, v14
              v_lshl_add_u32 v14, v12, 7, v14
              v_add_u32 v{vXR}, {XB}, v14
              v_xor_b32 v{vXR+1}, 64, v{vXR}
              v_lshlrev_b32 v14, 10, v13
              v_and_b32 v15, 1, v13
              v_lshl_add_u32 v14, v15, 7, v14
              v_bfe_u32 v15, v1, 2, 2
              v_mul_u32_u24 v15, 224, v15
              v_add_u32 v14, v14, v15
              v_and_b32 v15, 3, v1
              v_lshl_add_u32 v14, v15, 3, v14
              s_mul_i32 s{sT0}, s{sWAVE}, 56
              v_add_u32 v{vWR}, s{sT0}, v14
              v_add_u32 v{vWR+1}, {2*WSLOT}, v{vWR}""")
        FB = 4*NT + 24
        def fx(i, t): return (i & 1)*FB + 4*t
        def fw(i, sec, a): return (i & 1)*FB + 4*NT + 8*sec + 4*a
        def reads(i):
            ops = []
            ws = i % NW; xs = (i >> 1) % NX
            for sec in range(3):
                for a in range(2):
                    for h in range(2):
                        b = fw(i, sec, a) + 2*h
                        ops.append(f"ds_read_b64_tr_b16 a[{b}:{b+1}], v{vWR + (ws >> 1)} offset:{(ws & 1)*WSLOT + (2*sec+h)*4096 + a*32}")
            for t in range(NT):
                b = fx(i, t)
                ops.append(f"ds_read_b128 a[{b}:{b+3}], v{vXR + (i & 1)} offset:{xs*XSLOT + t*2048}")
            return ops
        def mfmas(i):
            ops = []
            for t in range(NT):
                x = f"a[{fx(i,t)}:{fx(i,t)+3}]"
                for sec in range(3):
                    for a in range(2):
                        w = f"a[{fw(i,sec,a)}:{fw(i,sec,a)+3}]"
                        d = (Q + 8*t + 4*a, K + 8*t + 4*a, (V1 if a else V0) + 4*t)[sec]
                        cin = "0" if i == 0 else f"v[{d}:{d+3}]"
                        A, B = (x, w) if sec == 2 else (w, x)
                        ops.append(f"v_mfma_f32_16x16x32_bf16 v[{d}:{d+3}], {A}, {B}, {cin}")
            return ops
        k.vwait(('W', 0))
        k.lwait_all()
        k("s_barrier")
        for r in reads(0): k.ds(r)
        self.stamp(3)
        xq = []
        for i in range(14):
            if i + 1 < 14:
                k.vwait(('W', i+1))
                if (i+1) % 2 == 0: k.vwait(('X', (i+1)//2))
            k.lwait_all()
            k("s_barrier")
            dm = []
            if i % 2 == 1 and (i-1)//2 + NX < 7: xq = xdma((i-1)//2 + NX)
            half = (len(xq) + 1)//2 if i % 2 == 1 else len(xq)
            dm += xq[:half]; xq = xq[half:]
            if i + NW < 14: dm += wdma(i + NW)
            rd = reads(i+1) if i + 1 < 14 else []
            mf = mfmas(i)
            for n, m in enumerate(mf):
                k(m)
                if rd: k.ds(rd.pop(0))
                elif dm and n % 2 == 0: dm.pop(0)()
            for r in rd: k.ds(r)
            for op in dm: op()
        self.stamp(4)
        k(f"""s_lshl_b32 s{sT0}, s{sU0}, 2
              s_sub_u32 s{sT0}, s{sT0}, 4
              v_min_u32 v12, {4*NT-1}, v1
              v_add_u32 v12, s{sT0}, v12
              s_movk_i32 s{sT0+1}, 255
              v_med3_i32 v12, v12, 0, s{sT0+1}
              v_mul_u32_u24 v13, {c.FS}, v12
              v_add_u32 v13, {WS_FH}, v13
              v_lshlrev_b32 v12, 4, v12
              s_lshl_b32 s{sT0}, s{sPAR}, 12
              s_add_u32 s{sT0}, s{sT0}, {WS_STATS}
              s_add_u32 s{sT0+1}, s{sT0}, 8192""")
        self.poll(13, 14)
        k.vmem(f"buffer_load_dwordx4 v[16:19], v12, s[{sWS}:{sWS+3}], s{sT0} offen sc1", 'st')
        k.vmem(f"buffer_load_dwordx4 v[20:23], v12, s[{sWS}:{sWS+3}], s{sT0+1} offen sc1", 'st')
        SB = self.LDS_LN
        CSK, CSV = 24, 32
        k(f"""s_lshl_b32 s{sT0}, s{sWAVE}, 11
              s_add_u32 s{sT0}, s{sT0}, {SB}
              v_lshl_add_u32 v2, v1, 4, s{sT0}
              v_and_b32 v12, 15, v1
              v_lshl_add_u32 v3, v12, 2, s{sT0}
              v_lshrrev_b32 v13, 4, v1
              v_lshl_add_u32 v4, v13, 4, s{sT0}""")
        for r in range(8):
            k(f"v_mov_b32_dpp v{CSK+r}, v{K+r} row_newbcast:0 row_mask:0xf bank_mask:0xf")
            k(f"v_mov_b32_dpp v{Q+r}, v{Q+r} row_newbcast:0 row_mask:0xf bank_mask:0xf")
        k(f"""v_mov_b32 v{CSV}, v{V0}
              v_mov_b32 v{CSV+2}, v{V0}
              v_mov_b32 v{CSV+1}, v{V1}
              v_mov_b32 v{CSV+3}, v{V1}
              v_permlane32_swap_b32 v{CSV}, v{CSV+2}
              v_permlane32_swap_b32 v{CSV+1}, v{CSV+3}""")
        qs = (28 ** -0.5) * math.log2(math.e)
        k(f"s_mov_b32 s{sT0+2}, {f2u(qs):#x}\ns_mov_b32 s{sT0+3}, s{sT0+2}")
        k(f"s_mov_b32 s{sT0+4}, -1\ns_mov_b32 s{sT0+5}, 0x0000ffff")
        sPADM = sT0 + 4
        k.vwait('st')
        k.ds("ds_write_b128 v2, v[16:19]")
        k.ds("ds_write_b128 v2, v[20:23] offset:1024")
        def sregs(t): return ((6, 8, 12), (36, 16, 20))[t & 1]
        def sread(t):
            p, R, N = sregs(t)
            k.ds(f"ds_read2st64_b32 v[{p}:{p+1}], v3 offset0:0 offset1:4", ('s', t)) if t == 0 else None
            if t > 0:
                k.ds(f"ds_read_b32 v{p}, v3 offset:{64*t}", ('s', t))
                k.ds(f"ds_read_b32 v{p+1}, v3 offset:{64*t + 1024}", ('s', t))
            k.ds(f"ds_read_b128 v[{R}:{R+3}], v4 offset:{64*t}", ('s', t))
            k.ds(f"ds_read_b128 v[{N}:{N+3}], v4 offset:{64*t + 1024}", ('s', t))
        sread(0)
        for t in range(NT):
            if t + 1 < NT: sread(t + 1)
            k.lwait(('s', t))
            p, R, N = sregs(t)
            for h in range(0, 8, 2):
                d = K + 8*t + h
                k(f"v_pk_mul_f32 v[{d}:{d+1}], v[{d}:{d+1}], v[{p}:{p+1}] op_sel_hi:[1,0]")
            for h in range(0, 8, 2):
                d = K + 8*t + h
                k(f"v_pk_fma_f32 v[{d}:{d+1}], v[{CSK+h}:{CSK+h+1}], v[{p}:{p+1}], v[{d}:{d+1}] op_sel:[0,1,0] op_sel_hi:[1,1,1]")
            if t > 0: k(f"v_pk_mul_f32 v[{p}:{p+1}], v[{p}:{p+1}], s[{sT0+2}:{sT0+3}]")
            for h in range(4):
                k(f"v_cvt_pk_bf16_f32 v{K+8*t+h}, v{K+8*t+2*h}, v{K+8*t+2*h+1}")
            for h in (2, 3):
                k(f"v_cndmask_b32 v{K+8*t+h}, 0, v{K+8*t+h}, s[{sPADM}:{sPADM+1}]")
            if t > 0:
                for h in range(0, 8, 2):
                    d = Q + 8*t + h
                    k(f"v_pk_mul_f32 v[{d}:{d+1}], v[{d}:{d+1}], v[{p}:{p+1}] op_sel_hi:[1,0]")
                for h in range(0, 8, 2):
                    d = Q + 8*t + h
                    k(f"v_pk_fma_f32 v[{d}:{d+1}], v[{Q+h}:{Q+h+1}], v[{p}:{p+1}], v[{d}:{d+1}] op_sel:[0,1,0] op_sel_hi:[1,1,1]")
                for h in range(4):
                    k(f"v_cvt_pk_bf16_f32 v{Q+8*t+h}, v{Q+8*t+2*h}, v{Q+8*t+2*h+1}")
                for h in (2, 3):
                    k(f"v_cndmask_b32 v{Q+8*t+h}, 0, v{Q+8*t+h}, s[{sPADM}:{sPADM+1}]")
            for a, VB in enumerate((V0, V1)):
                for h in (0, 2):
                    d = VB + 4*t + h
                    k(f"v_pk_mul_f32 v[{d}:{d+1}], v[{d}:{d+1}], v[{R+h}:{R+h+1}]")
            for a, VB in enumerate((V0, V1)):
                for h in (0, 2):
                    d = VB + 4*t + h
                    sel = "op_sel:[0,1,0] op_sel_hi:[1,1,1]" if a else "op_sel_hi:[1,0,1]"
                    k(f"v_pk_fma_f32 v[{d}:{d+1}], v[{N+h}:{N+h+1}], v[{CSV}:{CSV+1}], v[{d}:{d+1}] {sel}")
            for a, VB in enumerate((V0, V1)):
                for h in range(2):
                    k(f"v_cvt_pk_bf16_f32 v{VB+2*t+h}, v{VB+4*t+2*h}, v{VB+4*t+2*h+1}")
        MC, AP = 8, 12
        k(f"""v_lshrrev_b32 v2, 4, v1
              v_lshlrev_b32 v2, 2, v2
              v_and_b32 v3, 15, v1
              v_sub_u32 v2, v2, v3
              v_mov_b32 v4, {f2u(-1e30):#x}
              v_mov_b32 v5, 0xffff
              v_mov_b32 v6, 0xffff0000""")
        SEL = [4, 6, 72, 74]
        for r in range(4):
            k(f"""v_add_u32 v3, {r+7}, v2
                  v_cmp_gt_u32 vcc, 8, v3
                  v_cmp_lt_i32 s[{SEL[r]}:{SEL[r]+1}], 15, v3
                  v_cndmask_b32 v{MC+r}, v4, 0, vcc""")
        for h in range(2):
            k(f"""v_cndmask_b32 v{AP+h}, 0, v5, s[{SEL[2*h]}:{SEL[2*h]+1}]
                  v_cndmask_b32 v3, 0, v6, s[{SEL[2*h+1]}:{SEL[2*h+1]+1}]
                  v_or_b32 v{AP+h}, v{AP+h}, v3""")
        k(f"""s_cmp_eq_u32 s{sBLK}, 0
              s_cselect_b32 s{sT0}, {f2u(-1e30):#x}, 0
              v_mov_b32 v16, s{sT0}
              v_mov_b32 v17, s{sT0}
              v_mov_b32 v18, s{sT0}
              v_mov_b32 v19, s{sT0}""")
        TS = range(1, NT)
        SP = lambda t: Q + 8*t + 4
        SC = lambda t: K + 8*t + 4
        MX = lambda t: V0 + 2*NT + 2*(t-1)
        for t in TS:
            cp = "v[16:19]" if t == 1 else "0"
            k(f"v_mfma_f32_16x16x32_bf16 v[{SP(t)}:{SP(t)+3}], v[{K+8*(t-1)}:{K+8*(t-1)+3}], v[{Q+8*t}:{Q+8*t+3}], {cp}")
            k(f"v_mfma_f32_16x16x32_bf16 v[{SC(t)}:{SC(t)+3}], v[{K+8*t}:{K+8*t+3}], v[{Q+8*t}:{Q+8*t+3}], v[{MC}:{MC+3}]")
        k(f"""v_lshlrev_b32 v14, 4, v1
              s_mul_i32 s{sT0}, s{sPAR}, {O_PAR}
              s_lshl_b32 s{sT0+1}, s{sU0}, 14
              s_add_u32 s{sT0}, s{sT0}, s{sT0+1}
              s_lshl_b32 s{sT0+1}, s{sG}, 2
              s_add_u32 s{sT0+1}, s{sT0+1}, s{sWAVE}
              s_lshl_b32 s{sT0+1}, s{sT0+1}, 10
              s_add_u32 s{sT0}, s{sT0}, s{sT0+1}
              s_add_u32 s{sT0}, s{sT0}, {WS_O}""")
        for t in TS:
            for r in range(4):
                k(f"v_cndmask_b32 v{SC(t)+r}, v{SC(t)+r}, v{SP(t)+r}, s[{SEL[r]}:{SEL[r]+1}]")
            k(f"v_max3_f32 v{MX(t)}, v{SC(t)}, v{SC(t)+1}, v{SC(t)+2}")
            k(f"v_max_f32 v{MX(t)}, v{MX(t)}, v{SC(t)+3}")
        def xreduce(op):
            for sw in ("v_permlane16_swap_b32", "v_permlane32_swap_b32"):
                for t in TS: k(f"v_mov_b32 v{MX(t)+1}, v{MX(t)}")
                for t in TS: k(f"{sw} v{MX(t)}, v{MX(t)+1}")
                for t in TS: k(f"{op} v{MX(t)}, v{MX(t)}, v{MX(t)+1}")
        xreduce("v_max_f32")
        for t in TS:
            for h in (0, 2):
                k(f"v_pk_add_f32 v[{SC(t)+h}:{SC(t)+h+1}], v[{SC(t)+h}:{SC(t)+h+1}], v[{MX(t)}:{MX(t)+1}] op_sel_hi:[1,0] neg_lo:[0,1] neg_hi:[0,1]")
        for t in TS:
            for r in range(4): k(f"v_exp_f32 v{SC(t)+r}, v{SC(t)+r}")
        for t in TS:
            k(f"v_pk_add_f32 v[{MX(t)}:{MX(t)+1}], v[{SC(t)}:{SC(t)+1}], v[{SC(t)+2}:{SC(t)+3}]")
        for t in TS:
            k(f"v_add_f32 v{MX(t)}, v{MX(t)}, v{MX(t)+1}")
        xreduce("v_add_f32")
        for t in TS: k(f"v_rcp_f32 v{MX(t)}, v{MX(t)}")
        for t in TS:
            P = Q + 8*t
            for h in (0, 2):
                k(f"v_pk_mul_f32 v[{SC(t)+h}:{SC(t)+h+1}], v[{SC(t)+h}:{SC(t)+h+1}], v[{MX(t)}:{MX(t)+1}] op_sel_hi:[1,0]")
            for h in range(2):
                k(f"v_cvt_pk_bf16_f32 v{P+2+h}, v{SC(t)+2*h}, v{SC(t)+2*h+1}")
            for h in range(2):
                k(f"v_and_b32 v{P+h}, v{AP+h}, v{P+2+h}")
            for h in range(2):
                k(f"v_xor_b32 v{P+2+h}, v{P+h}, v{P+2+h}")
        for t in TS:
            P = Q + 8*t
            k(f"v_mfma_f32_16x16x32_bf16 v[{SP(t)}:{SP(t)+3}], v[{V0+2*(t-1)}:{V0+2*(t-1)+3}], v[{P}:{P+3}], 0")
            k(f"v_mfma_f32_16x16x32_bf16 v[{SC(t)}:{SC(t)+3}], v[{V1+2*(t-1)}:{V1+2*(t-1)+3}], v[{P}:{P+3}], 0")
        for t in TS:
            P = Q + 8*t
            k(f"""v_cvt_pk_bf16_f32 v{P}, v{SP(t)}, v{SP(t)+1}
                  v_cvt_pk_bf16_f32 v{P+1}, v{SP(t)+2}, v{SP(t)+3}
                  v_cvt_pk_bf16_f32 v{P+2}, v{SC(t)}, v{SC(t)+1}
                  v_cvt_pk_bf16_f32 v{P+3}, v{SC(t)+2}, v{SC(t)+3}
                  v_cndmask_b32 v{P+2}, 0, v{P+2}, s[{sPADM}:{sPADM+1}]
                  v_cndmask_b32 v{P+3}, 0, v{P+3}, s[{sPADM}:{sPADM+1}]""")
            k.vmem(f"buffer_store_dwordx4 v[{P}:{P+3}], v14, s[{sWS}:{sWS+3}], s{sT0} offen sc1", 'ost')
            k(f"s_add_u32 s{sT0}, s{sT0}, 16384")
        self.stamp(5)
        if duty:
            self.w_tr_setup(6)
            self.p2_setup()
            for op in self.w2_pre_ops(): op()
        k.vwait('ost')
        k("s_barrier")
        skip = k.newlabel("L_oflag")
        k(f"s_cmp_lg_u32 s{sWAVE}, 0\ns_cbranch_scc1 {skip}")
        k(f"""s_lshl_b32 s{sT0}, s{sG}, 1
              s_add_u32 s{sT0}, s{sT0}, s{sPAR}
              s_lshl_b32 s{sT0}, s{sT0}, 4
              s_add_u32 s{sT0}, s{sT0}, s{sBLK}
              s_mul_i32 s{sT0}, s{sT0}, {c.FS}
              s_add_u32 s{sT0}, s{sT0}, {WS_FO}""")
        self.flag_store(sT0)
        k.label(skip)
        self.stamp(6)
        k("s_branch L_p2" if duty else "s_branch L_fin")

    def build(self):
        k, c = self.k, self.c
        self.prologue()
        self.ln()
        base_vm = list(k.vm)
        k(f"""s_and_b32 s{sT0}, s{sXCD}, 1
              s_mul_i32 s{sT0+1}, s{sT0}, 6
              s_sub_u32 s{sT0+1}, 24, s{sT0+1}
              s_cmp_ge_u32 s{sIDX}, s{sT0+1}
              s_cbranch_scc1 L_attn""")
        self.m1()
        k.label("L_attn")
        k(f"""s_bfe_u32 s{sPAR}, s{sXCD}, 0x10001
              s_lshr_b32 s{sT0+2}, s{sXCD}, 2
              s_cmp_ge_u32 s{sIDX}, 28
              s_cbranch_scc1 L_heavy
              s_mul_i32 s{sG}, s{sT0+2}, 3
              s_sub_u32 s{sBLK}, s{sIDX}, s{sT0+1}
              s_lshl_b32 s{sT0}, s{sT0}, 2
              s_add_u32 s{sBLK}, s{sBLK}, s{sT0}
              s_cmp_lt_u32 s{sBLK}, 13
              s_cbranch_scc1 L_light""")
        k.vm = list(base_vm)
        self.w_tr_setup(6)
        self.p2_setup()
        for op in self.w2_pre_ops(): op()
        k("s_branch L_p2")
        k.label("L_light")
        k.vm = list(base_vm)
        self.attn(6, True)
        k.label("L_heavy")
        k(f"""s_add_u32 s{sG}, s{sT0+2}, 1
              s_lshl_b32 s{sT0}, s{sT0}, 2
              s_sub_u32 s{sBLK}, s{sIDX}, 28
              s_add_u32 s{sBLK}, s{sBLK}, s{sT0}""")
        k.vm = list(base_vm)
        self.attn(9, False)
        self.p2()
        k.label("L_fin")
        if c.STAMPS:
            k("s_waitcnt vmcnt(0)")
            self.stamp(10)
            k("s_memtime s[4:5]\ns_waitcnt lgkmcnt(0)\ns_sub_u32 s77, s4, s77")
            for i in range(22): k(f"v_mov_b32 v{8+i}, s{sSTAMP+i}")
            k(f"""s_lshl_b32 s{sT0}, s{sWG}, 2
                  s_add_u32 s{sT0}, s{sT0}, s{sWAVE}
                  s_lshl_b32 s{sT0}, s{sT0}, 7
                  s_add_u32 s{sT0}, s{sT0}, {WS_TS}
                  v_cmp_eq_u32 vcc, 0, v1
                  v_bfrev_b32 v2, 1
                  v_mov_b32 v30, s77
                  v_mov_b32 v31, 0
                  v_cndmask_b32 v2, v2, 0, vcc""")
            for i in range(6):
                k(f"buffer_store_dwordx4 v[{8+4*i}:{11+4*i}], v2, s[{sWS}:{sWS+3}], s{sT0} offen offset:{16*i}")
        if c.DIAG >= 0:
            k(f"""s_cmp_lg_u32 s{sWG}, {c.DIAGWG}
                  s_cbranch_scc1 L_end
                  s_sub_u32 s4, s{sSTAMP+2*c.DIAG}, s{sSTAMP}
                  s_mul_i32 s4, s4, 10
                  s_min_u32 s4, s4, 60000
                  s_add_u32 s4, s4, 6000""")
            k.label("L_diag")
            k(f"""s_memrealtime s[6:7]
                  s_waitcnt lgkmcnt(0)
                  s_sub_u32 s5, s6, s{sSTAMP}
                  s_cmp_lt_u32 s5, s4
                  s_cbranch_scc1 L_diag""")
        k.label("L_end")
        k("s_endpgm")
        lines, nins = hazard_fix(k.lines)
        hdr = open(os.path.join(os.path.dirname(os.path.abspath(__file__)), "..", "cdna_kernels", NAME + ".s.ref")).read().split("; Override launch")[0]
        out = hdr
        out += f"; @launch grid=(256,1,1) block=(256,1,1) lds={self.LDS_SIZE}\n"
        out += f'.amdgcn_target "amdgcn-amd-amdhsa--gfx950"\n.text\n.globl {NAME}_kernel\n.p2align 8\n.type {NAME}_kernel,@function\n{NAME}_kernel:\n'
        body = "\n".join(l if l.endswith(":") else "    " + l for l in lines)
        body = body.replace("CODE_BYTES", "L_end-L_pc")
        out += body + "\n"
        out += f""".section .rodata,"a"
.p2align 6
.amdhsa_kernel {NAME}_kernel
  .amdhsa_next_free_vgpr 512
  .amdhsa_next_free_sgpr 102
  .amdhsa_accum_offset 256
  .amdhsa_group_segment_fixed_size 0
  .amdhsa_kernarg_size 88
  .amdhsa_user_sgpr_count 2
  .amdhsa_user_sgpr_kernarg_segment_ptr 1
  .amdhsa_system_sgpr_workgroup_id_x 1
.end_amdhsa_kernel
"""
        return out, nins, len(lines)

if __name__ == "__main__":
    c = Cfg()
    outp = sys.argv[1]
    for a in sys.argv[2:]:
        kk, v = a.split("=", 1)
        old = getattr(c, kk)
        if isinstance(old, bool): v = v not in ("0", "False")
        elif isinstance(old, int): v = int(v, 0)
        else: v = (" " + v.replace("+", " ")) if v else ""
        setattr(c, kk, v)
    txt, nins, nl = Gen(c).build()
    open(outp, "w").write(txt)
    print(f"wrote {outp}: {nl} lines, {nins} hazard pads")
```

```python
import sys, struct, math, os
sys.path.insert(0, os.path.dirname(os.path.abspath(__file__)))
from kb import *

NAME = "recurrent_scan__sliding_local_dilated__mixer_token_mlp__prompt"
S, D, F = 2048, 448, 1792

class Cfg:
    FS = 16
    NR = 5
    LAG = 3
    PD1 = 12
    PD2 = 12
    LNW = 1
    HLAG = 8
    PRE0 = 8
    HPOS = 8
    UPOS = 8
    OPOS = 10
    S1W = 0x808080
    S1H = 0
    S2W = 0x0707070
    S2U = 0
    SAB = 3
    SAG = 0
    TW0 = 7
    TICK = 76
    WAUX = ""
    QAUX = ""
    XAUX = ""
    OAUX = ""
    LNA = 1
    AQ = 11
    STAMPS = False
    CYC = False
    SPIN = 200000
    CODEPF = True
    DIAG = -1
    DIAGWG = 0
    SKIPA = False
    SKIPM = False
    NOP2 = False
    NOMFMA = False
    NOADV = False
    NOLD = False
    NOX = False

WS_EPOCH = 0
WS_FH = 0x1000
WS_FU = 0x9000
WS_FO = 0xF000
WS_STATS = 0x14000
WS_TS = 0x18000
WS_HT = 0x40000
WS_U = 0x240000
WS_O = 0x440000
O_PAR = 132 * 8192
WS_END = 0x680000
KS = 28 * 1024
OOB = 0x80000000

def f2u(x): return struct.unpack('<I', struct.pack('<f', x))[0]

sWG, sWAVE = 2, 3
sX, sWQKV, sWO, sW1, sW2, sB1, sB2, sOUT, sWS = 8, 12, 16, 20, 24, 28, 32, 36, 40
sTAG = 44
sXCD, sIDX = 46, 47
sST, sDJ = 48, 49
sFT, sJ = 50, 51
sRING = 52
sWOFF, sWLO, sWHI = 53, 54, 55
sAOFF, sALO, sAHI = 56, 57, 58
sW2OFF, sW2LO, sW2HI = 59, 60, 61
sG, sPAR, sBLK = 62, 63, 64
sSPIN = 65
sUOFF, sULO, sUHI, sWOOFF, sWOM0, sXOFF, sB2OFF, sOOFF = 66, 67, 68, 69, 70, 71, 72, 73
sT0 = 74
sSTAMP = 80

vTR, vW2 = 248, 252
vWOR = 244
vXD = 236
vWOD, vXO, vB2, vUF, vOFL, vOO, vL16 = 224, 225, 227, 228, 229, 230, 231
vPOLL = 232
vFL = 233

LN_PITCH = 960

def cost(line):
    mn = line.split()[0]
    if mn.startswith('v_mfma'): return 16
    if mn in TRANS or mn.startswith('v_permlane'): return 8
    if mn.startswith('ds_write_b128'): return 50
    if mn.startswith('ds_read_b128'): return 16
    if mn.startswith('s_'): return 4
    return 5

class Gen:
    def __init__(self, c):
        self.c = c
        self.k = KB()
        self.LDS_RED = 4 * c.NR * 4096
        self.LDS_LN = 153600
        self.LDS_SIZE = 163840
        assert self.LDS_RED + 61440 <= self.LDS_LN
        self.bg_reset()

    def stamp(self, i):
        if self.c.STAMPS:
            self.k(f"{'s_memtime' if self.c.CYC else 's_memrealtime'} s[{sSTAMP+2*i}:{sSTAMP+2*i+1}]")

    def bg_reset(self):
        self.vq = []
        self.rq = []
        self.nv = 0
        self.nq = 0
        self.budget = 0
        self.reads_done = set()
    def q(self, op):
        self.vq.append(op); self.nq += 1
    def tick(self, n=1, reads=2):
        for _ in range(n):
            if self.vq:
                self.vq.pop(0)(); self.nv += 1
            for _ in range(reads):
                if self.rq and (self.rq[0][0] <= self.nv or not self.vq):
                    self.rq.pop(0)[1]()
    def tick_until(self, count):
        while self.nv < count and self.vq: self.tick()
    def drain_reads(self):
        while self.rq: self.rq.pop(0)[1]()
    def fg(self, text, ds=None, isds=False):
        for l in text.strip('\n').split('\n'):
            l = l.strip()
            if not l: continue
            if isds: self.k.ds(l, ds)
            else: self.k(l)
            self.budget += cost(l)
            if self.budget >= self.c.TICK:
                self.budget -= self.c.TICK
                self.tick()

    def q_wstream(self, ns, srd, vq, soff, slo, shi, stride, tag, inserts=None):
        k, c = self.k, self.c
        inserts = inserts or {}
        for n in range(ns):
            slot = n % c.NR
            for qq in range(4):
                if 4*n + qq in inserts: self.q(inserts[4*n + qq])
                def op(n=n, qq=qq, slot=slot):
                    if qq == 0:
                        if n >= c.NR:
                            assert (tag, n - c.NR) in self.reads_done
                            k.lwait((tag, n - c.NR))
                        k(f"s_add_u32 m0, s{sRING}, {slot*4096}")
                        if n: k(f"s_add_u32 s{soff}, s{soff}, {32*stride}\ns_cmp_ge_u32 s{soff}, s{shi}\ns_cselect_b32 s{soff}, s{slo}, s{soff}")
                    off = f" offset:{qq*1024}" if qq else ""
                    k.vmem(f"buffer_load_dwordx4 v{vq+qq}, s[{srd}:{srd+3}], s{soff} offen{off}{c.WAUX} lds", (tag, n))
                self.q(op)
            for a in range(4):
                for h in range(2):
                    def rd(n=n, a=a, h=h, slot=slot):
                        k.vwait((tag, n))
                        b = 16*n + 4*a + 2*h
                        k.ds(f"ds_read_b64_tr_b16 a[{b}:{b+1}], v{vTR+a} offset:{slot*4096 + h*2048}", (tag, n))
                        if a == 3 and h == 1: self.reads_done.add((tag, n))
                    self.rq.append((self.nq + 4*(c.LAG - 1) + 1, rd))

    def prologue(self):
        k, c = self.k, self.c
        self.stamp(0)
        for reg, off in ((sX, 0), (sW1, 32), (sWQKV, 8), (sWS, 80)):
            k(f"s_load_dwordx2 s[{reg}:{reg+1}], s[0:1], {off}")
        k(f"""s_cmp_ge_u32 s{sWG}, 256
              s_cbranch_scc1 L_end
              s_lshr_b32 s{sIDX}, s{sWG}, 3
              v_lshrrev_b32 v2, 6, v0""")
        if c.CODEPF:
            k(f"s_getpc_b64 s[{sT0}:{sT0+1}]")
            k.label("L_pc")
            k(f"""v_lshrrev_b32 v7, 4, v0
                  v_lshl_add_u32 v7, v7, 5, s{sIDX}
                  v_lshlrev_b32 v7, 7, v7
                  v_min_u32 v7, CODE_BYTES, v7""")
            k.vmem(f"global_load_dword v39, v7, s[{sT0}:{sT0+1}]", 'cpf')
        k(f"""v_readfirstlane_b32 s{sWAVE}, v2
              s_and_b32 s{sXCD}, s{sWG}, 7
              v_and_b32 v1, 63, v0""")

    def start_x(self):
        k, c = self.k, self.c
        k(f"""v_lshrrev_b32 v12, 5, v0
              s_lshl_b32 s{sT0+4}, s{sWG}, 3
              v_and_b32 v13, 31, v0
              v_add_u32 v12, s{sT0+4}, v12
              v_cmp_gt_u32 s[{sT0+4}:{sT0+5}], 28, v13
              v_mul_u32_u24 v12, 896, v12
              v_bfrev_b32 v14, 1
              v_lshl_add_u32 v12, v13, 4, v12
              s_mov_b32 s{sX+2}, {S*D*2}
              s_mov_b32 s{sX+3}, 0x20000
              v_cndmask_b32 v12, v14, v12, s[{sT0+4}:{sT0+5}]
              s_mov_b32 s{sW1+2}, {S*F*2}
              s_mov_b32 s{sW1+3}, 0x20000
              s_mov_b32 s{sWQKV+2}, {D*3*D*2}
              s_mov_b32 s{sWQKV+3}, 0x20000
              s_waitcnt lgkmcnt(0)""")
        k.vmem(f"buffer_load_dwordx4 v[40:43], v12, s[{sX}:{sX+3}], 0 offen{c.XAUX}", 'lnx')
        k.vmem(f"buffer_load_dwordx4 v[44:47], v12, s[{sX}:{sX+3}], 0 offen offset:448{c.XAUX}", 'lnx')

    def start_rest(self):
        k, c = self.k, self.c
        k(f"s_load_dword s{sTAG}, s[{sWS}:{sWS+1}], {WS_EPOCH}")
        for reg, off in ((sWO, 16), (sB1, 40), (sW2, 48), (sB2, 56), (sOUT, 64)):
            k(f"s_load_dwordx2 s[{reg}:{reg+1}], s[0:1], {off}")
        for reg, n in ((sWS, WS_END), (sWO, D*D*2), (sB1, F*2), (sW2, F*S*2), (sB2, S*2), (sOUT, S*D*2)):
            k(f"s_mov_b32 s{reg+2}, {n}\ns_mov_b32 s{reg+3}, 0x20000")
        if c.STAMPS:
            for i in range(1, 11): k(f"s_mov_b64 s[{sSTAMP+2*i}:{sSTAMP+2*i+1}], 0")

    def ln(self, weave=lambda: None):
        k, c = self.k, self.c
        k(f"""v_lshrrev_b32 v12, 5, v0
              v_mul_u32_u24 v34, {LN_PITCH}, v12
              v_and_b32 v13, 31, v0
              v_lshl_add_u32 v34, v13, 4, v34
              v_add_u32 v34, {self.LDS_LN}, v34
              v_lshrrev_b32 v35, 5, v1
              v_lshlrev_b32 v35, 4, v35
              s_lshl_b32 s{sT0}, s{sWAVE}, 2
              s_add_u32 s{sT0}, s{sT0}, {self.LDS_LN + 7680}
              v_add_u32 v35, s{sT0}, v35
              v_bfe_u32 v12, v1, 2, 2
              v_mul_u32_u24 v12, {LN_PITCH}, v12
              v_lshrrev_b32 v13, 4, v1
              v_lshl_add_u32 v12, v13, 5, v12
              v_and_b32 v14, 3, v1
              v_lshl_add_u32 v12, v14, 3, v12
              s_lshl_b32 s{sT0}, s{sWAVE}, 7
              s_add_u32 s{sT0}, s{sT0}, {self.LDS_LN}
              v_add_u32 v36, s{sT0}, v12
              v_and_b32 v15, 15, v1
              v_lshlrev_b32 v15, 4, v15
              v_lshl_add_u32 v37, v13, 10, v15
              s_lshr_b32 s{sT0}, s{sWG}, 2
              s_mul_i32 s{sT0}, s{sT0}, {KS}
              s_and_b32 s{sT0+1}, s{sWG}, 3
              s_lshl_b32 s{sT0+1}, s{sT0+1}, 8
              s_add_u32 s{sT0}, s{sT0}, s{sT0+1}
              s_lshl_b32 s{sT0+1}, s{sWAVE}, 12
              s_add_u32 s{sT0}, s{sT0}, s{sT0+1}
              s_add_u32 s{sT0}, s{sT0}, {WS_HT}
              s_add_u32 s{sT0+1}, s{sT0}, 16384
              s_mov_b32 s{sT0+2}, 0x3f803f80""")
        k.vwait('lnx')
        self.stamp(1)
        X = 40
        k(f"v_dot2_f32_bf16 v12, v{X}, s{sT0+2}, 0\nv_dot2_f32_bf16 v13, v{X}, v{X}, 0")
        for i in range(1, 8):
            k(f"v_dot2_f32_bf16 v12, v{X+i}, s{sT0+2}, v12\nv_dot2_f32_bf16 v13, v{X+i}, v{X+i}, v13")
        un = []
        for i in range(8):
            un.append(f"v_lshlrev_b32 v{48+2*i}, 16, v{X+i}")
            un.append(f"v_and_b32 v{49+2*i}, 0xffff0000, v{X+i}")
        def fill(n):
            for _ in range(n):
                if un: k(un.pop(0))
        weave()
        fill(3)
        for m in ("quad_perm:[1,0,3,2]", "quad_perm:[2,3,0,1]", "row_half_mirror", "row_mirror"):
            k(f"v_add_f32_dpp v12, v12, v12 {m} row_mask:0xf bank_mask:0xf")
            k(f"v_add_f32_dpp v13, v13, v13 {m} row_mask:0xf bank_mask:0xf")
            fill(1)
        weave()
        k("v_mov_b32 v14, v12\nv_mov_b32 v15, v13")
        fill(2)
        k("v_permlane16_swap_b32 v12, v14\nv_permlane16_swap_b32 v13, v15")
        fill(1)
        k(f"""v_add_f32 v12, v12, v14
              v_add_f32 v13, v13, v15
              v_mul_f32 v12, {f2u(1.0/D):#x}, v12
              v_mul_f32 v13, {f2u(1.0/D):#x}, v13
              v_fma_f32 v13, -v12, v12, v13
              v_max_f32 v13, 0, v13
              v_add_f32 v14, {f2u(1e-5):#x}, v13
              v_rsq_f32 v14, v14""")
        fill(2)
        k(f"""v_mul_f32 v15, v14, v14
              v_mov_b32 v16, {f2u(1e-5):#x}
              v_fmac_f32 v16, v13, v15
              v_rsq_f32 v16, v16
              v_sub_f32 v15, 0, v12""")
        fill(16)
        k("v_mul_f32 v18, v14, v16\nv_mul_f32 v19, v15, v18")
        k.ds("ds_write2_b32 v35, v14, v15 offset1:8")
        weave()
        for hf in range(2):
            for i in range(4*hf, 4*hf+4):
                k(f"v_pk_fma_f32 v[{48+2*i}:{49+2*i}], v[{48+2*i}:{49+2*i}], v[18:19], v[18:19] op_sel:[0,0,1] op_sel_hi:[1,0,1]")
            for i in range(4*hf, 4*hf+4):
                k(f"v_cvt_pk_bf16_f32 v{X+i}, v{48+2*i}, v{49+2*i}")
            k.ds(f"ds_write_b128 v34, v[{X+4*hf}:{X+4*hf+3}] offset:{448*hf}")
        weave()
        k.lwait_all()
        k("s_barrier")
        l3, lj = k.newlabel("L_ln3"), k.newlabel("L_lnj")
        k(f"""ds_read_b64_tr_b16 v[48:49], v36
              ds_read_b64_tr_b16 v[50:51], v36 offset:{4*LN_PITCH}
              s_cmp_eq_u32 s{sWAVE}, 3
              s_cbranch_scc1 {l3}
              ds_read_b64_tr_b16 v[52:53], v36 offset:512
              ds_read_b64_tr_b16 v[54:55], v36 offset:{4*LN_PITCH + 512}
              v_mov_b32 v16, v37
              s_branch {lj}""")
        k.label(l3)
        k(f"""v_and_b32 v14, 3, v1
              v_lshlrev_b32 v14, 4, v14
              v_add_u32 v14, {self.LDS_LN + 7680}, v14
              ds_read_b128 v[52:55], v14
              v_lshlrev_b32 v16, 12, v1
              v_cmp_gt_u32 vcc, 4, v1
              v_bfrev_b32 v17, 1
              s_lshl_b32 s{sT0+1}, s{sWG}, 4
              s_add_u32 s{sT0+1}, s{sT0+1}, {WS_STATS}
              v_cndmask_b32 v16, v17, v16, vcc""")
        k.label(lj)
        k(f"""s_mul_i32 s{sTAG+1}, s{sTAG}, 0x2c9277b5
              s_mul_i32 s{sTAG}, s{sTAG}, 0x9e3779b1
              s_add_u32 s{sTAG+1}, s{sTAG+1}, 0x5bd1e995
              s_add_u32 s{sTAG}, s{sTAG}, 0x7f4a7c15
              s_waitcnt lgkmcnt(0)""")
        k.vmem(f"buffer_store_dwordx4 v[48:51], v37, s[{sWS}:{sWS+3}], s{sT0} offen sc1", 'hst')
        k.vmem(f"buffer_store_dwordx4 v[52:55], v16, s[{sWS}:{sWS+3}], s{sT0+1} offen sc1", 'hst')

    def flag(self, addr_code, vt, epoch=False):
        k = self.k
        skip = k.newlabel("L_flag")
        k(f"s_cmp_lg_u32 s{sWAVE}, 0\ns_cbranch_scc1 {skip}")
        k(f"""v_cmp_eq_u32 vcc, 0, v1
              v_bfrev_b32 v{vt}, 1
              v_mov_b32 v{vt+1}, s{sTAG}
              v_mov_b32 v{vt+2}, s{sTAG+1}
              v_cndmask_b32 v{vt}, v{vt}, 0, vcc""")
        k(addr_code)
        k(f"buffer_store_dwordx2 v[{vt+1}:{vt+2}], v{vt}, s[{sWS}:{sWS+3}], s{sT0} offen sc1")
        if epoch:
            k(f"s_cmp_lg_u32 s{sWG}, 0\ns_cbranch_scc1 {skip}")
            k(f"buffer_store_dword v{vt+1}, v{vt}, s[{sWS}:{sWS+3}], 0 offen sc1")
        k.label(skip)

    def h_flag(self, vt):
        self.flag(f"s_mul_i32 s{sT0}, s{sWG}, {self.c.FS}\ns_add_u32 s{sT0}, s{sT0}, {WS_FH}", vt)
        self.stamp(2)

    def poll_issue(self, vaddr, vt, tok):
        self.k.vmem(f"buffer_load_dwordx2 v[{vt}:{vt+1}], v{vaddr}, s[{sWS}:{sWS+3}], 0 offen sc1", tok)

    def poll_check(self, vaddr, vt, tok):
        k, c = self.k, self.c
        lp, done = k.newlabel("L_poll"), k.newlabel("L_polled")
        k.vwait(tok)
        k(f"""v_cmp_ne_u64 vcc, s[{sTAG}:{sTAG+1}], v[{vt}:{vt+1}]
              s_mov_b32 s{sSPIN}, 0
              s_cbranch_vccz {done}""")
        k.label(lp)
        k(f"""buffer_load_dwordx2 v[{vt}:{vt+1}], v{vaddr}, s[{sWS}:{sWS+3}], 0 offen sc1
              s_waitcnt vmcnt(0)
              v_cmp_ne_u64 vcc, s[{sTAG}:{sTAG+1}], v[{vt}:{vt+1}]
              s_add_u32 s{sSPIN}, s{sSPIN}, 1
              s_cbranch_vccz {done}
              s_cmp_lt_u32 s{sSPIN}, {c.SPIN}
              s_cbranch_scc1 {lp}""")
        k.label(done)

    def w_addr_code(self, vq, stride, t=12):
        s = f"""v_lshrrev_b32 v{t}, 3, v1
              v_lshrrev_b32 v{t+1}, 5, v1
              v_and_b32 v{t+2}, 3, v{t}
              v_lshl_add_u32 v{t+1}, v{t+1}, 3, v{t+2}
              v_mul_u32_u24 v{t+1}, {stride}, v{t+1}
              v_and_b32 v{t+2}, 6, v{t}
              v_and_b32 v{t+3}, 7, v1
              v_xor_b32 v{t+2}, v{t+2}, v{t+3}
              v_lshl_add_u32 v{vq}, v{t+2}, 4, v{t+1}\n"""
        for qq in range(1, 4):
            h, G = qq >> 1, qq & 1
            s += f"v_add_u32 v{vq+qq}, {(16*G + 4*h)*stride - qq*1024}, v{vq}\n"
        return s

    def w_tr_code(self, t=12):
        s = f"""v_bfe_u32 v{t}, v1, 2, 3
              v_lshrrev_b32 v{t+1}, 5, v1
              v_lshlrev_b32 v{t+1}, 10, v{t+1}
              v_lshl_add_u32 v{t+1}, v{t}, 7, v{t+1}
              v_and_b32 v{t+2}, 3, v1
              v_lshl_add_u32 v{t+1}, v{t+2}, 3, v{t+1}
              v_add_u32 v{t+1}, s{sRING}, v{t+1}
              v_lshrrev_b32 v{t}, 1, v{t}\n"""
        for a in range(4):
            s += f"""s_add_u32 s{sT0}, s{sWAVE}, {a}
                  s_and_b32 s{sT0}, s{sT0}, 3
                  v_xor_b32 v{t+2}, s{sT0}, v{t}
                  v_lshl_add_u32 v{vTR+a}, v{t+2}, 5, v{t+1}\n"""
        return s

    def p2_setup_code(self, t=12):
        c = self.c
        WO = self.LDS_RED
        a, b, d, e = t, t+1, t+2, t+3
        s = f"""s_mul_i32 s{sT0}, s{sIDX}, 37
              s_lshr_b32 s{sT0}, s{sT0}, 8
              s_mul_i32 s{sT0+1}, s{sT0}, 7
              s_sub_u32 s{sDJ}, s{sIDX}, s{sT0+1}
              s_lshl_b32 s{sST}, s{sXCD}, 2
              s_add_u32 s{sST}, s{sST}, s{sT0}
              s_lshl_b32 s{sT0}, s{sT0}, 2
              s_lshr_b32 s{sT0}, {c.S2U:#x}, s{sT0}
              s_and_b32 s{sT0}, s{sT0}, 15
              s_lshl_b32 s{sT0+1}, s{sDJ}, 2
              s_lshr_b32 s{sT0+1}, {c.S2W:#x}, s{sT0+1}
              s_and_b32 s{sT0+1}, s{sT0+1}, 15
              s_add_u32 s{sT0}, s{sT0}, s{sT0+1}
              s_sub_u32 s{sT0+1}, s{sT0}, 14
              s_min_u32 s{sT0}, s{sT0}, s{sT0+1}
              s_mul_i32 s{sW2LO}, s{sWAVE}, {448*4096}
              s_lshl_b32 s{sT0+1}, s{sST}, 7
              s_add_u32 s{sW2LO}, s{sW2LO}, s{sT0+1}
              s_add_u32 s{sW2HI}, s{sW2LO}, {448*4096}
              s_mul_i32 s{sT0+1}, s{sT0}, {32*4096}
              s_add_u32 s{sW2OFF}, s{sW2LO}, s{sT0+1}
              s_mul_i32 s{sULO}, s{sWAVE}, {14*KS}
              s_lshl_b32 s{sT0+1}, s{sDJ}, 12
              s_add_u32 s{sULO}, s{sULO}, s{sT0+1}
              s_add_u32 s{sULO}, s{sULO}, {WS_U}
              s_add_u32 s{sUHI}, s{sULO}, {14*KS}
              s_mul_i32 s{sT0+1}, s{sT0}, {KS}
              s_add_u32 s{sUOFF}, s{sULO}, s{sT0+1}\n"""
        s += self.w_addr_code(vW2, 4096, t)
        s += f"""v_lshlrev_b32 v{vL16}, 4, v1
              v_lshrrev_b32 v{a}, 3, v1
              v_mul_u32_u24 v{b}, 896, v{a}
              v_and_b32 v{d}, 6, v{a}
              v_and_b32 v{e}, 7, v1
              v_xor_b32 v{d}, v{d}, v{e}
              v_lshl_add_u32 v{vWOD}, v{d}, 4, v{b}
              s_mul_i32 s{sWOOFF}, s{sWAVE}, {112*896}
              s_lshl_b32 s{sT0+2}, s{sDJ}, 7
              s_add_u32 s{sWOOFF}, s{sWOOFF}, s{sT0+2}
              s_mul_i32 s{sWOM0}, s{sWAVE}, {14*1024}
              s_add_u32 s{sWOM0}, s{sWOM0}, {WO}
              v_and_b32 v{a}, 15, v1
              v_mul_u32_u24 v{vXO}, 896, v{a}
              v_bfe_u32 v{b}, v1, 4, 1
              v_lshl_add_u32 v{vXO}, v{b}, 5, v{vXO}
              v_lshrrev_b32 v{b}, 5, v1
              v_lshl_add_u32 v{vXO}, v{b}, 4, v{vXO}
              v_lshlrev_b32 v{vB2-1}, 1, v{a}
              s_lshl_b32 s{sT0}, s{sST}, 2
              s_add_u32 s{sT0}, s{sT0}, s{sWAVE}
              s_mul_i32 s{sXOFF}, s{sT0}, {16*896}
              s_add_u32 s{sXOFF}, s{sXOFF}, s{sT0+2}
              s_lshl_b32 s{sB2OFF}, s{sT0}, 5
              s_lshl_b32 s{sOOFF}, s{sT0}, 13
              s_add_u32 s{sOOFF}, s{sOOFF}, {WS_O}
              s_mul_i32 s{sT0+1}, s{sT0}, 79
              s_lshr_b32 s{sT0+1}, s{sT0+1}, 10
              s_min_u32 s{sT0+1}, s{sT0+1}, 4
              s_max_u32 s{sT0+3}, s{sT0}, 52
              s_sub_u32 s{sT0+3}, s{sT0+3}, 52
              s_mul_i32 s{sT0+3}, s{sT0+3}, 94
              s_lshr_b32 s{sT0+3}, s{sT0+3}, 10
              s_add_u32 s{sT0+3}, s{sT0+3}, s{sT0+1}
              v_min_u32 v{a}, 13, v1
              v_and_b32 v{b}, 1, v{a}
              v_mul_u32_u24 v{b}, 3, v{b}
              s_lshl_b32 s{sT0+1}, s{sDJ}, 2
              v_add_u32 v{b}, s{sT0+1}, v{b}
              v_mul_u32_u24 v{b}, 52, v{b}
              v_lshrrev_b32 v{b}, 8, v{b}
              v_lshrrev_b32 v{a}, 1, v{a}
              s_mul_i32 s{sT0+1}, s{sWAVE}, 7
              v_add_u32 v{a}, s{sT0+1}, v{a}
              v_mad_u32_u24 v{a}, v{a}, 6, v{b}
              v_mul_u32_u24 v{a}, {c.FS}, v{a}
              v_add_u32 v{vUF}, {WS_FU}, v{a}
              v_and_b32 v{a}, 7, v1
              v_lshl_add_u32 v{a}, v{a}, 4, s{sT0+3}
              v_mul_u32_u24 v{a}, {c.FS}, v{a}
              v_add_u32 v{vOFL}, {WS_FO}, v{a}
              v_and_b32 v{a}, 1, v1
              v_mul_u32_u24 v{a}, {O_PAR}, v{a}
              v_lshrrev_b32 v{b}, 4, v1
              v_lshl_add_u32 v{a}, v{b}, 7, v{a}
              v_bfe_u32 v{b}, v1, 1, 3
              v_lshl_add_u32 v{vOO}, v{b}, 4, v{a}
              v_lshrrev_b32 v{a}, 2, v1
              v_lshlrev_b32 v{b}, 7, v{a}
              v_and_b32 v{d}, 3, v1
              v_lshl_add_u32 v{b}, v{d}, 3, v{b}
              v_add_u32 v{b}, {WO}, v{b}
              v_bfe_u32 v{a}, v1, 3, 2\n"""
        for i in range(4):
            s += f"v_xor_b32 v{d}, {i}, v{a}\nv_lshl_add_u32 v{vWOR+i}, v{d}, 5, v{b}\n"
        return s

    def q_p2(self):
        k, c = self.k, self.c
        self.q_wstream(14, sW2, vW2, sW2OFF, sW2LO, sW2HI, 4096, 'W2')
        self.q(lambda: k.vmem(f"buffer_load_dwordx4 v[{vXD}:{vXD+3}], v{vXO}, s[{sX}:{sX+3}], s{sXOFF} offen", 'x'))
        self.q(lambda: k.vmem(f"buffer_load_dwordx4 v[{vXD+4}:{vXD+7}], v{vXO}, s[{sX}:{sX+3}], s{sXOFF} offen offset:64", 'x'))
        self.q(lambda: k.vmem(f"buffer_load_ushort v{vB2}, v{vB2-1}, s[{sB2}:{sB2+3}], s{sB2OFF} offen", 'x'))
        self.wo_start = self.nq
        for e in range(15):
            if e == 15 - c.UPOS: self.q(lambda: self.poll_issue(vUF, vPOLL, 'Upoll'))
            def op(e=e):
                assert self.red_free
                k(f"s_add_u32 m0, s{sWOM0}, {e*1024}")
                if e: k(f"s_add_u32 s{sWOOFF}, s{sWOOFF}, {8*896}")
                k.vmem(f"buffer_load_dwordx4 v{vWOD}, s[{sWO}:{sWO+3}], s{sWOOFF} offen lds", 'Wo')
            self.q(op)
        if c.UPOS == 0: self.q(lambda: self.poll_issue(vUF, vPOLL, 'Upoll'))

    def to_p2(self):
        k = self.k
        while self.vq: self.tick()
        self.drain_reads()
        i = k.vm.index('Upoll')
        assert k.vm[i:] == ['Upoll'] + ['Wo'] * self.c.UPOS, k.vm
        self.stamp(7)
        k("s_branch L_fin" if self.c.NOP2 else "s_branch L_p2")

    def m1(self):
        k, c = self.k, self.c
        self.bg_reset()
        ACC, STG = 32, 112
        k(f"""s_mul_i32 s{sT0}, s{sIDX}, 43
              s_lshr_b32 s{sT0}, s{sT0}, 8
              s_mul_i32 s{sT0+1}, s{sT0}, 6
              s_sub_u32 s{sJ}, s{sIDX}, s{sT0+1}
              s_lshr_b32 s{sT0+1}, s{sXCD}, 1
              s_mul_i32 s{sT0+1}, s{sT0+1}, 7
              s_and_b32 s{sT0+2}, s{sXCD}, 1
              s_lshl_b32 s{sT0+3}, s{sT0+2}, 2
              s_add_u32 s{sT0+1}, s{sT0+1}, s{sT0+3}
              s_add_u32 s{sFT}, s{sT0+1}, s{sT0}""")
        k(f"""s_lshl_b32 s{sT0}, s{sT0}, 2
              s_lshr_b32 s{sT0}, {c.S1H:#x}, s{sT0}
              s_lshl_b32 s{sT0+1}, s{sJ}, 2
              s_lshr_b32 s{sT0+1}, {c.S1W:#x}, s{sT0+1}
              s_add_u32 s{sT0}, s{sT0}, s{sT0+1}
              s_and_b32 s{sT0}, s{sT0}, 15
              s_mul_i32 s{sRING}, s{sWAVE}, {c.NR*4096}
              s_mul_i32 s{sWLO}, s{sWAVE}, {512*3584}
              s_lshl_b32 s{sT0+1}, s{sFT}, 7
              s_add_u32 s{sWLO}, s{sWLO}, s{sT0+1}
              s_add_u32 s{sWHI}, s{sWLO}, {512*3584}
              s_mul_i32 s{sT0+1}, s{sT0}, {32*3584}
              s_add_u32 s{sWOFF}, s{sWLO}, s{sT0+1}""")
        k(self.w_addr_code(2, 3584))
        vHF = 26
        self.q_wstream(16, sW1, 2, sWOFF, sWLO, sWHI, 3584, 'W1', {64 - c.HPOS: lambda: self.poll_issue(vHF, 28, 'Hpoll')} if c.HPOS else None)
        if not c.HPOS: self.q(lambda: self.poll_issue(vHF, 28, 'Hpoll'))
        nw1 = self.nq
        self.start_x()
        self.tick(c.PRE0, reads=0)
        self.start_rest()
        k(f"""s_mul_i32 s{sALO}, s{sWAVE}, {16*KS}
              s_mul_i32 s{sT0+1}, s{sJ}, 5120
              s_add_u32 s{sALO}, s{sALO}, s{sT0+1}
              s_add_u32 s{sALO}, s{sALO}, {WS_HT}
              s_add_u32 s{sAHI}, s{sALO}, {16*KS}
              s_mul_i32 s{sT0+1}, s{sT0}, {KS}
              s_add_u32 s{sAOFF}, s{sALO}, s{sT0+1}""")
        k(self.w_tr_code())
        self.ln(lambda: self.tick(c.LNW, reads=0))
        self.tick(c.HLAG, reads=4)
        k.vwait('hst')
        k("s_barrier")
        self.h_flag(17)
        k(f"""s_cmp_eq_u32 s{sJ}, 5
              s_cselect_b32 s{sT0}, {OOB:#x}, 0""")
        self.fg(f"""v_lshlrev_b32 v10, 4, v1
              s_add_u32 s{sT0}, s{sT0}, 3072
              v_add_u32 v11, s{sT0}, v10
              v_lshrrev_b32 v12, 4, v1
              v_lshlrev_b32 v12, 3, v12
              s_lshl_b32 s{sT0}, s{sFT}, 7
              s_lshl_b32 s{sT0+1}, s{sWAVE}, 5
              s_add_u32 s{sT0}, s{sT0}, s{sT0+1}""")
        k.vmem(f"buffer_load_dwordx2 v[24:25], v12, s[{sB1}:{sB1+3}], s{sT0} offen", 'b1')
        self.fg(f"""s_mul_i32 s{sT0}, s{sWAVE}, {64*c.FS}
              s_add_u32 s{sT0}, s{sT0}, {WS_FH}
              v_mul_u32_u24 v{vHF}, {c.FS}, v1
              v_add_u32 v{vHF}, s{sT0}, v{vHF}""")
        self.fg(self.p2_setup_code())
        RED = self.LDS_RED
        for a in range(1, 4):
            self.fg(f"""s_add_u32 s{sT0}, s{sWAVE}, {a}
                  s_and_b32 s{sT0}, s{sT0}, 3
                  s_mul_i32 s{sT0}, s{sT0}, 15360
                  s_add_u32 s{sT0}, s{sT0}, {RED + (a-1)*5120}
                  v_add_u32 v{5+a}, s{sT0}, v10""")
        self.fg(f"""s_mul_i32 s{sT0}, s{sWAVE}, 15360
              s_add_u32 s{sT0}, s{sT0}, {RED}
              v_add_u32 v9, s{sT0}, v10
              v_lshrrev_b32 v12, 4, v1
              v_and_b32 v13, 1, v12
              v_lshrrev_b32 v12, 1, v12
              v_lshlrev_b32 v12, 8, v12
              v_and_b32 v14, 15, v1
              v_lshl_add_u32 v12, v14, 4, v12
              v_lshl_add_u32 v20, v13, 10, v12
              v_lshl_add_u32 v21, v13, 31, v12""")
        k(f"""s_cmp_eq_u32 s{sJ}, 5
              s_cselect_b64 vcc, -1, 0
              s_cselect_b32 s{sT0}, {OOB:#x}, 0""")
        c1 = -2.0 * math.sqrt(2.0 / math.pi) * math.log2(math.e)
        self.fg(f"""v_cndmask_b32 v22, v20, v21, vcc
              v_add_u32 v21, 4096, v21
              v_or_b32 v21, s{sT0}, v21
              s_lshl_b32 s0, s{sFT}, 1
              s_lshr_b32 s{sT0+1}, s{sWAVE}, 1
              s_add_u32 s0, s0, s{sT0+1}
              s_mul_i32 s0, s0, {KS}
              s_mul_i32 s{sT0+1}, s{sJ}, 5120
              s_add_u32 s0, s0, s{sT0+1}
              s_and_b32 s{sT0+1}, s{sWAVE}, 1
              s_lshl_b32 s{sT0+1}, s{sT0+1}, 9
              s_add_u32 s0, s0, s{sT0+1}
              s_add_u32 s0, s0, {WS_U}
              v_mov_b32 v30, {f2u(c1):#x}
              v_mov_b32 v31, {f2u(c1*0.044715):#x}""")
        assert self.nv < nw1 - c.HPOS - 1
        NF = 80
        def hload(n):
            i, t = divmod(n, 5)
            b = STG + 4*(n % c.PD1)
            va, off = (10, t*1024) if t < 3 else (11, (t-3)*1024)
            o = f" offset:{off}" if off else ""
            if c.NOLD and n >= c.PD1: return
            if t == 0 and n and not c.NOADV:
                k(f"s_add_u32 s{sAOFF}, s{sAOFF}, {KS}\ns_cmp_ge_u32 s{sAOFF}, s{sAHI}\ns_cselect_b32 s{sAOFF}, s{sALO}, s{sAOFF}")
            k.vmem(f"buffer_load_dwordx4 v[{b}:{b+3}], v{va}, s[{sWS}:{sWS+3}], s{sAOFF} offen{o} sc1", ('H', n))
        for n in range(NF): self.q(lambda n=n: hload(n))
        self.tick_until(nw1)
        self.stamp(3)
        self.poll_check(vHF, 28, 'Hpoll')
        self.stamp(4)
        k.vwait('b1')
        k(f"""v_lshlrev_b32 v12, 16, v24
              v_and_b32 v13, 0xffff0000, v24
              v_lshlrev_b32 v14, 16, v25
              v_and_b32 v15, 0xffff0000, v25""")
        self.tick(c.PD1)
        self.drain_reads()
        self.red_free = False
        self.q_p2()
        for n in range(NF):
            i, t = divmod(n, 5)
            b = STG + 4*(n % c.PD1)
            k.lwait(('W1', i))
            k.vwait(('H', n))
            for a in ((1, 2, 3, 0) if i == 15 else range(4)):
                d = ACC + 20*a + 4*t
                cin = ("v[12:15]" if a == 0 else "0") if i == 0 else f"v[{d}:{d+3}]"
                if not c.NOMFMA or i == 0: k(f"v_mfma_f32_16x16x32_bf16 v[{d}:{d+3}], a[{16*i+4*a}:{16*i+4*a+3}], v[{b}:{b+3}], {cin}")
            if n + c.PD1 == NF: k.lwait_all()
            self.tick()
            if i == 15 and t >= 1:
                for a in range(1, 4):
                    d = ACC + 20*a + 4*(t-1)
                    k.ds(f"ds_write_b128 v{5+a}, v[{d}:{d+3}] offset:{(t-1)*1024}", 'rw')
        self.stamp(5)
        self.budget = 0
        for a in range(1, 4):
            d = ACC + 20*a + 16
            self.fg(f"ds_write_b128 v{5+a}, v[{d}:{d+3}] offset:{4*1024}", 'rw', True)
        self.tick(2)
        k.lwait('rw')
        k("s_barrier")
        for t in range(5):
            for a in range(3):
                b = STG + 12*t + 4*a
                self.fg(f"ds_read_b128 v[{b}:{b+3}], v9 offset:{a*5120 + t*1024}", ('r', t), True)
        T = ACC + 20
        PK = ACC + 60
        fg = self.fg
        for t in range(5):
            d = ACC + 4*t; b = STG + 12*t; e = T + 4*t
            k.lwait(('r', t))
            for h in (0, 2):
                fg(f"v_pk_add_f32 v[{b+h}:{b+h+1}], v[{b+h}:{b+h+1}], v[{b+4+h}:{b+5+h}]")
                fg(f"v_pk_add_f32 v[{d+h}:{d+h+1}], v[{d+h}:{d+h+1}], v[{b+8+h}:{b+9+h}]")
            for h in (0, 2):
                fg(f"v_pk_add_f32 v[{d+h}:{d+h+1}], v[{d+h}:{d+h+1}], v[{b+h}:{b+h+1}]")
            for h in (0, 2):
                fg(f"v_pk_mul_f32 v[{e+h}:{e+h+1}], v[{d+h}:{d+h+1}], v[{d+h}:{d+h+1}]")
            for h in (0, 2):
                fg(f"v_pk_fma_f32 v[{e+h}:{e+h+1}], v[{e+h}:{e+h+1}], v[30:31], v[30:31] op_sel:[0,1,0] op_sel_hi:[1,1,0]")
            for h in (0, 2):
                fg(f"v_pk_mul_f32 v[{e+h}:{e+h+1}], v[{e+h}:{e+h+1}], v[{d+h}:{d+h+1}]")
            for r in range(4): fg(f"v_exp_f32 v{e+r}, v{e+r}")
            for h in (0, 2):
                fg(f"v_pk_add_f32 v[{e+h}:{e+h+1}], v[{e+h}:{e+h+1}], 1.0 op_sel_hi:[1,0]")
            for r in range(4): fg(f"v_rcp_f32 v{e+r}, v{e+r}")
            for h in (0, 2):
                fg(f"v_pk_mul_f32 v[{d+h}:{d+h+1}], v[{d+h}:{d+h+1}], v[{e+h}:{e+h+1}]")
            fg(f"v_cvt_pk_bf16_f32 v{PK+2*t}, v{d}, v{d+1}\nv_cvt_pk_bf16_f32 v{PK+2*t+1}, v{d+2}, v{d+3}")
            if t in (1, 3, 4):
                p = PK + 4*(t >> 1)
                k(f"v_permlane16_swap_b32 v{p}, v{p+2}\nv_permlane16_swap_b32 v{p+1}, v{p+3}")
                va, off = {1: (20, ""), 3: (22, " offset:2048"), 4: (21, "")}[t]
                k.vmem(f"buffer_store_dwordx4 v[{p}:{p+3}], v{va}, s[{sWS}:{sWS+3}], s0 offen{off} sc1", 'ust')
        self.tick(min(8, self.wo_start - self.nv))
        k.vwait('ust')
        k("s_barrier")
        self.red_free = True
        self.flag(f"""s_mul_i32 s{sT0}, s{sFT}, 6
              s_add_u32 s{sT0}, s{sT0}, s{sJ}
              s_mul_i32 s{sT0}, s{sT0}, {c.FS}
              s_add_u32 s{sT0}, s{sT0}, {WS_FU}""", 17, epoch=True)
        self.stamp(6)
        self.to_p2()

    def p2(self):
        k, c = self.k, self.c
        k.label("L_p2")
        self.bg_reset()
        k.vm = ['Upoll'] + ['Wo'] * c.UPOS
        k.lg = ['w2r']
        ACC, SAC, STG, OF = 32, 96, 112, 160
        assert STG + 4*c.PD2 <= OF
        self.poll_check(vUF, vPOLL, 'Upoll')
        self.stamp(8)
        NF = 56
        def uload(n):
            i, t = divmod(n, 4)
            b = STG + 4*(n % c.PD2)
            o = f" offset:{t*1024}" if t else ""
            if c.NOLD and n >= c.PD2 and n != NF - c.OPOS: return
            if t == 0 and n and not c.NOADV:
                k(f"s_add_u32 s{sUOFF}, s{sUOFF}, {KS}\ns_cmp_ge_u32 s{sUOFF}, s{sUHI}\ns_cselect_b32 s{sUOFF}, s{sULO}, s{sUOFF}")
            if n == NF - c.OPOS: self.poll_issue(vOFL, vPOLL, 'Opoll')
            k.vmem(f"buffer_load_dwordx4 v[{b}:{b+3}], v{vL16}, s[{sWS}:{sWS+3}], s{sUOFF} offen{o} sc1", ('U', n))
        def oload(hd):
            if hd == 0: self.poll_check(vOFL, vPOLL, 'Opoll')
            o = f" offset:{(hd&7)*512}" if hd & 7 else ""
            if hd == 8: k(f"s_add_u32 s{sOOFF}, s{sOOFF}, 4096")
            k.vmem(f"buffer_load_dwordx4 v[{OF+4*hd}:{OF+4*hd+3}], v{vOO}, s[{sWS}:{sWS+3}], s{sOOFF} offen{o} sc1", ('O', hd))
        for n in range(NF): self.q(lambda n=n: uload(n))
        for hd in range(16): self.q(lambda hd=hd: oload(hd))
        self.tick(c.PD2)
        k.vwait('Wo')
        k.lwait_all()
        k("s_barrier")
        XF = 2
        k(f"""v_permlane16_swap_b32 v{vXD}, v{vXD+2}
              v_permlane16_swap_b32 v{vXD+1}, v{vXD+3}
              v_permlane16_swap_b32 v{vXD+4}, v{vXD+6}
              v_permlane16_swap_b32 v{vXD+5}, v{vXD+7}""")
        for r in range(4): k(f"v_lshlrev_b32 v{20+r}, 16, v{vB2}")
        side = []
        for i in range(8):
            side += [f"v_lshlrev_b32 v{XF+2*i}, 16, v{vXD+i}", f"v_and_b32 v{XF+2*i+1}, 0xffff0000, v{vXD+i}"]
        side.append(f"v_add_u32 v24, s{sRING}, v{vL16}")
        for a in range(1, 4):
            side.append(f"""s_sub_u32 s{sT0}, s{sWAVE}, {a}
                  s_and_b32 s{sT0}, s{sT0}, 3
                  s_mul_i32 s{sT0}, s{sT0}, {c.NR*4096}
                  s_add_u32 s{sT0}, s{sT0}, {(a-1)*4096}
                  v_add_u32 v{24+a}, s{sT0}, v{vL16}""")
        side.append(f"s_mov_b32 s0, {f2u(-math.log2(math.e)):#x}\ns_mov_b32 s1, s0")
        def wbase(hd): return 224 + 16*hd if hd < 2 else 16*(hd - 2)
        wr = []
        for hd in range(16):
            for t in range(4):
                for hh in range(2):
                    b = wbase(hd) + 4*t + 2*hh
                    wr.append((0 if hd < 2 else 4*(hd-2) + 3, f"ds_read_b64_tr_b16 a[{b}:{b+1}], v{vWOR + (t ^ (2*(hd & 1)))} offset:{(28*hd + 16*hh)*128}", ('wo', hd)))
        for n in range(NF):
            i, t = divmod(n, 4)
            b = STG + 4*(n % c.PD2)
            k.vwait(('U', n))
            for a in ((1, 2, 3, 0) if i == 13 else range(4)):
                d = ACC + 16*a + 4*t
                cin = ("v[20:23]" if a == 0 else "0") if i == 0 else f"v[{d}:{d+3}]"
                if not c.NOMFMA or i == 0: k(f"v_mfma_f32_16x16x32_bf16 v[{d}:{d+3}], v[{b}:{b+3}], a[{16*i+4*a}:{16*i+4*a+3}], {cin}")
                if a in (0, 1, 2) and wr and wr[0][0] < n:
                    w = wr.pop(0); k.ds(w[1], w[2])
            self.tick()
            if side: k(side.pop(0))
            if i == 13 and t >= 1:
                for a in range(1, 4):
                    d = ACC + 16*a + 4*(t-1)
                    k.ds(f"ds_write_b128 v24, v[{d}:{d+3}] offset:{(a-1)*4096 + (t-1)*1024}", 'rw')
        assert not side
        self.stamp(9)
        while self.vq: self.tick()
        sm = []
        for hd in range(16):
            for t in range(4):
                d = SAC + 4*t
                cin = "0" if hd == 0 else f"v[{d}:{d+3}]"
                sm.append((hd, f"v_mfma_f32_16x16x32_bf16 v[{d}:{d+3}], a[{wbase(hd)+4*t}:{wbase(hd)+4*t+3}], v[{OF+4*hd}:{OF+4*hd+3}], {cin}"))
        def smf(n=1):
            for _ in range(n):
                if sm:
                    hd, t = sm.pop(0)
                    assert not any(w[2] == ('wo', hd) for w in wr)
                    k.vwait(('O', hd)); k.lwait(('wo', hd)); k(t)
        smf(4)
        for a in range(1, 4):
            d = ACC + 16*a + 12
            k.ds(f"ds_write_b128 v24, v[{d}:{d+3}] offset:{(a-1)*4096 + 3*1024}", 'rw')
            smf(3)
        smf(c.TW0)
        k.lwait('rw')
        k("s_barrier")
        for t in range(4):
            for a in range(3):
                b = STG + 12*t + 4*a
                k.ds(f"ds_read_b128 v[{b}:{b+3}], v{25+a} offset:{t*1024}", ('r', t))
                if t < 2: smf()
        while wr:
            w = wr.pop(0); k.ds(w[1], w[2])
        T = ACC + 16
        for t in range(4):
            d = ACC + 4*t; b = STG + 12*t; e = T + 4*t
            k.lwait(('r', t))
            for h in (0, 2):
                k(f"v_pk_add_f32 v[{b+h}:{b+h+1}], v[{b+h}:{b+h+1}], v[{b+4+h}:{b+5+h}]")
                k(f"v_pk_add_f32 v[{d+h}:{d+h+1}], v[{d+h}:{d+h+1}], v[{b+8+h}:{b+9+h}]")
            for h in (0, 2):
                k(f"v_pk_add_f32 v[{d+h}:{d+h+1}], v[{d+h}:{d+h+1}], v[{b+h}:{b+h+1}]")
            for h in (0, 2):
                k(f"v_pk_mul_f32 v[{e+h}:{e+h+1}], v[{d+h}:{d+h+1}], s[0:1]")
        for r in range(16):
            k(f"v_exp_f32 v{T+r}, v{T+r}"); smf()
        for r in range(16):
            k(f"v_add_f32 v{T+r}, 1.0, v{T+r}")
            if r & 1: smf()
        for r in range(16):
            k(f"v_rcp_f32 v{T+r}, v{T+r}"); smf()
        for r in range(16):
            k(f"v_mul_f32 v{ACC+r}, v{ACC+r}, v{T+r}")
            if r & 1: smf()
        smf(64)
        for t in range(4):
            d = ACC + 4*t; s_ = SAC + 4*t; x = XF + 4*t
            for h in (0, 2):
                k(f"v_pk_fma_f32 v[{d+h}:{d+h+1}], v[{d+h}:{d+h+1}], v[{s_+h}:{s_+h+1}], v[{x+h}:{x+h+1}]")
            k(f"v_cvt_pk_bf16_f32 v{vXD+2*t}, v{d}, v{d+1}\nv_cvt_pk_bf16_f32 v{vXD+1+2*t}, v{d+2}, v{d+3}")
            if t & 1:
                p = vXD + 4*(t >> 1)
                k(f"v_permlane16_swap_b32 v{p}, v{p+2}\nv_permlane16_swap_b32 v{p+1}, v{p+3}")
                o = " offset:64" if t == 3 else ""
                k.vmem(f"buffer_store_dwordx4 v[{p}:{p+3}], v{vXO}, s[{sOUT}:{sOUT+3}], s{sXOFF} offen{o}{c.OAUX}", 'out')

    def o_flag(self, vt):
        self.flag(f"""s_lshl_b32 s{sT0}, s{sG}, 1
              s_add_u32 s{sT0}, s{sT0}, s{sPAR}
              s_lshl_b32 s{sT0}, s{sT0}, 4
              s_add_u32 s{sT0}, s{sT0}, s{sBLK}
              s_mul_i32 s{sT0}, s{sT0}, {self.c.FS}
              s_add_u32 s{sT0}, s{sT0}, {WS_FO}""", vt)

    def attn(self, NT, duty):
        k, c = self.k, self.c
        self.bg_reset()
        k.lg = []
        if c.SKIPA:
            self.start_x(); self.start_rest(); self.ln()
            k(f"s_mul_i32 s{sRING}, s{sWAVE}, {c.NR*4096}")
            if duty: k(self.w_tr_code()); k(self.p2_setup_code())
            k.vwait('hst'); k("s_barrier"); self.h_flag(17); self.o_flag(21)
            if duty:
                k("s_sleep 127\ns_sleep 30")
                self.red_free = True; self.q_p2(); self.to_p2()
            else: k("s_branch L_fin")
            return
        WSLOT, NW = 24576, 4
        XB = NW * WSLOT
        XSLOT, NX = NT * 2048, 3
        nx = 2*NT
        nxe = (nx + 3) // 4
        nxmin = nx // 4
        sWO0, sWO1, sXO, sWM, sXM, sOCT = sWOFF, sWLO, sWHI, sAOFF, sALO, sAHI
        sXE = 4
        vW, vX, vXR, vWR = 2, 3, 8, 30
        Q, K = 40, 40 + 8*NT
        V0 = K + 8*NT + 4
        V1 = V0 + 4*NT + 4
        T0 = V1 + 4*NT
        RQ = lambda t: T0 + 2*t
        CSQ = T0 + 2*NT
        MC, MC0 = CSQ + 8, CSQ + 12
        assert MC0 + 4 <= (224 if duty else 256)
        ONES, AP = 20, 10
        k(f"""s_mul_i32 s{sT0}, s{sBLK}, {c.SAB}
              s_mul_i32 s{sT0+1}, s{sG}, {c.SAG}
              s_add_u32 s{sT0}, s{sT0}, s{sT0+1}
              s_mul_i32 s{sT0+1}, s{sT0}, 147
              s_lshr_b32 s{sT0+1}, s{sT0+1}, 10
              s_mul_i32 s{sT0+1}, s{sT0+1}, 7
              s_sub_u32 s{sT0}, s{sT0}, s{sT0+1}
              s_lshl_b32 s{sXO}, s{sT0}, 7
              s_mul_i32 s{sWO0}, s{sT0}, {64*2688}
              s_add_u32 s{sWO1}, s{sWO0}, {4*2688}""")
        k(f"""s_and_b32 s{sT0+2}, s{sWAVE}, 1
              s_lshl_b32 s{sT0}, s{sT0+2}, 3
              v_subrev_u32 v12, s{sT0}, v1
              v_mul_u32_u24 v13, 147, v12
              v_lshrrev_b32 v13, 11, v13
              v_mul_u32_u24 v14, 14, v13
              v_sub_u32 v14, v12, v14
              s_lshl_b32 s{sT0+3}, s{sWAVE}, 3
              v_add_u32 v13, s{sT0+3}, v13
              v_mul_u32_u24 v13, 2688, v13
              v_lshl_add_u32 v13, v14, 4, v13
              s_mul_i32 s{sT0}, s{sG}, 224
              v_cmp_gt_u32 s[6:7], 56, v12
              v_add_u32 v13, s{sT0}, v13
              v_bfrev_b32 v14, 1
              s_lshl_b32 s{sWM}, s{sWAVE}, 10
              s_add_u32 s{sXM}, s{sWM}, {XB}
              v_cndmask_b32 v{vW}, v14, v13, s[6:7]""")
        def wdma(i):
            ops = []
            slot = i % NW
            for sec in range(3):
                for h in range(2):
                    pre = f"s_add_u32 m0, s{sWM}, {slot*WSLOT + (2*sec+h)*4096 - sec*896}\n"
                    if sec == 0 and h == 0 and i and not c.NOADV:
                        pre += f"s_add_u32 s{sWO0}, s{sWO0}, {32*2688}\n"
                        if i % 2 == 0: pre += f"s_cmp_ge_u32 s{sWO0}, {448*2688}\ns_cselect_b32 s{sWO0}, 0, s{sWO0}\n"
                    if sec == 0 and h == 1 and i:
                        pre += f"s_add_u32 s{sWO1}, s{sWO0}, {4*2688}\n"
                    def op(sec=sec, h=h):
                        if c.NOLD and i >= 2: return
                        o = f" offset:{sec*896}" if sec else ""
                        k.vmem(f"buffer_load_dwordx4 v{vW}, s[{sWQKV}:{sWQKV+3}], s{sWO1 if h else sWO0} offen{o}{c.QAUX} lds", ('W', i))
                    ops.append((max(i - NW, -1), i, pre, op))
            return ops
        def xdma(ch):
            ops = []
            slot = ch % NX
            first = -1 if ch < NX else 2*(ch - NX) + 1
            for e in reversed(range(nxe)):
                pre = f"s_add_u32 m0, s{sXM}, {slot*XSLOT + e*4096}\n"
                if e == nxe - 1 and ch and not c.NOADV:
                    pre += f"s_add_u32 s{sXO}, s{sXO}, 128\ns_cmp_ge_u32 s{sXO}, 896\ns_cselect_b32 s{sXO}, 0, s{sXO}\n"
                def op(e=e):
                    if (c.NOLD or c.NOX) and ch >= 1: return
                    t = f"buffer_load_dwordx4 v{vX+e}, s[{sX}:{sX+3}], s{sXO} offen{c.XAUX} lds"
                    if e >= nxmin:
                        l = k.newlabel("L_xs")
                        k(f"s_cmp_ge_u32 s{sWAVE}, {nx - 4*nxmin}\ns_cbranch_scc1 {l}")
                        k(t); k.label(l)
                    elif e == 0:
                        k(f"s_mov_b64 exec, s[{sXE}:{sXE+1}]")
                        k.vmem(t, ('X', ch))
                        k("s_mov_b64 exec, -1")
                    else:
                        k.vmem(t, ('X', ch))
                ops.append((first, 2*ch, pre, op))
            return ops
        dq = wdma(0) + xdma(0) + wdma(1)
        for ch in range(1, 7):
            dq += xdma(ch) + wdma(2*ch) + wdma(2*ch + 1)
        def pop(n=1):
            for _ in range(n):
                e = dq.pop(0); k(e[2]); e[3]()
        self.start_x()
        pop(6)
        k(f"""s_lshl_b32 s{sT0}, s{sOCT}, 3
              s_add_u32 s{sT0}, s{sT0}, s{sT0+3}
              s_sub_u32 s{sT0}, s{sT0}, 8
              v_lshrrev_b32 v12, 3, v1
              v_add_u32 v13, s{sT0}, v12
              s_lshl_b32 s{sT0+1}, s{sT0+2}, 2
              v_lshrrev_b32 v12, 1, v12
              v_add_u32 v12, s{sT0+1}, v12
              v_and_b32 v14, 7, v1
              v_xor_b32 v12, v12, v14
              v_lshlrev_b32 v12, 4, v12
              s_mul_i32 s{sT0+1}, s{sPAR}, 896
              v_add_u32 v12, s{sT0+1}, v12
              s_movk_i32 s{sT0+2}, 1023
              s_movk_i32 s{sT0+3}, 1792
              s_cmp_eq_u32 s{sWAVE}, 0
              s_cselect_b32 s{sXE}, 0xffffff00, -1
              s_mov_b32 s{sXE+1}, -1""")
        for e in range(nxe):
            k(f"""v_add_u32 v14, {32*e}, v13
                  v_med3_i32 v14, v14, 0, s{sT0+2}
                  v_mad_u32_u24 v{vX+e}, v14, s{sT0+3}, v12""")
        pop(nxe)
        self.start_rest()
        k(f"""v_mov_b32 v{ONES}, 0x3f803f80
              v_and_b32 v13, 31, v0
              v_lshlrev_b32 v13, 2, v13
              v_add_u32 v13, {XB}, v13""")
        for sl in range(NX):
            k.ds(f"ds_write_b32 v13, v{ONES} offset:{sl*XSLOT}")
        k(f"""v_and_b32 v12, 15, v1
              v_lshrrev_b32 v13, 4, v1
              v_lshrrev_b32 v14, 1, v12
              v_xor_b32 v14, v14, v13
              v_lshlrev_b32 v14, 4, v14
              v_lshl_add_u32 v14, v12, 7, v14
              v_add_u32 v{vXR}, {XB}, v14
              v_xor_b32 v{vXR+1}, 64, v{vXR}
              v_lshlrev_b32 v14, 10, v13
              v_and_b32 v15, 1, v13
              v_xor_b32 v16, 1, v15
              v_mul_u32_u24 v16, 896, v16
              v_add_u32 v16, v14, v16
              v_lshl_add_u32 v14, v15, 7, v14
              v_bfe_u32 v15, v1, 2, 2
              v_mul_u32_u24 v15, 224, v15
              v_add_u32 v14, v14, v15
              v_and_b32 v15, 3, v1
              v_lshl_add_u32 v14, v15, 3, v14
              s_mul_i32 s{sT0}, s{sWAVE}, 56
              v_cmp_eq_u32 s[6:7], 3, v15
              v_add_u32 v{vWR}, s{sT0}, v14
              v_add_u32 v{vWR+1}, {2*WSLOT}, v{vWR}
              v_add_u32 v14, 32, v{vWR}
              v_cndmask_b32 v{vWR+2}, v14, v16, s[6:7]
              v_add_u32 v{vWR+3}, {2*WSLOT}, v{vWR+2}""")
        nw = [6]
        def weave():
            n = min(c.LNA, nw[0]); pop(n); nw[0] -= n
        self.ln(weave)
        pop(nw[0])
        FB = 4*NT + 24
        def fx(i, t): return (i & 1)*FB + 4*t
        def fw(i, sec, a): return (i & 1)*FB + 4*NT + 8*sec + 4*a
        def reads(i):
            ops = []
            ws = i % NW; xs = (i >> 1) % NX
            b = fx(i, 0)
            xr = lambda t: f"ds_read_b128 a[{fx(i,t)}:{fx(i,t)+3}], v{vXR + (i & 1)} offset:{xs*XSLOT + t*2048}"
            ops.append(xr(0))
            for sec in range(3):
                for a in range(2):
                    for h in range(2):
                        b = fw(i, sec, a) + 2*h
                        ops.append(f"ds_read_b64_tr_b16 a[{b}:{b+1}], v{vWR + 2*a + (ws >> 1)} offset:{(ws & 1)*WSLOT + (2*sec+h)*4096}")
            for t in range(1, NT): ops.append(xr(t))
            return ops
        def mfmas(i):
            ops = []
            for t in range(NT):
                x = f"a[{fx(i,t)}:{fx(i,t)+3}]"
                for sec in range(3):
                    for a in range(2):
                        w = f"a[{fw(i,sec,a)}:{fw(i,sec,a)+3}]"
                        d = (Q + 8*t + 4*a, K + 8*t + 4*a, (V1 if a else V0) + 4*t)[sec]
                        cin = "0" if i == 0 else f"v[{d}:{d+3}]"
                        A, B = (x, w) if sec == 2 else (w, x)
                        ops.append(f"v_mfma_f32_16x16x32_bf16 v[{d}:{d+3}], {A}, {B}, {cin}")
            return ops
        k.vwait(('X', 0))
        k("s_barrier")
        for r in reads(0): k.ds(r)
        self.stamp(3)
        SB = self.LDS_LN
        side = f"""s_lshl_b32 s{sT0}, s{sOCT}, 1
              s_sub_u32 s{sT0}, s{sT0}, 2
              v_and_b32 v12, 31, v1
              v_min_u32 v12, {4*NT-1}, v12
              v_add_u32 v12, s{sT0}, v12
              s_movk_i32 s{sT0+1}, 255
              v_med3_i32 v12, v12, 0, s{sT0+1}
              v_mul_u32_u24 v13, {c.FS}, v12
              v_add_u32 v24, {WS_FH}, v13
              v_lshrrev_b32 v13, 5, v1
              v_lshlrev_b32 v13, 13, v13
              v_lshl_add_u32 v25, v12, 4, v13
              s_lshl_b32 s0, s{sPAR}, 12
              s_add_u32 s0, s0, {WS_STATS}
              s_lshl_b32 s{sT0}, s{sWAVE}, 10
              s_add_u32 s{sT0}, s{sT0}, {SB}
              v_lshl_add_u32 v26, v1, 4, s{sT0}
              v_and_b32 v12, 15, v1
              v_lshl_add_u32 v34, v12, 2, s{sT0}
              v_lshrrev_b32 v13, 4, v1
              v_lshl_add_u32 v35, v13, 4, s{sT0}
              v_mov_b32 v{ONES+1}, v{ONES}
              v_mov_b32 v{ONES+2}, v{ONES}
              v_mov_b32 v{ONES+3}, v{ONES}
              v_mov_b32 v{V0-2}, 0
              v_mov_b32 v{V0-1}, 0
              v_mov_b32 v{V1-2}, 0
              v_mov_b32 v{V1-1}, 0
              s_mul_i32 s{sRING}, s{sWAVE}, {c.NR*4096}\n"""
        if duty: side += self.w_tr_code() + self.p2_setup_code()
        SEL = [6, 46, 48, 50]
        side += f"""v_lshrrev_b32 v12, 4, v1
              v_lshlrev_b32 v12, 2, v12
              v_and_b32 v13, 15, v1
              v_sub_u32 v12, v12, v13
              v_mov_b32 v14, 0xff800000
              s_min_u32 s{sT0}, s{sBLK}, 1
              s_sub_u32 s{sT0}, s{sT0}, 1
              s_mov_b32 s{sT0+1}, 0\n"""
        for r in range(4):
            side += f"""v_add_u32 v13, {r+7}, v12
                  v_cmp_gt_u32 s[{sT0+2}:{sT0+3}], 8, v13
                  v_cmp_lt_i32 s[{SEL[r]}:{SEL[r]+1}], 15, v13
                  v_cndmask_b32 v{MC+r}, v14, 0, s[{sT0+2}:{sT0+3}]
                  v_cndmask_b32 v{MC0+r}, v{MC+r}, v14, s[{sT0}:{sT0+1}]\n"""
        side += "v_mov_b32 v14, 0xffff\nv_mov_b32 v15, 0xffff0000\n"
        for h in range(2):
            side += f"""v_cndmask_b32 v{AP+h}, 0, v14, s[{SEL[2*h]}:{SEL[2*h]+1}]
                  v_cndmask_b32 v13, 0, v15, s[{SEL[2*h+1]}:{SEL[2*h+1]+1}]
                  v_or_b32 v{AP+h}, v{AP+h}, v13\n"""
        side += f"""v_bfe_u32 v12, v1, 3, 1
              v_lshrrev_b32 v13, 4, v1
              v_lshlrev_b32 v13, 7, v13
              v_and_b32 v14, 7, v1
              v_lshl_add_u32 v13, v14, 4, v13
              v_lshl_add_u32 v7, v12, 13, v13
              v_xor_b32 v12, 1, v12
              v_lshl_or_b32 v27, v12, 31, v7
              s_mul_i32 s1, s{sPAR}, {O_PAR}
              s_lshl_b32 s{sT0}, s{sOCT}, 13
              s_add_u32 s1, s1, s{sT0}
              s_lshl_b32 s{sT0}, s{sG}, 2
              s_add_u32 s{sT0}, s{sT0}, s{sWAVE}
              s_lshl_b32 s{sT0}, s{sT0}, 9
              s_add_u32 s1, s1, s{sT0}
              s_add_u32 s1, s1, {WS_O - 8192}\n"""
        side = [l.strip() for l in side.strip().split('\n')]
        for i in range(14):
            if i + 1 < 14:
                assert not dq or dq[0][1] > i + 1
                k.vwait(('W', i+1))
            if i == 0: k.vwait('hst')
            k.lwait_all()
            k("s_barrier")
            if i == 0: self.h_flag(17)
            quota = c.AQ
            rd = reads(i+1) if i + 1 < 14 else []
            mf = mfmas(i)
            gap = max(1, len(mf) // (quota + 1))
            for n, m in enumerate(mf):
                dm = None
                if n % gap == 1 % gap and quota and dq and dq[0][0] <= i:
                    dm = dq.pop(0); k(dm[2]); quota -= 1
                if not c.NOMFMA or i == 0: k(m)
                if dm: dm[3]()
                else:
                    if rd: k.ds(rd.pop(0))
                    if side and i >= 1:
                        k(side.pop(0))
                        if side and not rd: k(side.pop(0))
            for r in rd: k.ds(r)
            while dq and dq[0][1] <= i + 2:
                assert dq[0][0] <= i
                pop()
            if i == 10:
                assert not side and not dq, (len(side), len(dq))
                self.poll_issue(24, 28, 'Hpoll')
            if i == 11:
                self.poll_check(24, 28, 'Hpoll')
                k.vmem(f"buffer_load_dwordx4 v[16:19], v25, s[{sWS}:{sWS+3}], s0 offen sc1", 'st')
            if i == 12:
                k.vwait('st')
                k.ds("ds_write_b128 v26, v[16:19]")
        self.stamp(4)
        if duty:
            self.red_free = True
            self.q_p2()
            self.tick(8, reads=0)
        fg = self.fg
        CSV = 8
        ck = lambda h: (28, 30, 32, 36)[h >> 1]
        sset = ((24, 12, 16), (V0 - 4, 2, MC0 + 4))
        assert MC0 + 8 <= (224 if duty else 256)
        def sread(t):
            p, R, N = sset[t & 1]
            k.ds(f"ds_read2_b32 v[{p}:{p+1}], v34 offset0:{16*t} offset1:{16*t + 128}", ('s', t))
            k.ds(f"ds_read_b128 v[{R}:{R+3}], v35 offset:{64*t}", ('s', t))
            k.ds(f"ds_read_b128 v[{N}:{N+3}], v35 offset:{64*t + 512}", ('s', t))
        sread(0)
        for r in range(8):
            fg(f"v_mov_b32_dpp v{ck(r) + (r & 1)}, v{K+r} row_newbcast:0 row_mask:0xf bank_mask:0xf")
            fg(f"v_mov_b32_dpp v{CSQ+r}, v{Q+r} row_newbcast:0 row_mask:0xf bank_mask:0xf")
        fg(f"""v_mov_b32 v{CSV}, v{V0}
              v_mov_b32 v2, v{V0}
              v_mov_b32 v{CSV+1}, v{V1}
              v_mov_b32 v3, v{V1}
              v_permlane16_swap_b32 v{CSV}, v2
              v_permlane16_swap_b32 v{CSV+1}, v3
              v_mov_b32 v2, v{CSV}
              v_mov_b32 v3, v{CSV+1}
              s_nop 0
              v_permlane32_swap_b32 v{CSV}, v2
              v_permlane32_swap_b32 v{CSV+1}, v3""")
        qs = (28 ** -0.5) * math.log2(math.e)
        SP = lambda t: Q + 8*t + 4
        SC = lambda t: K + 8*t + 4
        def smf(t):
            if t: fg(f"v_mfma_f32_16x16x32_bf16 v[{SP(t)}:{SP(t)+3}], v[{K+8*(t-1)}:{K+8*(t-1)+3}], v[{Q+8*t}:{Q+8*t+3}], 0")
            m = MC if t else MC0
            fg(f"v_mfma_f32_16x16x32_bf16 v[{SC(t)}:{SC(t)+3}], v[{K+8*t}:{K+8*t+3}], v[{Q+8*t}:{Q+8*t+3}], v[{m}:{m+3}]")
        for t in range(NT):
            if t + 1 < NT: sread(t + 1)
            k.lwait(('s', t))
            p, R, N = sset[t & 1]
            for h in range(0, 8, 2):
                d = K + 8*t + h
                fg(f"v_pk_fma_f32 v[{d}:{d+1}], v[{ck(h)}:{ck(h)+1}], v[{p}:{p+1}], v[{d}:{d+1}] op_sel:[0,1,0] op_sel_hi:[1,1,1]")
            for h in range(0, 8, 2):
                d = Q + 8*t + h
                fg(f"v_pk_fma_f32 v[{d}:{d+1}], v[{CSQ+h}:{CSQ+h+1}], v[{p}:{p+1}], v[{d}:{d+1}] op_sel:[0,1,0] op_sel_hi:[1,1,1]")
            for a, VB in enumerate((V0, V1)):
                for h in (0, 2):
                    d = VB + 4*t + h
                    sel = "op_sel:[0,1,0] op_sel_hi:[1,1,1]" if a else "op_sel_hi:[1,0,1]"
                    fg(f"v_pk_fma_f32 v[{d}:{d+1}], v[{N+h}:{N+h+1}], v[{CSV}:{CSV+1}], v[{d}:{d+1}] {sel}")
            for h in range(0, 8, 2):
                d = K + 8*t + h
                fg(f"v_pk_mul_f32 v[{d}:{d+1}], v[{d}:{d+1}], v[{p}:{p+1}] op_sel_hi:[1,0]")
            for a, VB in enumerate((V0, V1)):
                for h in (0, 2):
                    d = VB + 4*t + h
                    fg(f"v_pk_mul_f32 v[{d}:{d+1}], v[{d}:{d+1}], v[{R+h}:{R+h+1}]")
            fg(f"v_mul_f32 v{RQ(t)}, {f2u(qs):#x}, v{p}")
            if t: smf(t - 1)
            for h in range(4):
                fg(f"v_cvt_pk_bf16_f32 v{Q+8*t+h}, v{Q+8*t+2*h}, v{Q+8*t+2*h+1}")
            for h in range(4):
                fg(f"v_cvt_pk_bf16_f32 v{K+8*t+h}, v{K+8*t+2*h}, v{K+8*t+2*h+1}")
            for a, VB in enumerate((V0, V1)):
                for h in range(2):
                    fg(f"v_cvt_pk_bf16_f32 v{VB+2*t+h}, v{VB+4*t+2*h}, v{VB+4*t+2*h+1}")
        smf(NT - 1)
        TS = range(NT)
        MX = lambda t: RQ(t) + 1
        for t in TS:
            if t:
                for r in range(4):
                    fg(f"v_cndmask_b32 v{SC(t)+r}, v{SC(t)+r}, v{SP(t)+r}, s[{SEL[r]}:{SEL[r]+1}]")
            fg(f"v_max3_f32 v{MX(t)}, v{SC(t)}, v{SC(t)+1}, v{SC(t)+2}")
            fg(f"v_max_f32 v{MX(t)}, v{MX(t)}, v{SC(t)+3}")
        def xmax(g, tmp):
            a, b = MX(g[0]), MX(g[1])
            o = [f"v_permlane16_swap_b32 v{a}, v{b}", f"v_max_f32 v{a}, v{a}, v{b}"]
            if len(g) == 2:
                o += [f"v_mov_b32 v{b}, v{a}", f"v_permlane32_swap_b32 v{a}, v{b}", f"v_max_f32 v{a}, v{a}, v{b}"]
            else:
                cc = MX(g[2]); d = MX(g[3]) if len(g) == 4 else tmp
                if len(g) == 3: o = [f"v_mov_b32 v{d}, v{cc}"] + o
                o += [f"v_permlane16_swap_b32 v{cc}, v{d}", f"v_max_f32 v{cc}, v{cc}, v{d}",
                      f"v_permlane32_swap_b32 v{a}, v{cc}", f"v_max_f32 v{a}, v{a}, v{cc}",
                      f"v_mov_b32 v{cc}, v{a}", f"v_permlane32_swap_b32 v{a}, v{cc}"]
                if len(g) == 4: o += [f"v_mov_b32 v{d}, v{cc}"]
            o += [f"v_mov_b32 v{b}, v{a}"]
            if len(g) == 4: o += [f"v_permlane16_swap_b32 v{cc}, v{d}"]
            o += [f"v_permlane16_swap_b32 v{a}, v{b}"]
            return o
        g1, g2 = xmax(list(TS)[:4], 2), xmax(list(TS)[4:], 3)
        while g1 or g2:
            if g1: fg(g1.pop(0))
            if g2: fg(g2.pop(0))
        for t in TS: fg(f"v_mul_f32 v{MX(t)}, -v{MX(t)}, v{RQ(t)}")
        for t in TS:
            for h in (0, 2):
                fg(f"v_pk_fma_f32 v[{SC(t)+h}:{SC(t)+h+1}], v[{SC(t)+h}:{SC(t)+h+1}], v[{RQ(t)}:{RQ(t)+1}], v[{RQ(t)}:{RQ(t)+1}] op_sel:[0,0,1] op_sel_hi:[1,0,1]")
        def pv(t):
            P = Q + 8*t
            return [f"v_mfma_f32_16x16x32_bf16 v[{K+8*t}:{K+8*t+3}], v[{ONES}:{ONES+3}], v[{P}:{P+3}], 0",
                    f"v_mfma_f32_16x16x32_bf16 v[{SP(t)}:{SP(t)+3}], v[{V0+2*(t-1)}:{V0+2*(t-1)+3}], v[{P}:{P+3}], 0",
                    f"v_mfma_f32_16x16x32_bf16 v[{SC(t)}:{SC(t)+3}], v[{V1+2*(t-1)}:{V1+2*(t-1)+3}], v[{P}:{P+3}], 0"]
        pend = []
        for t in TS:
            P = Q + 8*t
            for r in range(4):
                fg(f"v_exp_f32 v{SC(t)+r}, v{SC(t)+r}")
                if pend and r: fg(pend.pop(0))
            for h in range(2):
                fg(f"v_cvt_pk_bf16_f32 v{P+2+h}, v{SC(t)+2*h}, v{SC(t)+2*h+1}")
            for h in range(2):
                fg(f"v_and_b32 v{P+h}, v{AP+h}, v{P+2+h}" if t else f"v_mov_b32 v{P+h}, 0")
            if t:
                for h in range(2):
                    fg(f"v_xor_b32 v{P+2+h}, v{P+h}, v{P+2+h}")
            pend = pv(t)
        for t in TS:
            if t == NT - 1:
                while pend: fg(pend.pop(0))
            fg(f"v_rcp_f32 v{K+8*t}, v{K+8*t}")
            if pend and t: fg(pend.pop(0))
        for t in TS:
            P = Q + 8*t
            for b in (SP(t), SP(t)+2, SC(t), SC(t)+2):
                k(f"v_pk_mul_f32 v[{b}:{b+1}], v[{b}:{b+1}], v[{K+8*t}:{K+8*t+1}] op_sel_hi:[1,0]")
            k(f"""v_cvt_pk_bf16_f32 v{P}, v{SP(t)}, v{SP(t)+1}
                  v_cvt_pk_bf16_f32 v{P+1}, v{SP(t)+2}, v{SP(t)+3}
                  v_cvt_pk_bf16_f32 v{P+2}, v{SC(t)}, v{SC(t)+1}
                  v_cvt_pk_bf16_f32 v{P+3}, v{SC(t)+2}, v{SC(t)+3}""")
            k.vmem(f"buffer_store_dwordx4 v[{P}:{P+3}], v{7 if t else 27}, s[{sWS}:{sWS+3}], s1 offen sc1", 'ost')
            k(f"s_add_u32 s1, s1, 16384")
        self.stamp(5)
        if duty:
            assert len(self.vq) > c.UPOS + 9
            self.tick(8)
        k.vwait('ost')
        k("s_barrier")
        self.o_flag(17)
        self.stamp(6)
        if duty: self.to_p2()
        else: k("s_branch L_fin")

    def build(self):
        k, c = self.k, self.c
        self.prologue()
        base_vm = list(k.vm)
        k(f"""s_and_b32 s{sT0+2}, s{sXCD}, 1
              s_mul_i32 s{sT0+1}, s{sT0+2}, 6
              s_sub_u32 s{sT0+1}, 24, s{sT0+1}
              s_cmp_ge_u32 s{sIDX}, s{sT0+1}
              s_cbranch_scc1 L_attn""")
        if c.SKIPM:
            self.bg_reset(); self.start_x(); self.start_rest(); self.ln(); k.vwait('hst'); k("s_barrier"); self.h_flag(17); k("s_branch L_fin")
        else: self.m1()
        k.label("L_attn")
        k(f"""s_bfe_u32 s{sPAR}, s{sXCD}, 0x10001
              s_lshr_b32 s{sG}, s{sXCD}, 2
              s_lshl_b32 s{sG}, s{sG}, 1
              s_and_b32 s{sT0}, s{sIDX}, 1
              s_add_u32 s{sG}, s{sG}, s{sT0}
              s_lshl_b32 s{sT0+2}, s{sT0+2}, 1
              s_cmp_ge_u32 s{sIDX}, 28
              s_cbranch_scc1 L_pure
              s_sub_u32 s{sBLK}, s{sIDX}, s{sT0+1}
              s_lshr_b32 s{sBLK}, s{sBLK}, 1
              s_add_u32 s{sBLK}, s{sBLK}, s{sT0+2}
              s_mul_i32 s{sAHI}, s{sBLK}, 11
              s_add_u32 s{sAHI}, s{sAHI}, 52
              s_add_u32 s{sBLK}, s{sBLK}, 4""")
        k.vm = list(base_vm)
        self.attn(6, True)
        k.label("L_pure")
        k(f"""s_bfe_u32 s{sBLK}, s{sIDX}, 0x10001
              s_add_u32 s{sBLK}, s{sBLK}, s{sT0+2}
              s_mul_i32 s{sAHI}, s{sBLK}, 13""")
        k.vm = list(base_vm)
        self.attn(7, False)
        self.p2()
        k.label("L_fin")
        if c.STAMPS:
            k("s_waitcnt vmcnt(0)")
            self.stamp(10)
            k("s_waitcnt lgkmcnt(0)")
            for i in range(22): k(f"v_mov_b32 v{8+i}, s{sSTAMP+i}")
            k(f"""s_lshl_b32 s{sT0}, s{sWG}, 2
                  s_add_u32 s{sT0}, s{sT0}, s{sWAVE}
                  s_lshl_b32 s{sT0}, s{sT0}, 7
                  s_add_u32 s{sT0}, s{sT0}, {WS_TS}
                  v_cmp_eq_u32 vcc, 0, v1
                  v_bfrev_b32 v2, 1
                  v_mov_b32 v30, 0
                  v_mov_b32 v31, 0
                  v_cndmask_b32 v2, v2, 0, vcc""")
            for i in range(6):
                k(f"buffer_store_dwordx4 v[{8+4*i}:{11+4*i}], v2, s[{sWS}:{sWS+3}], s{sT0} offen offset:{16*i}")
        if c.DIAG >= 0:
            k(f"""s_cmp_lg_u32 s{sWG}, {c.DIAGWG}
                  s_cbranch_scc1 L_end
                  s_sub_u32 s4, s{sSTAMP+2*c.DIAG}, s{sSTAMP}
                  {'s_lshr_b32 s4, s4, 1' if c.CYC else 's_mul_i32 s4, s4, 10'}
                  s_min_u32 s4, s4, 60000
                  s_add_u32 s4, s4, 6000""")
            if c.CYC: k(f"s_memrealtime s[{sSTAMP}:{sSTAMP+1}]\ns_waitcnt lgkmcnt(0)")
            k.label("L_diag")
            k(f"""s_memrealtime s[6:7]
                  s_waitcnt lgkmcnt(0)
                  s_sub_u32 s5, s6, s{sSTAMP}
                  s_cmp_lt_u32 s5, s4
                  s_cbranch_scc1 L_diag""")
        k.label("L_end")
        k("s_endpgm")
        lines, nins = hazard_fix(k.lines)
        hdr = open(os.path.join(os.path.dirname(os.path.abspath(__file__)), "..", "cdna_kernels", NAME + ".s.ref")).read().split("; Override launch")[0]
        out = hdr
        out += f"; @launch grid=(256,1,1) block=(256,1,1) lds={self.LDS_SIZE}\n"
        out += f'.amdgcn_target "amdgcn-amd-amdhsa--gfx950"\n.text\n.globl {NAME}_kernel\n.p2align 8\n.type {NAME}_kernel,@function\n{NAME}_kernel:\n'
        body = "\n".join(l if l.endswith(":") else "    " + l for l in lines)
        body = body.replace("CODE_BYTES", "L_end-L_pc")
        out += body + "\n"
        out += f""".section .rodata,"a"
.p2align 6
.amdhsa_kernel {NAME}_kernel
  .amdhsa_next_free_vgpr 512
  .amdhsa_next_free_sgpr 102
  .amdhsa_accum_offset 256
  .amdhsa_group_segment_fixed_size 0
  .amdhsa_kernarg_size 88
  .amdhsa_user_sgpr_count 2
  .amdhsa_user_sgpr_kernarg_segment_ptr 1
  .amdhsa_system_sgpr_workgroup_id_x 1
.end_amdhsa_kernel
"""
        return out, nins, len(lines)

if __name__ == "__main__":
    c = Cfg()
    outp = sys.argv[1]
    for a in sys.argv[2:]:
        kk, v = a.split("=", 1)
        old = getattr(c, kk)
        if isinstance(old, bool): v = v not in ("0", "False")
        elif isinstance(old, int): v = int(v, 0)
        else: v = (" " + v.replace("+", " ")) if v else ""
        setattr(c, kk, v)
    txt, nins, nl = Gen(c).build()
    open(outp, "w").write(txt)
    print(f"wrote {outp}: {nl} lines, {nins} hazard pads")
```

```python
import sys, struct, math, os
sys.path.insert(0, os.path.dirname(os.path.abspath(__file__)))
from kb import *

NAME = "recurrent_scan__sliding_local_dilated__mixer_token_mlp__prompt"
S, D, F = 2048, 448, 1792

class Cfg:
    FS = 16
    NR = 4
    LAG = 3
    PD1 = 12
    PD2 = 12
    LNW = 1
    HLAG = 8
    PRE0 = 8
    HPOS = 8
    UPOS = 8
    OPOS = 10
    S1W = 0xdb8530
    S1H = 0
    S2W = 0
    S2U = 0
    SAB = 3
    SAG = 0
    TW0 = 7
    E1A = 2
    ULAG = 8
    PFJ = 3
    EW2 = 4
    PFWO = 2
    PFWI = 6
    PFP = 0x3e00
    AKEEP = 20
    PFO = -1
    TICK = 60
    WAUX = ""
    QAUX = ""
    XAUX = ""
    OAUX = ""
    LNA = 0
    PFI = 10
    PFD = 0
    APRE = 10
    AMID = 2
    SIDEH = 100
    ADEEP = 3
    SIDE0 = 60
    SIDE1 = 100
    HI = -1
    STI = 5
    AQ = 11
    STAMPS = False
    SMODE = 0
    CYC = False
    SPIN = 200000
    CODEPF = True
    DIAG = -1
    DIAGWG = 0
    SKIPA = False
    SKIPM = False
    NOP2 = False
    NOMFMA = False
    NOADV = False
    NOLD = False
    NOX = False

WS_EPOCH = 0
WS_FH = 0x1000
WS_FU = 0x9000
WS_FO = 0xF000
WS_STATS = 0x14000
WS_TS = 0x18000
WS_HT = 0x40000
WS_U = 0x240000
WS_O = 0x440000
O_PAR = 132 * 8192
WS_END = 0x680000
KS = 28 * 1024
OOB = 0x80000000

def f2u(x): return struct.unpack('<I', struct.pack('<f', x))[0]

sWG, sWAVE = 2, 3
sX, sWQKV, sWO, sW1, sW2, sB1, sB2, sOUT, sWS = 8, 12, 16, 20, 24, 28, 32, 36, 40
sTAG = 44
sXCD, sIDX = 46, 47
sST, sDJ = 48, 49
sFT, sJ = 50, 51
sRING = 52
sWOFF, sWLO, sWHI = 53, 54, 55
sAOFF, sALO, sAHI = 56, 57, 58
sW2OFF, sW2LO, sW2HI = 59, 60, 61
sG, sPAR, sBLK = 62, 63, 64
sSPIN = 65
sUOFF, sULO, sUHI, sWOOFF, sWOM0, sXOFF, sB2OFF, sOOFF = 66, 67, 68, 69, 70, 71, 72, 73
sT0 = 74
sSTAMP = 80

vTR, vW2 = 248, 252
vWOR = 244
vXD = 236
vWOD, vXO, vB2, vUF, vOFL, vOO, vL16 = 224, 225, 227, 228, 229, 230, 231
vPOLL = 232
vFL = 233

LN_PITCH = 960

def cost(line):
    mn = line.split()[0]
    if mn.startswith('v_mfma'): return 16
    if mn in TRANS or mn.startswith('v_permlane'): return 8
    if mn.startswith('ds_write_b128'): return 50
    if mn.startswith('ds_read_b128'): return 16
    if mn.startswith('s_'): return 4
    return 5

class Gen:
    def __init__(self, c):
        self.c = c
        self.k = KB()
        self.LDS_RED = 4 * c.NR * 4096
        self.LDS_LN = 153600
        self.LDS_SIZE = 163840
        assert self.LDS_RED + 61440 <= self.LDS_LN
        self.bg_reset()

    def stamp(self, i, mode=0):
        if self.c.STAMPS and (mode == self.c.SMODE or i in (0, 10)):
            self.k(f"{'s_memtime' if self.c.CYC else 's_memrealtime'} s[{sSTAMP+2*i}:{sSTAMP+2*i+1}]")

    def bg_reset(self):
        self.vq = []
        self.rq = []
        self.nv = 0
        self.nq = 0
        self.budget = 0
        self.keep = 0
        self.reads_done = set()
    def q(self, op):
        self.vq.append(op); self.nq += 1
    def tick(self, n=1, reads=2):
        for _ in range(n):
            if self.vq:
                self.vq.pop(0)(); self.nv += 1
            for _ in range(reads):
                if self.rq and (self.rq[0][0] <= self.nv or not self.vq):
                    self.rq.pop(0)[1]()
    def tick_until(self, count):
        while self.nv < count and self.vq: self.tick()
    def drain_reads(self):
        while self.rq: self.rq.pop(0)[1]()
    def fg(self, text, ds=None, isds=False):
        for l in text.strip('\n').split('\n'):
            l = l.strip()
            if not l: continue
            if isds: self.k.ds(l, ds)
            else: self.k(l)
            self.budget += cost(l)
            if self.budget >= self.c.TICK:
                self.budget -= self.c.TICK
                if len(self.vq) > max(self.keep, self.c.UPOS + 1): self.tick()

    def q_wstream(self, ns, srd, vq, soff, slo, shi, stride, tag, inserts=None):
        k, c = self.k, self.c
        inserts = inserts or {}
        for n in range(ns):
            slot = n % c.NR
            for qq in range(4):
                if 4*n + qq in inserts: self.q(inserts[4*n + qq])
                def op(n=n, qq=qq, slot=slot):
                    if qq == 0:
                        if n >= c.NR:
                            assert (tag, n - c.NR) in self.reads_done
                            k.lwait((tag, n - c.NR))
                        k(f"s_add_u32 m0, s{sRING}, {slot*16384}")
                        if n: k(f"s_add_u32 s{soff}, s{soff}, {32*stride}\ns_cmp_ge_u32 s{soff}, s{shi}\ns_cselect_b32 s{soff}, s{slo}, s{soff}")
                    off = f" offset:{qq*1024}" if qq else ""
                    k.vmem(f"buffer_load_dwordx4 v{vq+qq}, s[{srd}:{srd+3}], s{soff} offen{off}{c.WAUX} lds", (tag, n))
                self.q(op)
            for a in range(4):
                for h in range(2):
                    def rd(n=n, a=a, h=h, slot=slot):
                        k.vwait((tag, n))
                        b = 16*n + 4*a + 2*h
                        k.ds(f"ds_read_b64_tr_b16 a[{b}:{b+1}], v{vTR+a} offset:{slot*16384 + h*2048}", (tag, n))
                        if a == 3 and h == 1: self.reads_done.add((tag, n))
                    self.rq.append((self.nq + 4*(c.LAG - 1) + 1, rd))

    def prologue(self):
        k, c = self.k, self.c
        self.stamp(0)
        for reg, off in ((sX, 0), (sW1, 32), (sWQKV, 8), (sWS, 80), (sB1, 40)):
            k(f"s_load_dwordx2 s[{reg}:{reg+1}], s[0:1], {off}")
        k(f"""s_cmp_ge_u32 s{sWG}, 256
              s_cbranch_scc1 L_end
              s_lshr_b32 s{sIDX}, s{sWG}, 3
              v_lshrrev_b32 v2, 6, v0""")
        if c.CODEPF:
            k(f"s_getpc_b64 s[{sT0}:{sT0+1}]")
            k.label("L_pc")
            k(f"""v_lshrrev_b32 v7, 4, v0
                  v_lshl_add_u32 v7, v7, 5, s{sIDX}
                  v_lshlrev_b32 v7, 7, v7
                  v_min_u32 v7, CODE_BYTES, v7""")
            k.vmem(f"global_load_dword v39, v7, s[{sT0}:{sT0+1}]", 'cpf')
        k(f"""v_readfirstlane_b32 s{sWAVE}, v2
              s_and_b32 s{sXCD}, s{sWG}, 7
              v_and_b32 v1, 63, v0""")

    def start_x(self):
        k, c = self.k, self.c
        k(f"""v_lshrrev_b32 v12, 5, v0
              s_lshl_b32 s{sT0+4}, s{sWG}, 3
              v_and_b32 v13, 31, v0
              v_add_u32 v12, s{sT0+4}, v12
              v_cmp_gt_u32 s[{sT0+4}:{sT0+5}], 28, v13
              v_mul_u32_u24 v12, 896, v12
              v_bfrev_b32 v14, 1
              v_lshl_add_u32 v12, v13, 4, v12
              s_mov_b32 s{sX+2}, {S*D*2}
              s_mov_b32 s{sX+3}, 0x20000
              v_cndmask_b32 v12, v14, v12, s[{sT0+4}:{sT0+5}]
              s_mov_b32 s{sW1+2}, {S*F*2}
              s_mov_b32 s{sW1+3}, 0x20000
              s_mov_b32 s{sWQKV+2}, {D*3*D*2}
              s_mov_b32 s{sWQKV+3}, 0x20000
              s_waitcnt lgkmcnt(0)""")
        k.vmem(f"buffer_load_dwordx4 v[40:43], v12, s[{sX}:{sX+3}], 0 offen{c.XAUX}", 'lnx')
        k.vmem(f"buffer_load_dwordx4 v[44:47], v12, s[{sX}:{sX+3}], 0 offen offset:448{c.XAUX}", 'lnx')

    def start_rest(self):
        k, c = self.k, self.c
        k(f"s_load_dword s{sTAG}, s[{sWS}:{sWS+1}], {WS_EPOCH}")
        for reg, off in ((sWO, 16), (sW2, 48), (sB2, 56), (sOUT, 64)):
            k(f"s_load_dwordx2 s[{reg}:{reg+1}], s[0:1], {off}")
        for reg, n in ((sWS, WS_END), (sWO, D*D*2), (sW2, F*S*2), (sB2, S*2), (sOUT, S*D*2)):
            k(f"s_mov_b32 s{reg+2}, {n}\ns_mov_b32 s{reg+3}, 0x20000")
        if c.STAMPS:
            for i in range(1, 11): k(f"s_mov_b64 s[{sSTAMP+2*i}:{sSTAMP+2*i+1}], 0")

    def ln(self, sL, SD=48, weave=lambda: None, early=lambda: None):
        k, c = self.k, self.c
        k(f"""v_lshrrev_b32 v76, 5, v0
              v_mul_u32_u24 v72, {LN_PITCH}, v76
              v_and_b32 v77, 31, v0
              v_lshl_add_u32 v72, v77, 4, v72
              v_add_u32 v72, {self.LDS_LN}, v72
              v_lshrrev_b32 v73, 5, v1
              v_lshlrev_b32 v73, 4, v73
              s_lshl_b32 s{sL}, s{sWAVE}, 2
              s_add_u32 s{sL}, s{sL}, {self.LDS_LN + 7680}
              v_add_u32 v73, s{sL}, v73
              v_bfe_u32 v76, v1, 2, 2
              v_mul_u32_u24 v76, {LN_PITCH}, v76
              v_lshrrev_b32 v77, 4, v1
              v_lshl_add_u32 v76, v77, 5, v76
              v_and_b32 v78, 3, v1
              v_lshl_add_u32 v76, v78, 3, v76
              s_lshl_b32 s{sL}, s{sWAVE}, 7
              s_add_u32 s{sL}, s{sL}, {self.LDS_LN}
              v_add_u32 v74, s{sL}, v76
              v_and_b32 v79, 15, v1
              v_lshlrev_b32 v79, 4, v79
              v_lshl_add_u32 v75, v77, 10, v79
              s_lshr_b32 s{sL}, s{sWG}, 2
              s_mul_i32 s{sL}, s{sL}, {KS}
              s_and_b32 s{sL+1}, s{sWG}, 3
              s_lshl_b32 s{sL+1}, s{sL+1}, 8
              s_add_u32 s{sL}, s{sL}, s{sL+1}
              s_lshl_b32 s{sL+1}, s{sWAVE}, 12
              s_add_u32 s{sL}, s{sL}, s{sL+1}
              s_add_u32 s{sL}, s{sL}, {WS_HT}
              s_add_u32 s{sL+1}, s{sL}, 16384
              s_mov_b32 s{sL+2}, 0x3f803f80""")
        early()
        k.vwait('lnx')
        self.stamp(1)
        X = 40
        k(f"v_dot2_f32_bf16 v76, v{X}, s{sL+2}, 0\nv_dot2_f32_bf16 v77, v{X}, v{X}, 0")
        for i in range(1, 8):
            k(f"v_dot2_f32_bf16 v76, v{X+i}, s{sL+2}, v76\nv_dot2_f32_bf16 v77, v{X+i}, v{X+i}, v77")
        un = []
        for i in range(8):
            un.append(f"v_lshlrev_b32 v{48+2*i}, 16, v{X+i}")
            un.append(f"v_and_b32 v{49+2*i}, 0xffff0000, v{X+i}")
        def fill(n):
            for _ in range(n):
                if un: k(un.pop(0))
        weave()
        fill(3)
        for m in ("quad_perm:[1,0,3,2]", "quad_perm:[2,3,0,1]", "row_half_mirror", "row_mirror"):
            k(f"v_add_f32_dpp v76, v76, v76 {m} row_mask:0xf bank_mask:0xf")
            k(f"v_add_f32_dpp v77, v77, v77 {m} row_mask:0xf bank_mask:0xf")
            fill(1)
        weave()
        k("v_mov_b32 v78, v76\nv_mov_b32 v79, v77")
        fill(2)
        k("v_permlane16_swap_b32 v76, v78\nv_permlane16_swap_b32 v77, v79")
        fill(1)
        k(f"""v_add_f32 v76, v76, v78
              v_add_f32 v77, v77, v79
              v_mul_f32 v76, {f2u(1.0/D):#x}, v76
              v_mul_f32 v77, {f2u(1.0/D):#x}, v77
              v_fma_f32 v77, -v76, v76, v77
              v_max_f32 v77, 0, v77
              v_add_f32 v78, {f2u(1e-5):#x}, v77
              v_rsq_f32 v78, v78""")
        fill(2)
        k(f"""v_mul_f32 v79, v78, v78
              v_mov_b32 v80, {f2u(1e-5):#x}
              v_fmac_f32 v80, v77, v79
              v_rsq_f32 v80, v80
              v_sub_f32 v79, 0, v76""")
        fill(16)
        k("v_mul_f32 v82, v78, v80\nv_mul_f32 v83, v79, v82")
        k.ds("ds_write2_b32 v73, v78, v79 offset1:8")
        weave()
        for hf in range(2):
            for i in range(4*hf, 4*hf+4):
                k(f"v_pk_fma_f32 v[{48+2*i}:{49+2*i}], v[{48+2*i}:{49+2*i}], v[82:83], v[82:83] op_sel:[0,0,1] op_sel_hi:[1,0,1]")
            for i in range(4*hf, 4*hf+4):
                k(f"v_cvt_pk_bf16_f32 v{X+i}, v{48+2*i}, v{49+2*i}")
            k.ds(f"ds_write_b128 v72, v[{X+4*hf}:{X+4*hf+3}] offset:{448*hf}")
        weave()
        k.lwait_all()
        k("s_barrier")
        l3, lj = k.newlabel("L_ln3"), k.newlabel("L_lnj")
        k(f"""ds_read_b64_tr_b16 v[{SD}:{SD+1}], v74
              ds_read_b64_tr_b16 v[{SD+2}:{SD+3}], v74 offset:{4*LN_PITCH}
              s_cmp_eq_u32 s{sWAVE}, 3
              s_cbranch_scc1 {l3}
              ds_read_b64_tr_b16 v[{SD+4}:{SD+5}], v74 offset:512
              ds_read_b64_tr_b16 v[{SD+6}:{SD+7}], v74 offset:{4*LN_PITCH + 512}
              v_mov_b32 v80, v75
              s_branch {lj}""")
        k.label(l3)
        k(f"""v_and_b32 v78, 3, v1
              v_lshlrev_b32 v78, 4, v78
              v_add_u32 v78, {self.LDS_LN + 7680}, v78
              ds_read_b128 v[{SD+4}:{SD+7}], v78
              v_lshlrev_b32 v80, 12, v1
              v_cmp_gt_u32 vcc, 4, v1
              v_bfrev_b32 v81, 1
              s_lshl_b32 s{sL+1}, s{sWG}, 4
              s_add_u32 s{sL+1}, s{sL+1}, {WS_STATS}
              v_cndmask_b32 v80, v81, v80, vcc""")
        k.label(lj)
        k(f"""s_mul_i32 s{sTAG+1}, s{sTAG}, 0x2c9277b5
              s_mul_i32 s{sTAG}, s{sTAG}, 0x9e3779b1
              s_add_u32 s{sTAG+1}, s{sTAG+1}, 0x5bd1e995
              s_add_u32 s{sTAG}, s{sTAG}, 0x7f4a7c15
              s_waitcnt lgkmcnt(0)""")
        k.vmem(f"buffer_store_dwordx4 v[{SD}:{SD+3}], v75, s[{sWS}:{sWS+3}], s{sL} offen sc1", 'hst')
        k.vmem(f"buffer_store_dwordx4 v[{SD+4}:{SD+7}], v80, s[{sWS}:{sWS+3}], s{sL+1} offen sc1", 'hst')

    def flag(self, addr_code, vt, epoch=False, so=sT0):
        k = self.k
        skip = k.newlabel("L_flag")
        k(f"s_cmp_lg_u32 s{sWAVE}, 0\ns_cbranch_scc1 {skip}")
        k(f"""v_cmp_eq_u32 vcc, 0, v1
              v_bfrev_b32 v{vt}, 1
              v_mov_b32 v{vt+1}, s{sTAG}
              v_mov_b32 v{vt+2}, s{sTAG+1}
              v_cndmask_b32 v{vt}, v{vt}, 0, vcc""")
        k(addr_code)
        k(f"buffer_store_dwordx2 v[{vt+1}:{vt+2}], v{vt}, s[{sWS}:{sWS+3}], s{so} offen sc1")
        if epoch:
            k(f"s_cmp_lg_u32 s{sWG}, 0\ns_cbranch_scc1 {skip}")
            k(f"buffer_store_dword v{vt+1}, v{vt}, s[{sWS}:{sWS+3}], 0 offen sc1")
        k.label(skip)

    def h_flag(self, vt):
        self.flag(f"s_mul_i32 s{sSPIN}, s{sWG}, {self.c.FS}\ns_add_u32 s{sSPIN}, s{sSPIN}, {WS_FH}", vt, so=sSPIN)
        self.stamp(2)

    def poll_issue(self, vaddr, vt, tok):
        self.k.vmem(f"buffer_load_dwordx2 v[{vt}:{vt+1}], v{vaddr}, s[{sWS}:{sWS+3}], 0 offen sc1", tok)

    def poll_check(self, vaddr, vt, tok):
        k, c = self.k, self.c
        lp, done = k.newlabel("L_poll"), k.newlabel("L_polled")
        k.vwait(tok)
        k(f"""v_cmp_ne_u64 vcc, s[{sTAG}:{sTAG+1}], v[{vt}:{vt+1}]
              s_mov_b32 s{sSPIN}, 0
              s_cbranch_vccz {done}""")
        k.label(lp)
        k(f"""buffer_load_dwordx2 v[{vt}:{vt+1}], v{vaddr}, s[{sWS}:{sWS+3}], 0 offen sc1
              s_waitcnt vmcnt(0)
              v_cmp_ne_u64 vcc, s[{sTAG}:{sTAG+1}], v[{vt}:{vt+1}]
              s_add_u32 s{sSPIN}, s{sSPIN}, 1
              s_cbranch_vccz {done}
              s_cmp_lt_u32 s{sSPIN}, {c.SPIN}
              s_cbranch_scc1 {lp}""")
        k.label(done)

    def w_addr_code(self, vq, stride, t=12):
        s = f"""v_lshrrev_b32 v{t}, 3, v1
              v_lshrrev_b32 v{t+1}, 5, v1
              v_and_b32 v{t+2}, 3, v{t}
              v_lshl_add_u32 v{t+1}, v{t+1}, 3, v{t+2}
              v_mul_u32_u24 v{t+1}, {stride}, v{t+1}
              v_and_b32 v{t+2}, 6, v{t}
              v_and_b32 v{t+3}, 7, v1
              v_xor_b32 v{t+2}, v{t+2}, v{t+3}
              v_lshl_add_u32 v{vq}, v{t+2}, 4, v{t+1}\n"""
        for qq in range(1, 4):
            h, G = qq >> 1, qq & 1
            s += f"v_add_u32 v{vq+qq}, {(16*G + 4*h)*stride - qq*1024}, v{vq}\n"
        return s

    def w_tr_code(self, t=12):
        s = f"""v_bfe_u32 v{t}, v1, 2, 3
              v_lshrrev_b32 v{t+1}, 5, v1
              v_lshlrev_b32 v{t+1}, 10, v{t+1}
              v_lshl_add_u32 v{t+1}, v{t}, 7, v{t+1}
              v_and_b32 v{t+2}, 3, v1
              v_lshl_add_u32 v{t+1}, v{t+2}, 3, v{t+1}
              v_add_u32 v{t+1}, s{sRING}, v{t+1}
              v_lshrrev_b32 v{t}, 1, v{t}\n"""
        for a in range(4):
            s += f"""s_add_u32 s{sT0}, s{sWAVE}, {a}
                  s_and_b32 s{sT0}, s{sT0}, 3
                  v_xor_b32 v{t+2}, s{sT0}, v{t}
                  v_lshl_add_u32 v{vTR+a}, v{t+2}, 5, v{t+1}\n"""
        return s

    def p2_setup_code(self, t=12):
        c = self.c
        WO = self.LDS_RED
        a, b, d, e = t, t+1, t+2, t+3
        s = f"""s_mul_i32 s{sT0}, s{sIDX}, 37
              s_lshr_b32 s{sT0}, s{sT0}, 8
              s_mul_i32 s{sT0+1}, s{sT0}, 7
              s_sub_u32 s{sDJ}, s{sIDX}, s{sT0+1}
              s_lshl_b32 s{sST}, s{sXCD}, 2
              s_add_u32 s{sST}, s{sST}, s{sT0}
              s_lshl_b32 s{sT0}, s{sT0}, 2
              s_lshr_b32 s{sT0}, {c.S2U:#x}, s{sT0}
              s_and_b32 s{sT0}, s{sT0}, 15
              s_lshl_b32 s{sT0+1}, s{sDJ}, 2
              s_lshr_b32 s{sT0+1}, {c.S2W:#x}, s{sT0+1}
              s_and_b32 s{sT0+1}, s{sT0+1}, 15
              s_add_u32 s{sT0}, s{sT0}, s{sT0+1}
              s_sub_u32 s{sT0+1}, s{sT0}, 14
              s_min_u32 s{sT0}, s{sT0}, s{sT0+1}
              s_mul_i32 s{sW2LO}, s{sWAVE}, {448*4096}
              s_lshl_b32 s{sT0+1}, s{sST}, 7
              s_add_u32 s{sW2LO}, s{sW2LO}, s{sT0+1}
              s_add_u32 s{sW2HI}, s{sW2LO}, {448*4096}
              s_mul_i32 s{sT0+1}, s{sT0}, {32*4096}
              s_add_u32 s{sW2OFF}, s{sW2LO}, s{sT0+1}
              s_mul_i32 s{sULO}, s{sWAVE}, {14*KS}
              s_lshl_b32 s{sT0+1}, s{sDJ}, 12
              s_add_u32 s{sULO}, s{sULO}, s{sT0+1}
              s_add_u32 s{sULO}, s{sULO}, {WS_U}
              s_add_u32 s{sUHI}, s{sULO}, {14*KS}
              s_mul_i32 s{sT0+1}, s{sT0}, {KS}
              s_add_u32 s{sUOFF}, s{sULO}, s{sT0+1}\n"""
        s += self.w_addr_code(vW2, 4096, t)
        s += f"""v_lshlrev_b32 v{vL16}, 4, v1
              v_lshrrev_b32 v{a}, 3, v1
              v_mul_u32_u24 v{b}, 896, v{a}
              v_and_b32 v{d}, 6, v{a}
              v_and_b32 v{e}, 7, v1
              v_xor_b32 v{d}, v{d}, v{e}
              v_lshl_add_u32 v{vWOD}, v{d}, 4, v{b}
              s_mul_i32 s{sWOOFF}, s{sWAVE}, {112*896}
              s_lshl_b32 s{sT0+2}, s{sDJ}, 7
              s_add_u32 s{sWOOFF}, s{sWOOFF}, s{sT0+2}
              s_mul_i32 s{sWOM0}, s{sWAVE}, {14*1024}
              s_add_u32 s{sWOM0}, s{sWOM0}, {WO}
              v_and_b32 v{a}, 15, v1
              v_mul_u32_u24 v{vXO}, 896, v{a}
              v_bfe_u32 v{b}, v1, 4, 1
              v_lshl_add_u32 v{vXO}, v{b}, 5, v{vXO}
              v_lshrrev_b32 v{b}, 5, v1
              v_lshl_add_u32 v{vXO}, v{b}, 4, v{vXO}
              v_lshlrev_b32 v{vB2-1}, 1, v{a}
              s_lshl_b32 s{sT0}, s{sST}, 2
              s_add_u32 s{sT0}, s{sT0}, s{sWAVE}
              s_mul_i32 s{sXOFF}, s{sT0}, {16*896}
              s_add_u32 s{sXOFF}, s{sXOFF}, s{sT0+2}
              s_lshl_b32 s{sB2OFF}, s{sT0}, 5
              s_lshl_b32 s{sOOFF}, s{sT0}, 13
              s_add_u32 s{sOOFF}, s{sOOFF}, {WS_O}
              s_mul_i32 s{sT0+1}, s{sT0}, 79
              s_lshr_b32 s{sT0+1}, s{sT0+1}, 10
              s_min_u32 s{sT0+1}, s{sT0+1}, 4
              s_max_u32 s{sT0+3}, s{sT0}, 52
              s_sub_u32 s{sT0+3}, s{sT0+3}, 52
              s_mul_i32 s{sT0+3}, s{sT0+3}, 94
              s_lshr_b32 s{sT0+3}, s{sT0+3}, 10
              s_add_u32 s{sT0+3}, s{sT0+3}, s{sT0+1}
              v_min_u32 v{a}, 13, v1
              v_and_b32 v{b}, 1, v{a}
              v_mul_u32_u24 v{b}, 3, v{b}
              s_lshl_b32 s{sT0+1}, s{sDJ}, 2
              v_add_u32 v{b}, s{sT0+1}, v{b}
              v_mul_u32_u24 v{b}, 52, v{b}
              v_lshrrev_b32 v{b}, 8, v{b}
              v_lshrrev_b32 v{a}, 1, v{a}
              s_mul_i32 s{sT0+1}, s{sWAVE}, 7
              v_add_u32 v{a}, s{sT0+1}, v{a}
              v_mad_u32_u24 v{a}, v{a}, 6, v{b}
              v_mul_u32_u24 v{a}, {c.FS}, v{a}
              v_add_u32 v{vUF}, {WS_FU}, v{a}
              v_and_b32 v{a}, 7, v1
              v_lshl_add_u32 v{a}, v{a}, 4, s{sT0+3}
              v_mul_u32_u24 v{a}, {c.FS}, v{a}
              v_add_u32 v{vOFL}, {WS_FO}, v{a}
              v_and_b32 v{a}, 1, v1
              v_mul_u32_u24 v{a}, {O_PAR}, v{a}
              v_lshrrev_b32 v{b}, 4, v1
              v_lshl_add_u32 v{a}, v{b}, 7, v{a}
              v_bfe_u32 v{b}, v1, 1, 3
              v_lshl_add_u32 v{vOO}, v{b}, 4, v{a}
              v_lshrrev_b32 v{a}, 2, v1
              v_lshlrev_b32 v{b}, 7, v{a}
              v_and_b32 v{d}, 3, v1
              v_lshl_add_u32 v{b}, v{d}, 3, v{b}
              v_add_u32 v{b}, {WO}, v{b}
              v_bfe_u32 v{a}, v1, 3, 2\n"""
        for i in range(4):
            s += f"v_xor_b32 v{d}, {i}, v{a}\nv_lshl_add_u32 v{vWOR+i}, v{d}, 5, v{b}\n"
        return s

    def q_p2(self):
        k, c = self.k, self.c
        self.q_wstream(14, sW2, vW2, sW2OFF, sW2LO, sW2HI, 4096, 'W2')
        self.q(lambda: k.vmem(f"buffer_load_dwordx4 v[{vXD}:{vXD+3}], v{vXO}, s[{sX}:{sX+3}], s{sXOFF} offen", 'x'))
        self.q(lambda: k.vmem(f"buffer_load_dwordx4 v[{vXD+4}:{vXD+7}], v{vXO}, s[{sX}:{sX+3}], s{sXOFF} offen offset:64", 'x'))
        self.q(lambda: k.vmem(f"buffer_load_ushort v{vB2}, v{vB2-1}, s[{sB2}:{sB2+3}], s{sB2OFF} offen", 'x'))
        self.wo_start = self.nq
        for e in range(15):
            if e == 15 - c.UPOS: self.q(lambda: self.poll_issue(vUF, vPOLL, 'Upoll'))
            def op(e=e):
                assert self.red_free
                k(f"s_add_u32 m0, s{sWOM0}, {e*1024}")
                if e: k(f"s_add_u32 s{sWOOFF}, s{sWOOFF}, {8*896}")
                k.vmem(f"buffer_load_dwordx4 v{vWOD}, s[{sWO}:{sWO+3}], s{sWOOFF} offen lds", 'Wo')
            self.q(op)
        if c.UPOS == 0: self.q(lambda: self.poll_issue(vUF, vPOLL, 'Upoll'))

    def to_p2(self):
        k = self.k
        while self.vq: self.tick()
        self.drain_reads()
        i = k.vm.index('Upoll')
        assert k.vm[i:] == ['Upoll'] + ['Wo'] * self.c.UPOS, k.vm
        self.stamp(7)
        k("s_branch L_fin" if self.c.NOP2 else "s_branch L_p2")

    def m1(self):
        k, c = self.k, self.c
        self.bg_reset()
        ACC, STG = 32, 112
        k(f"""s_mul_i32 s{sT0}, s{sIDX}, 43
              s_lshr_b32 s{sT0}, s{sT0}, 8
              s_mul_i32 s{sT0+1}, s{sT0}, 6
              s_sub_u32 s{sJ}, s{sIDX}, s{sT0+1}
              s_lshr_b32 s{sT0+1}, s{sXCD}, 1
              s_mul_i32 s{sT0+1}, s{sT0+1}, 7
              s_and_b32 s{sT0+2}, s{sXCD}, 1
              s_lshl_b32 s{sT0+3}, s{sT0+2}, 2
              s_add_u32 s{sT0+1}, s{sT0+1}, s{sT0+3}
              s_add_u32 s{sFT}, s{sT0+1}, s{sT0}""")
        k(f"""s_lshl_b32 s{sT0}, s{sT0}, 2
              s_lshr_b32 s{sT0}, {c.S1H:#x}, s{sT0}
              s_lshl_b32 s{sT0+1}, s{sJ}, 2
              s_lshr_b32 s{sT0+1}, {c.S1W:#x}, s{sT0+1}
              s_add_u32 s{sT0}, s{sT0}, s{sT0+1}
              s_and_b32 s{sT0}, s{sT0}, 15
              s_lshl_b32 s{sRING}, s{sWAVE}, 12
              s_mul_i32 s{sWLO}, s{sWAVE}, {512*3584}
              s_lshl_b32 s{sT0+1}, s{sFT}, 7
              s_add_u32 s{sWLO}, s{sWLO}, s{sT0+1}
              s_add_u32 s{sWHI}, s{sWLO}, {512*3584}
              s_mul_i32 s{sT0+1}, s{sT0}, {32*3584}
              s_add_u32 s{sWOFF}, s{sWLO}, s{sT0+1}""")
        k(self.w_addr_code(2, 3584))
        vHF = 26
        self.q_wstream(16, sW1, 2, sWOFF, sWLO, sWHI, 3584, 'W1', {64 - c.HPOS: lambda: self.poll_issue(vHF, 28, 'Hpoll')} if c.HPOS else None)
        if not c.HPOS: self.q(lambda: self.poll_issue(vHF, 28, 'Hpoll'))
        nw1 = self.nq
        self.start_x()
        self.tick(c.PRE0, reads=0)
        k(f"""v_lshrrev_b32 v12, 4, v1
              v_lshlrev_b32 v12, 3, v12
              s_lshl_b32 s{sT0+2}, s{sFT}, 7
              s_lshl_b32 s{sT0+1}, s{sWAVE}, 5
              s_add_u32 s{sT0+2}, s{sT0+2}, s{sT0+1}
              s_mov_b32 s{sB1+2}, {F*2}
              s_mov_b32 s{sB1+3}, 0x20000""")
        k.vmem(f"buffer_load_dwordx2 v[24:25], v12, s[{sB1}:{sB1+3}], s{sT0+2} offen", 'b1')
        self.start_rest()
        k(f"""s_mul_i32 s{sALO}, s{sWAVE}, {16*KS}
              s_mul_i32 s{sT0+1}, s{sJ}, 5120
              s_add_u32 s{sALO}, s{sALO}, s{sT0+1}
              s_add_u32 s{sALO}, s{sALO}, {WS_HT}
              s_add_u32 s{sAHI}, s{sALO}, {16*KS}
              s_mul_i32 s{sT0+1}, s{sT0}, {KS}
              s_add_u32 s{sAOFF}, s{sALO}, s{sT0+1}""")
        k(self.w_tr_code())
        self.ln(sWQKV, weave=lambda: self.tick(c.LNW, reads=0))
        self.tick(c.HLAG, reads=4)
        k.vwait('hst')
        k("s_barrier")
        self.h_flag(17)
        self.fg(f"""v_lshlrev_b32 v10, 4, v1
              s_mov_b32 s{sG}, -1
              v_add_u32 v11, 4096, v10""")
        self.fg(f"""s_mul_i32 s{sT0}, s{sWAVE}, {64*c.FS}
              s_add_u32 s{sT0}, s{sT0}, {WS_FH}
              v_mul_u32_u24 v{vHF}, {c.FS}, v1
              v_add_u32 v{vHF}, s{sT0}, v{vHF}""")
        self.fg(self.p2_setup_code())
        RED = self.LDS_RED
        for a in range(1, 4):
            self.fg(f"""s_add_u32 s{sT0}, s{sWAVE}, {a}
                  s_and_b32 s{sT0}, s{sT0}, 3
                  s_mul_i32 s{sT0}, s{sT0}, 15360
                  s_add_u32 s{sT0}, s{sT0}, {RED + (a-1)*5120}
                  v_add_u32 v{5+a}, s{sT0}, v10""")
        self.fg(f"""s_mul_i32 s{sT0}, s{sWAVE}, 15360
              s_add_u32 s{sT0}, s{sT0}, {RED}
              v_add_u32 v9, s{sT0}, v10
              v_lshrrev_b32 v12, 4, v1
              v_and_b32 v13, 1, v12
              v_lshrrev_b32 v12, 1, v12
              v_lshlrev_b32 v12, 8, v12
              v_and_b32 v14, 15, v1
              v_lshl_add_u32 v12, v14, 4, v12
              v_lshl_add_u32 v20, v13, 10, v12
              v_lshl_add_u32 v21, v13, 31, v12""")
        c1 = -2.0 * math.sqrt(2.0 / math.pi) * math.log2(math.e)
        self.fg(f"""v_add_u32 v21, 2048, v21
              s_lshl_b32 s0, s{sFT}, 1
              s_lshr_b32 s{sT0+1}, s{sWAVE}, 1
              s_add_u32 s0, s0, s{sT0+1}
              s_mul_i32 s0, s0, {KS}
              s_mul_i32 s{sT0+1}, s{sJ}, 5120
              s_add_u32 s0, s0, s{sT0+1}
              s_and_b32 s{sT0+1}, s{sWAVE}, 1
              s_lshl_b32 s{sT0+1}, s{sT0+1}, 9
              s_add_u32 s0, s0, s{sT0+1}
              s_add_u32 s0, s0, {WS_U}
              v_mov_b32 v30, {f2u(c1):#x}
              v_mov_b32 v31, {f2u(c1*0.044715):#x}""")
        assert self.nv < nw1 - c.HPOS - 1
        self.tick_until(nw1 - 1)
        k(f"s_cmp_eq_u32 s{sJ}, 5\ns_cbranch_scc1 L_m3")
        st = (list(k.vm), list(k.lg), list(self.vq), list(self.rq), self.nv, self.nq, set(self.reads_done))
        self.m1_rest(5, nw1, vHF)
        k.label("L_m3")
        k.vm, k.lg, self.vq, self.rq, self.nv, self.nq, self.reads_done = st
        self.m1_rest(3, nw1, vHF)

    def m1_rest(self, NL, nw1, vHF):
        k, c = self.k, self.c
        ACC, STG = 32, 112
        RED = self.LDS_RED
        NF = 16*NL
        def hload(n):
            i, t = divmod(n, NL)
            b = STG + 4*(n % c.PD1)
            va, off = (10, t*1024) if t < 4 else (11, 0)
            o = f" offset:{off}" if off else ""
            if c.NOLD and n >= c.PD1: return
            if t == 0 and n and not c.NOADV:
                k(f"s_add_u32 s{sAOFF}, s{sAOFF}, {KS}\ns_cmp_ge_u32 s{sAOFF}, s{sAHI}\ns_cselect_b32 s{sAOFF}, s{sALO}, s{sAOFF}")
            k.vmem(f"buffer_load_dwordx4 v[{b}:{b+3}], v{va}, s[{sWS}:{sWS+3}], s{sAOFF} offen{o} sc1", ('H', n))
        for n in range(NF): self.q(lambda n=n: hload(n))
        self.tick_until(nw1)
        if NL == 3 and c.PFJ:
            k(f"""v_lshrrev_b32 v12, 2, v1
                  v_lshlrev_b32 v12, 12, v12
                  v_and_b32 v13, 3, v1
                  v_lshl_add_u32 v12, v13, 7, v12
                  s_lshl_b32 s{sT0}, s{sXCD}, 9
                  s_mul_i32 s{sT0+1}, s{sWAVE}, {448*4096}
                  s_add_u32 s{sT0}, s{sT0}, s{sT0+1}
                  s_mul_i32 s{sT0+1}, s{sIDX}, 43
                  s_lshr_b32 s{sT0+1}, s{sT0+1}, 8
                  s_lshl_b32 s{sT0+1}, s{sT0+1}, 16
                  s_add_u32 s{sT0}, s{sT0}, s{sT0+1}
                  s_and_b32 s{sT0+1}, s{sXCD}, 1
                  s_sub_u32 s{sT0+1}, 4, s{sT0+1}
                  s_lshl_b32 s{sT0+1}, s{sT0+1}, 16""")
            for e in range(c.PFJ):
                k.vmem(f"buffer_load_dword v27, v12, s[{sW2}:{sW2+3}], s{sT0} offen", 'pf')
                k(f"s_add_u32 s{sT0}, s{sT0}, s{sT0+1}")
        self.stamp(3)
        self.poll_check(vHF, 28, 'Hpoll')
        self.stamp(4)
        k.vwait('b1')
        k(f"""v_lshlrev_b32 v12, 16, v24
              v_and_b32 v13, 0xffff0000, v24
              v_lshlrev_b32 v14, 16, v25
              v_and_b32 v15, 0xffff0000, v25""")
        self.tick(c.PD1)
        self.drain_reads()
        self.red_free = False
        self.q_p2()
        for n in range(NF):
            i, t = divmod(n, NL)
            b = STG + 4*(n % c.PD1)
            k.lwait(('W1', i))
            k.vwait(('H', n))
            for a in ((1, 2, 3, 0) if i == 15 else range(4)):
                d = ACC + 20*a + 4*t
                cin = ("v[12:15]" if a == 0 else "0") if i == 0 else f"v[{d}:{d+3}]"
                if not c.NOMFMA or i == 0: k(f"v_mfma_f32_16x16x32_bf16 v[{d}:{d+3}], a[{16*i+4*a}:{16*i+4*a+3}], v[{b}:{b+3}], {cin}")
            if n + c.PD1 == NF: k.lwait_all()
            self.tick()
            if i == 15 and t >= 1:
                for a in range(1, 4):
                    d = ACC + 20*a + 4*(t-1)
                    k.ds(f"ds_write_b128 v{5+a}, v[{d}:{d+3}] offset:{(t-1)*1024}", 'rw')
        self.stamp(5); self.stamp(5, 3)
        self.budget = 0
        for a in range(1, 4):
            d = ACC + 20*a + 4*(NL-1)
            self.fg(f"ds_write_b128 v{5+a}, v[{d}:{d+3}] offset:{(NL-1)*1024}", 'rw', True)
        self.tick(c.E1A)
        self.stamp(1, 3)
        k.lwait('rw')
        self.stamp(2, 3)
        k("s_barrier")
        self.stamp(3, 3)
        for t in range(NL):
            for a in range(3):
                b = STG + 12*t + 4*a
                self.fg(f"ds_read_b128 v[{b}:{b+3}], v9 offset:{a*5120 + t*1024}", ('r', t), True)
        T = ACC + 20
        PK = ACC + 60
        fg = self.fg
        for t in range(NL):
            d = ACC + 4*t; b = STG + 12*t; e = T + 4*t
            k.lwait(('r', t))
            if t == 0: self.stamp(4, 3)
            for h in (0, 2):
                fg(f"v_pk_add_f32 v[{b+h}:{b+h+1}], v[{b+h}:{b+h+1}], v[{b+4+h}:{b+5+h}]")
                fg(f"v_pk_add_f32 v[{d+h}:{d+h+1}], v[{d+h}:{d+h+1}], v[{b+8+h}:{b+9+h}]")
            for h in (0, 2):
                fg(f"v_pk_add_f32 v[{d+h}:{d+h+1}], v[{d+h}:{d+h+1}], v[{b+h}:{b+h+1}]")
            for h in (0, 2):
                fg(f"v_pk_mul_f32 v[{e+h}:{e+h+1}], v[{d+h}:{d+h+1}], v[{d+h}:{d+h+1}]")
            for h in (0, 2):
                fg(f"v_pk_fma_f32 v[{e+h}:{e+h+1}], v[{e+h}:{e+h+1}], v[30:31], v[30:31] op_sel:[0,1,0] op_sel_hi:[1,1,0]")
            for h in (0, 2):
                fg(f"v_pk_mul_f32 v[{e+h}:{e+h+1}], v[{e+h}:{e+h+1}], v[{d+h}:{d+h+1}]")
            for r in range(4): fg(f"v_exp_f32 v{e+r}, v{e+r}")
            for h in (0, 2):
                fg(f"v_pk_add_f32 v[{e+h}:{e+h+1}], v[{e+h}:{e+h+1}], 1.0 op_sel_hi:[1,0]")
            for r in range(4): fg(f"v_rcp_f32 v{e+r}, v{e+r}")
            for h in (0, 2):
                fg(f"v_pk_mul_f32 v[{d+h}:{d+h+1}], v[{d+h}:{d+h+1}], v[{e+h}:{e+h+1}]")
            fg(f"v_cvt_pk_bf16_f32 v{PK+2*t}, v{d}, v{d+1}\nv_cvt_pk_bf16_f32 v{PK+2*t+1}, v{d+2}, v{d+3}")
            if t & 1 or t == NL - 1:
                p = PK + 4*(t >> 1)
                k(f"v_permlane16_swap_b32 v{p}, v{p+2}\nv_permlane16_swap_b32 v{p+1}, v{p+3}")
                va, off = {1: (20, ""), 2: (21, ""), 3: (20, " offset:2048"), 4: (21, " offset:2048")}[t]
                k.vmem(f"buffer_store_dwordx4 v[{p}:{p+3}], v{va}, s[{sWS}:{sWS+3}], s0 offen{off} sc1", 'ust')
        self.stamp(6, 3)
        self.tick(min(c.ULAG, self.wo_start - self.nv))
        self.stamp(7, 3)
        k.vwait('ust')
        self.stamp(8, 3)
        k("s_barrier")
        self.stamp(9, 3)
        self.red_free = True
        self.flag(f"""s_mul_i32 s{sT0}, s{sFT}, 6
              s_add_u32 s{sT0}, s{sT0}, s{sJ}
              s_mul_i32 s{sT0}, s{sT0}, {c.FS}
              s_add_u32 s{sT0}, s{sT0}, {WS_FU}""", 17, epoch=True)
        self.stamp(6)
        self.to_p2()

    def p2(self):
        k, c = self.k, self.c
        k.label("L_p2")
        self.bg_reset()
        k.vm = ['Upoll'] + ['Wo'] * c.UPOS
        k.lg = ['w2r']
        ACC, SAC, STG, OF = 32, 96, 112, 160
        assert STG + 4*c.PD2 <= OF
        self.poll_check(vUF, vPOLL, 'Upoll')
        self.stamp(8)
        NF = 56
        def uload(n):
            i, t = divmod(n, 4)
            b = STG + 4*(n % c.PD2)
            o = f" offset:{t*1024}" if t else ""
            if c.NOLD and n >= c.PD2 and n != NF - c.OPOS: return
            if t == 0 and n and not c.NOADV:
                k(f"s_add_u32 s{sUOFF}, s{sUOFF}, {KS}\ns_cmp_ge_u32 s{sUOFF}, s{sUHI}\ns_cselect_b32 s{sUOFF}, s{sULO}, s{sUOFF}")
            if n == NF - c.OPOS: self.poll_issue(vOFL, vPOLL, 'Opoll')
            k.vmem(f"buffer_load_dwordx4 v[{b}:{b+3}], v{vL16}, s[{sWS}:{sWS+3}], s{sUOFF} offen{o} sc1", ('U', n))
        def oload(hd):
            if hd == 0: self.poll_check(vOFL, vPOLL, 'Opoll')
            o = f" offset:{(hd&7)*512}" if hd & 7 else ""
            if hd == 8: k(f"s_add_u32 s{sOOFF}, s{sOOFF}, 4096")
            k.vmem(f"buffer_load_dwordx4 v[{OF+4*hd}:{OF+4*hd+3}], v{vOO}, s[{sWS}:{sWS+3}], s{sOOFF} offen{o} sc1", ('O', hd))
        for n in range(NF): self.q(lambda n=n: uload(n))
        for hd in range(16): self.q(lambda hd=hd: oload(hd))
        self.tick(c.PD2)
        k.vwait('Wo')
        k.lwait_all()
        k("s_barrier")
        k(f"s_cmp_eq_u32 s{sG}, -1\ns_cbranch_scc1 L_noflag")
        self.o_flag(17)
        k.label("L_noflag")
        XF = 2
        k(f"""v_permlane16_swap_b32 v{vXD}, v{vXD+2}
              v_permlane16_swap_b32 v{vXD+1}, v{vXD+3}
              v_permlane16_swap_b32 v{vXD+4}, v{vXD+6}
              v_permlane16_swap_b32 v{vXD+5}, v{vXD+7}""")
        for r in range(4): k(f"v_lshlrev_b32 v{20+r}, 16, v{vB2}")
        side = []
        for i in range(8):
            side += [f"v_lshlrev_b32 v{XF+2*i}, 16, v{vXD+i}", f"v_and_b32 v{XF+2*i+1}, 0xffff0000, v{vXD+i}"]
        side.append(f"v_add_u32 v24, s{sRING}, v{vL16}")
        for a in range(1, 4):
            side.append(f"""s_sub_u32 s{sT0}, s{sWAVE}, {a}
                  s_and_b32 s{sT0}, s{sT0}, 3
                  s_lshl_b32 s{sT0}, s{sT0}, 12
                  s_add_u32 s{sT0}, s{sT0}, {(a-1)*16384}
                  v_add_u32 v{24+a}, s{sT0}, v{vL16}""")
        side.append(f"s_mov_b32 s0, {f2u(-math.log2(math.e)):#x}\ns_mov_b32 s1, s0")
        def wbase(hd): return 224 + 16*hd if hd < 2 else 16*(hd - 2)
        wr = []
        for hd in range(16):
            for t in range(4):
                for hh in range(2):
                    b = wbase(hd) + 4*t + 2*hh
                    wr.append((0 if hd < 2 else 4*(hd-2) + 3, f"ds_read_b64_tr_b16 a[{b}:{b+1}], v{vWOR + (t ^ (2*(hd & 1)))} offset:{(28*hd + 16*hh)*128}", ('wo', hd)))
        for n in range(NF):
            i, t = divmod(n, 4)
            b = STG + 4*(n % c.PD2)
            k.vwait(('U', n))
            for a in ((1, 2, 3, 0) if i == 13 else range(4)):
                d = ACC + 16*a + 4*t
                cin = ("v[20:23]" if a == 0 else "0") if i == 0 else f"v[{d}:{d+3}]"
                if not c.NOMFMA or i == 0: k(f"v_mfma_f32_16x16x32_bf16 v[{d}:{d+3}], v[{b}:{b+3}], a[{16*i+4*a}:{16*i+4*a+3}], {cin}")
                if a in (0, 1, 2) and wr and wr[0][0] < n:
                    w = wr.pop(0); k.ds(w[1], w[2])
            self.tick()
            if side: k(side.pop(0))
            if i == 13 and t >= 1:
                for a in range(1, 4):
                    d = ACC + 16*a + 4*(t-1)
                    k.ds(f"ds_write_b128 v24, v[{d}:{d+3}] offset:{(a-1)*16384 + (t-1)*1024}", 'rw')
        assert not side
        self.stamp(9); self.stamp(1, 4)
        while self.vq: self.tick()
        self.stamp(2, 4)
        sm = []
        for hd in range(16):
            for t in range(4):
                d = SAC + 4*t
                cin = "0" if hd == 0 else f"v[{d}:{d+3}]"
                sm.append((hd, f"v_mfma_f32_16x16x32_bf16 v[{d}:{d+3}], a[{wbase(hd)+4*t}:{wbase(hd)+4*t+3}], v[{OF+4*hd}:{OF+4*hd+3}], {cin}"))
        def smf(n=1):
            for _ in range(n):
                if sm:
                    hd, t = sm.pop(0)
                    assert not any(w[2] == ('wo', hd) for w in wr)
                    k.vwait(('O', hd)); k.lwait(('wo', hd)); k(t)
        smf(4)
        for a in range(1, 4):
            d = ACC + 16*a + 12
            k.ds(f"ds_write_b128 v24, v[{d}:{d+3}] offset:{(a-1)*16384 + 3*1024}", 'rw')
            smf(3)
        smf(c.TW0)
        self.stamp(3, 4)
        k.lwait('rw')
        k("s_barrier")
        self.stamp(4, 4)
        for t in range(4):
            for a in range(3):
                b = STG + 12*t + 4*a
                k.ds(f"ds_read_b128 v[{b}:{b+3}], v{25+a} offset:{t*1024}", ('r', t))
                if t < 2: smf()
        while wr:
            w = wr.pop(0); k.ds(w[1], w[2])
        T = ACC + 16
        for t in range(4):
            d = ACC + 4*t; b = STG + 12*t; e = T + 4*t
            k.lwait(('r', t))
            for h in (0, 2):
                k(f"v_pk_add_f32 v[{b+h}:{b+h+1}], v[{b+h}:{b+h+1}], v[{b+4+h}:{b+5+h}]")
                k(f"v_pk_add_f32 v[{d+h}:{d+h+1}], v[{d+h}:{d+h+1}], v[{b+8+h}:{b+9+h}]")
            for h in (0, 2):
                k(f"v_pk_add_f32 v[{d+h}:{d+h+1}], v[{d+h}:{d+h+1}], v[{b+h}:{b+h+1}]")
            for h in (0, 2):
                k(f"v_pk_mul_f32 v[{e+h}:{e+h+1}], v[{d+h}:{d+h+1}], s[0:1]")
        self.stamp(5, 4)
        for r in range(16):
            k(f"v_exp_f32 v{T+r}, v{T+r}"); smf()
        self.stamp(6, 4)
        for r in range(16):
            k(f"v_add_f32 v{T+r}, 1.0, v{T+r}")
            if r & 1: smf()
        for r in range(16):
            k(f"v_rcp_f32 v{T+r}, v{T+r}"); smf()
        for r in range(16):
            k(f"v_mul_f32 v{ACC+r}, v{ACC+r}, v{T+r}")
            if r & 1: smf()
        smf(64)
        self.stamp(7, 4)
        for t in range(4):
            d = ACC + 4*t; s_ = SAC + 4*t; x = XF + 4*t
            for h in (0, 2):
                k(f"v_pk_fma_f32 v[{d+h}:{d+h+1}], v[{d+h}:{d+h+1}], v[{s_+h}:{s_+h+1}], v[{x+h}:{x+h+1}]")
            k(f"v_cvt_pk_bf16_f32 v{vXD+2*t}, v{d}, v{d+1}\nv_cvt_pk_bf16_f32 v{vXD+1+2*t}, v{d+2}, v{d+3}")
            if t & 1:
                p = vXD + 4*(t >> 1)
                k(f"v_permlane16_swap_b32 v{p}, v{p+2}\nv_permlane16_swap_b32 v{p+1}, v{p+3}")
                o = " offset:64" if t == 3 else ""
                k.vmem(f"buffer_store_dwordx4 v[{p}:{p+3}], v{vXO}, s[{sOUT}:{sOUT+3}], s{sXOFF} offen{o}{c.OAUX}", 'out')
        self.stamp(8, 4)

    def o_flag(self, vt):
        self.flag(f"""s_lshl_b32 s{sT0}, s{sG}, 1
              s_add_u32 s{sT0}, s{sT0}, s{sPAR}
              s_lshl_b32 s{sT0}, s{sT0}, 4
              s_add_u32 s{sT0}, s{sT0}, s{sBLK}
              s_mul_i32 s{sT0}, s{sT0}, {self.c.FS}
              s_add_u32 s{sT0}, s{sT0}, {WS_FO}""", vt)

    def attn(self, NT, duty):
        k, c = self.k, self.c
        self.bg_reset()
        k.lg = []
        if c.SKIPA:
            self.start_x(); self.start_rest(); self.ln(sW1)
            k(f"s_lshl_b32 s{sRING}, s{sWAVE}, 12")
            if duty: k(self.w_tr_code()); k(self.p2_setup_code())
            k.vwait('hst'); k("s_barrier"); self.h_flag(17); self.o_flag(21)
            if duty:
                k("s_sleep 127\ns_sleep 30")
                self.red_free = True; self.q_p2(); self.to_p2()
            else: k("s_branch L_fin")
            return
        WSLOT, NW = 24576, 4
        XB = NW * WSLOT
        XSLOT, NX = NT * 2048, 3
        nx = 2*NT
        nxe = (nx + 3) // 4
        nxmin = nx // 4
        sWO0, sWO1, sXO, sWM, sXM, sOCT = sWOFF, sWLO, sWHI, sAOFF, sALO, sAHI
        sXE = 4
        vW, vX, vXR, vWR = 2, 3, 8, 30
        Q, K = 40, 40 + 8*NT
        V0 = K + 8*NT + 4
        V1 = V0 + 4*NT + 4
        T0 = V1 + 4*NT
        RQ = lambda t: T0 + 2*t
        CSQ = T0 + 2*NT
        MC, MC0 = CSQ + 8, CSQ + 12
        assert MC0 + 4 <= (224 if duty else 256)
        ONES, AP = 20, 10
        k(f"""s_mul_i32 s{sT0}, s{sBLK}, {c.SAB}
              s_mul_i32 s{sT0+1}, s{sG}, {c.SAG}
              s_add_u32 s{sT0}, s{sT0}, s{sT0+1}
              s_mul_i32 s{sT0+1}, s{sT0}, 147
              s_lshr_b32 s{sT0+1}, s{sT0+1}, 10
              s_mul_i32 s{sT0+1}, s{sT0+1}, 7
              s_sub_u32 s{sT0}, s{sT0}, s{sT0+1}
              s_lshl_b32 s{sXO}, s{sT0}, 7
              s_mul_i32 s{sWO0}, s{sT0}, {64*2688}
              s_add_u32 s{sWO1}, s{sWO0}, {4*2688}""")
        k(f"""s_and_b32 s{sT0+2}, s{sWAVE}, 1
              s_lshl_b32 s{sT0}, s{sT0+2}, 3
              v_subrev_u32 v12, s{sT0}, v1
              v_mul_u32_u24 v13, 147, v12
              v_lshrrev_b32 v13, 11, v13
              v_mul_u32_u24 v14, 14, v13
              v_sub_u32 v14, v12, v14
              s_lshl_b32 s{sT0+3}, s{sWAVE}, 3
              v_add_u32 v13, s{sT0+3}, v13
              v_mul_u32_u24 v13, 2688, v13
              v_lshl_add_u32 v13, v14, 4, v13
              s_mul_i32 s{sT0}, s{sG}, 224
              v_cmp_gt_u32 s[6:7], 56, v12
              v_add_u32 v13, s{sT0}, v13
              v_bfrev_b32 v14, 1
              s_lshl_b32 s{sWM}, s{sWAVE}, 10
              s_add_u32 s{sXM}, s{sWM}, {XB}
              v_cndmask_b32 v{vW}, v14, v13, s[6:7]""")
        def wdma(i):
            ops = []
            slot = (i + 2) % NW
            for sec in range(3):
                for h in range(2):
                    pre = f"s_add_u32 m0, s{sWM}, {slot*WSLOT + (2*sec+h)*4096 - sec*896}\n"
                    if sec == 0 and h == 0 and i and not c.NOADV:
                        pre += f"s_add_u32 s{sWO0}, s{sWO0}, {32*2688}\n"
                        if i % 2 == 0: pre += f"s_cmp_ge_u32 s{sWO0}, {448*2688}\ns_cselect_b32 s{sWO0}, 0, s{sWO0}\n"
                    if sec == 0 and h == 1 and i:
                        pre += f"s_add_u32 s{sWO1}, s{sWO0}, {4*2688}\n"
                    def op(sec=sec, h=h):
                        if c.NOLD and i >= 2: return
                        o = f" offset:{sec*896}" if sec else ""
                        k.vmem(f"buffer_load_dwordx4 v{vW}, s[{sWQKV}:{sWQKV+3}], s{sWO1 if h else sWO0} offen{o}{c.QAUX} lds", ('W', i))
                    ops.append((max(i - NW, -1), i, pre, op))
            return ops
        def xdma(ch):
            ops = []
            slot = ch % NX
            first = -1 if ch < NX else 2*(ch - NX) + 1
            for e in reversed(range(nxe)):
                pre = f"s_add_u32 m0, s{sXM}, {slot*XSLOT + e*4096}\n"
                if e == nxe - 1 and ch and not c.NOADV:
                    pre += f"s_add_u32 s{sXO}, s{sXO}, 128\ns_cmp_ge_u32 s{sXO}, 896\ns_cselect_b32 s{sXO}, 0, s{sXO}\n"
                def op(e=e):
                    if (c.NOLD or c.NOX) and ch >= 1: return
                    t = f"buffer_load_dwordx4 v{vX+e}, s[{sX}:{sX+3}], s{sXO} offen{c.XAUX} lds"
                    if e >= nxmin:
                        l = k.newlabel("L_xs")
                        k(f"s_cmp_ge_u32 s{sWAVE}, {nx - 4*nxmin}\ns_cbranch_scc1 {l}")
                        k(t); k.label(l)
                    elif e == 0:
                        k(f"s_mov_b64 exec, s[{sXE}:{sXE+1}]")
                        k.vmem(t, ('X', ch))
                        k("s_mov_b64 exec, -1")
                    else:
                        k.vmem(t, ('X', ch))
                ops.append((first, 2*ch, pre, op))
            return ops
        dq = wdma(0) + xdma(0) + wdma(1)
        for ch in range(1, 7):
            dq += xdma(ch) + wdma(2*ch) + wdma(2*ch + 1)
        def pop(n=1):
            for _ in range(n):
                e = dq.pop(0); k(e[2]); e[3]()
        self.start_x()
        pop(min(6, c.APRE))
        k(f"""s_lshl_b32 s{sT0}, s{sOCT}, 3
              s_add_u32 s{sT0}, s{sT0}, s{sT0+3}
              s_sub_u32 s{sT0}, s{sT0}, 8
              v_lshrrev_b32 v12, 3, v1
              v_add_u32 v13, s{sT0}, v12
              s_lshl_b32 s{sT0+1}, s{sT0+2}, 2
              v_lshrrev_b32 v12, 1, v12
              v_add_u32 v12, s{sT0+1}, v12
              v_and_b32 v14, 7, v1
              v_xor_b32 v12, v12, v14
              v_lshlrev_b32 v12, 4, v12
              s_mul_i32 s{sT0+1}, s{sPAR}, 896
              v_add_u32 v12, s{sT0+1}, v12
              s_movk_i32 s{sT0+2}, 1023
              s_movk_i32 s{sT0+3}, 1792
              s_cmp_eq_u32 s{sWAVE}, 0
              s_cselect_b32 s{sXE}, 0xffffff00, -1
              s_mov_b32 s{sXE+1}, -1""")
        for e in range(nxe):
            k(f"""v_add_u32 v14, {32*e}, v13
                  v_med3_i32 v14, v14, 0, s{sT0+2}
                  v_mad_u32_u24 v{vX+e}, v14, s{sT0+3}, v12""")
        pop(max(0, c.APRE - 6))
        self.start_rest()
        k(f"""v_mov_b32 v{ONES}, 0x3f803f80
              v_and_b32 v13, 31, v0
              v_lshlrev_b32 v13, 2, v13
              v_add_u32 v13, {XB}, v13""")
        for sl in range(NX):
            k.ds(f"ds_write_b32 v13, v{ONES} offset:{sl*XSLOT}")
        k(f"""v_and_b32 v12, 15, v1
              v_lshrrev_b32 v13, 4, v1
              v_lshrrev_b32 v14, 1, v12
              v_xor_b32 v14, v14, v13
              v_lshlrev_b32 v14, 4, v14
              v_lshl_add_u32 v14, v12, 7, v14
              v_add_u32 v{vXR}, {XB}, v14
              v_xor_b32 v{vXR+1}, 64, v{vXR}
              v_lshlrev_b32 v14, 10, v13
              v_and_b32 v15, 1, v13
              v_xor_b32 v16, 1, v15
              v_mul_u32_u24 v16, 896, v16
              v_add_u32 v16, v14, v16
              v_lshl_add_u32 v14, v15, 7, v14
              v_bfe_u32 v15, v1, 2, 2
              v_mul_u32_u24 v15, 224, v15
              v_add_u32 v14, v14, v15
              v_and_b32 v15, 3, v1
              v_lshl_add_u32 v14, v15, 3, v14
              s_mul_i32 s{sT0}, s{sWAVE}, 56
              v_cmp_eq_u32 s[6:7], 3, v15
              v_add_u32 v{vWR}, s{sT0}, v14
              v_add_u32 v{vWR+1}, {2*WSLOT}, v{vWR}
              v_add_u32 v14, 32, v{vWR}
              v_cndmask_b32 v{vWR+2}, v14, v16, s[6:7]
              v_add_u32 v{vWR+3}, {2*WSLOT}, v{vWR+2}""")
        FB = 4*NT + 24
        def fx(i, t): return 256 - 2*FB + (i & 1)*FB + 4*t
        def fw(i, sec, a): return 256 - 2*FB + (i & 1)*FB + 4*NT + 8*sec + 4*a
        def reads(i):
            ops = []
            ws = (i + 2) % NW; xs = (i >> 1) % NX
            b = fx(i, 0)
            xr = lambda t: f"ds_read_b128 a[{fx(i,t)}:{fx(i,t)+3}], v{vXR + (i & 1)} offset:{xs*XSLOT + t*2048}"
            ops.append(xr(0))
            for sec in range(3):
                for a in range(2):
                    for h in range(2):
                        b = fw(i, sec, a) + 2*h
                        ops.append(f"ds_read_b64_tr_b16 a[{b}:{b+1}], v{vWR + 2*a + (ws >> 1)} offset:{(ws & 1)*WSLOT + (2*sec+h)*4096}")
            for t in range(1, NT): ops.append(xr(t))
            return ops
        def mfmas(i):
            ops = []
            for t in range(NT):
                x = f"a[{fx(i,t)}:{fx(i,t)+3}]"
                for sec in range(3):
                    for a in range(2):
                        w = f"a[{fw(i,sec,a)}:{fw(i,sec,a)+3}]"
                        d = (Q + 8*t + 4*a, K + 8*t + 4*a, (V1 if a else V0) + 4*t)[sec]
                        cin = "0" if i == 0 else f"v[{d}:{d+3}]"
                        A, B = (x, w) if sec == 2 else (w, x)
                        ops.append(f"v_mfma_f32_16x16x32_bf16 v[{d}:{d+3}], {A}, {B}, {cin}")
            return ops
        SB = self.LDS_LN
        side = f"""s_lshl_b32 s{sT0}, s{sOCT}, 1
              s_sub_u32 s{sT0}, s{sT0}, 2
              v_and_b32 v12, 31, v1
              v_min_u32 v12, {4*NT-1}, v12
              v_add_u32 v12, s{sT0}, v12
              s_movk_i32 s{sT0+1}, 255
              v_med3_i32 v12, v12, 0, s{sT0+1}
              v_mul_u32_u24 v13, {c.FS}, v12
              v_add_u32 v24, {WS_FH}, v13
              v_lshrrev_b32 v13, 5, v1
              v_lshlrev_b32 v13, 13, v13
              v_lshl_add_u32 v25, v12, 4, v13
              s_lshl_b32 s0, s{sPAR}, 12
              s_add_u32 s0, s0, {WS_STATS}
              s_lshl_b32 s{sT0}, s{sWAVE}, 10
              s_add_u32 s{sT0}, s{sT0}, {SB}
              v_lshl_add_u32 v26, v1, 4, s{sT0}
              v_and_b32 v12, 15, v1
              v_lshl_add_u32 v34, v12, 2, s{sT0}
              v_lshrrev_b32 v13, 4, v1
              v_lshl_add_u32 v35, v13, 4, s{sT0}
              v_mov_b32 v{ONES+1}, v{ONES}
              v_mov_b32 v{ONES+2}, v{ONES}
              v_mov_b32 v{ONES+3}, v{ONES}
              v_mov_b32 v{V0-2}, 0
              v_mov_b32 v{V0-1}, 0
              v_mov_b32 v{V1-2}, 0
              v_mov_b32 v{V1-1}, 0
              s_lshl_b32 s{sRING}, s{sWAVE}, 12\n"""
        if duty: side += self.w_tr_code() + self.p2_setup_code()
        pfo = c.PFJ if c.PFO < 0 else c.PFO
        side += f"""s_and_b32 s{sT0}, s{sXCD}, 1
              s_mul_i32 s{sT0+1}, s{sT0}, 6\n"""
        if duty:
            side += f"""s_add_u32 s{sT0+5}, s{sT0+1}, 4
              s_add_u32 s{sT0+4}, s{sIDX}, s{sT0+1}
              s_sub_u32 s{sT0+4}, s{sT0+4}, 24
              s_sub_u32 s{sT0}, 4, s{sT0}
              s_mul_i32 s{sT0}, s{sT0}, {pfo}
              s_add_u32 s{sT0+4}, s{sT0+4}, s{sT0}\n"""
        else:
            side += f"""s_add_u32 s{sT0+4}, s{sT0+1}, 4
              s_mul_i32 s{sT0+4}, s{sT0+4}, {c.PFD}
              s_sub_u32 s{sT0+1}, 4, s{sT0}
              s_mul_i32 s{sT0+1}, s{sT0+1}, {pfo}
              s_add_u32 s{sT0+4}, s{sT0+4}, s{sT0+1}
              s_and_b32 s{sT0+1}, s{sIDX}, 3
              s_add_u32 s{sT0+4}, s{sT0+4}, s{sT0+1}
              s_mov_b32 s{sT0+5}, 4
              s_lshl_b32 s{sT0+1}, s{sT0+1}, 2
              s_add_u32 s{sT0+1}, s{sT0+1}, s{sWAVE}
              s_lshl_b32 s{sT0+1}, s{sT0+1}, 13
              v_lshl_add_u32 v36, v1, 7, s{sT0+1}
              s_and_b32 s{sT0+1}, s{sIDX}, 3
              s_lshl_b32 s{sT0+1}, s{sT0+1}, 3
              s_add_u32 s{sT0+1}, s{sT0+1}, s{sXCD}
              s_lshl_b32 s{sT0}, s{sWAVE}, 5
              s_add_u32 s{sT0+1}, s{sT0+1}, s{sT0}
              s_lshl_b32 s{sT0+1}, s{sT0+1}, 13
              v_lshl_add_u32 v{MC0+9}, v1, 7, s{sT0+1}
              v_mov_b32 v{MC0+8}, v36\n"""
        side += f"""v_lshrrev_b32 v12, 2, v1
              v_lshlrev_b32 v12, 12, v12
              v_and_b32 v13, 3, v1
              v_lshl_add_u32 v12, v13, 7, v12
              s_lshl_b32 s{sT0}, s{sXCD}, 9
              s_mul_i32 s{sT0+1}, s{sWAVE}, {448*4096}
              s_add_u32 s{sT0}, s{sT0}, s{sT0+1}
              v_add_u32 v38, s{sT0}, v12\n"""
        def pf_w2():
            k(f"""s_lshl_b32 s{sT0}, s{sT0+4}, 16
                  s_cmp_ge_u32 s{sT0+4}, 28
                  s_cselect_b32 s{sT0}, 0x40000000, s{sT0}
                  s_add_u32 s{sT0+4}, s{sT0+4}, s{sT0+5}""")
            k.vmem(f"buffer_load_dword v39, v38, s[{sW2}:{sW2+3}], s{sT0} offen", 'pf')
        def pf_wo(e):
            k(f"s_mov_b32 s{sT0}, {e*16*8192}")
            k.vmem(f"buffer_load_dword v39, v{MC0+8}, s[{sWO}:{sWO+3}], s{sT0} offen", 'pf')
        pfq = []
        if c.PFI >= 0:
            if duty: pfq = [pf_w2] * c.PFD
            else:
                nw2 = max(7 - c.PFD - pfo, -(-(28 - 3*pfo - 10*c.PFD) // 4))
                pfq = [lambda: (k.vmem(f"buffer_load_dword v39, v36, s[{sB2}:{sB2+3}], 0 offen", 'pf'), pf_w2())]
                pfq += [pf_w2] * (nw2 - 1)
                if c.PFWO == 2: pfq += [lambda: (pf_wo(0), pf_wo(3)), lambda: pf_wo(1), lambda: pf_wo(2)]
        SEL = [6, 46, 48, 50]
        side += f"""v_lshrrev_b32 v12, 4, v1
              v_lshlrev_b32 v12, 2, v12
              v_and_b32 v13, 15, v1
              v_sub_u32 v12, v12, v13
              v_mov_b32 v14, 0xff800000
              s_min_u32 s{sT0}, s{sBLK}, 1
              s_sub_u32 s{sT0}, s{sT0}, 1
              s_mov_b32 s{sT0+1}, 0\n"""
        for r in range(4):
            side += f"""v_add_u32 v13, {r+7}, v12
                  v_cmp_gt_u32 s[{sT0+2}:{sT0+3}], 8, v13
                  v_cmp_lt_i32 s[{SEL[r]}:{SEL[r]+1}], 15, v13
                  v_cndmask_b32 v{MC+r}, v14, 0, s[{sT0+2}:{sT0+3}]
                  v_cndmask_b32 v{MC0+r}, v{MC+r}, v14, s[{sT0}:{sT0+1}]\n"""
        side += "v_mov_b32 v14, 0xffff\nv_mov_b32 v15, 0xffff0000\n"
        for h in range(2):
            side += f"""v_cndmask_b32 v{AP+h}, 0, v14, s[{SEL[2*h]}:{SEL[2*h]+1}]
                  v_cndmask_b32 v13, 0, v15, s[{SEL[2*h+1]}:{SEL[2*h+1]+1}]
                  v_or_b32 v{AP+h}, v{AP+h}, v13\n"""
        side += f"""v_bfe_u32 v12, v1, 3, 1
              v_lshrrev_b32 v13, 4, v1
              v_lshlrev_b32 v13, 7, v13
              v_and_b32 v14, 7, v1
              v_lshl_add_u32 v13, v14, 4, v13
              v_lshl_add_u32 v7, v12, 13, v13
              v_xor_b32 v12, 1, v12
              v_lshl_or_b32 v27, v12, 31, v7
              s_mul_i32 s1, s{sPAR}, {O_PAR}
              s_lshl_b32 s{sT0}, s{sOCT}, 13
              s_add_u32 s1, s1, s{sT0}
              s_lshl_b32 s{sT0}, s{sG}, 2
              s_add_u32 s{sT0}, s{sT0}, s{sWAVE}
              s_lshl_b32 s{sT0}, s{sT0}, 9
              s_add_u32 s1, s1, s{sT0}
              s_add_u32 s1, s1, {WS_O - 8192}\n"""
        side = [l.strip() for l in side.strip().split('\n')]
        def sidework(n, every=0):
            for e in range(n):
                if side: k(side.pop(0))
                if every and e % every == every - 1 and dq[0][1] < c.ADEEP: pop()
        def weave():
            for _ in range(c.LNA):
                if dq[0][1] < c.ADEEP: pop()
        self.ln(sW1, T0, weave, lambda: sidework(c.SIDE0))
        while dq[0][1] < c.AMID: pop()
        if c.HI < 0:
            sidework(c.SIDEH)
            k.vwait('hst'); k("s_barrier"); self.h_flag(17)
            if c.ADEEP > c.AMID:
                sidework(40, 4)
        k.vwait(('X', 0))
        k("s_barrier")
        for r in reads(0): k.ds(r)
        sidework(c.SIDE1, 12)
        while dq[0][1] < c.ADEEP: pop()
        self.stamp(3)
        for i in range(14):
            if i + 1 < 14:
                assert not dq or dq[0][1] > i + 1
                k.vwait(('W', i+1))
            if i == c.HI: k.vwait('hst')
            k.lwait_all()
            k("s_barrier")
            if i == c.HI: self.h_flag(17)
            if i in (0, 1, 2, 3, 4, 6, 8, 10, 13): self.stamp(1 + (0, 1, 2, 3, 4, 6, 8, 10, 13).index(i), 1)
            quota = c.AQ
            if duty and i == 11:
                self.red_free = False
                self.q_p2()
            rd = reads(i+1) if i + 1 < 14 else []
            mf = mfmas(i)
            gap = max(1, len(mf) // (quota + 1))
            for n, m in enumerate(mf):
                dm = None
                if n % gap == 1 % gap and quota and dq and dq[0][0] <= i:
                    dm = dq.pop(0); k(dm[2]); quota -= 1
                if not c.NOMFMA or i == 0: k(m)
                if dm: dm[3]()
                elif duty and i >= 11 and n % c.EW2 == 1 and (i >= 12 or self.nv < 12): self.tick()
                else:
                    if rd: k.ds(rd.pop(0))
                    if side and (not rd or n % 2): k(side.pop(0))
            for r in rd: k.ds(r)
            while dq and dq[0][1] <= i + 2:
                assert dq[0][0] <= i
                pop()
            if i == c.STI:
                self.poll_issue(24, 28, 'Hpoll')
            if i == c.STI + 2:
                self.poll_check(24, 28, 'Hpoll')
                k.vmem(f"buffer_load_dwordx4 v[16:19], v25, s[{sWS}:{sWS+3}], s0 offen sc1", 'st')
            if i == c.STI + 4:
                k.vwait('st')
                k.ds("ds_write_b128 v26, v[16:19]")
            if i == 10: assert not side and not dq, (len(side), len(dq))
            if not duty and c.PFWO == 1 and i == c.PFWI:
                k.vmem(f"buffer_load_dword v39, v{MC0+9}, s[{sWO}:{sWO+3}], 0 offen", 'pf')
            if pfq and (c.PFI == i if duty else c.PFP >> i & 1):
                assert not side
                for _ in range(c.PFD if duty else 1): pfq.pop(0)()
        self.stamp(4)
        if duty:
            assert self.nv <= 40
            self.keep = c.AKEEP
            self.red_free = True
            self.tick(max(0, 8 - self.nv), reads=0)
        fg = self.fg
        CSV = 8
        ck = lambda h: (28, 30, 32, 36)[h >> 1]
        sset = ((24, 12, 16), (V0 - 4, 2, MC0 + 4))
        assert MC0 + 8 <= (224 if duty else 256)
        def sread(t):
            p, R, N = sset[t & 1]
            k.ds(f"ds_read2_b32 v[{p}:{p+1}], v34 offset0:{16*t} offset1:{16*t + 128}", ('s', t))
            k.ds(f"ds_read_b128 v[{R}:{R+3}], v35 offset:{64*t}", ('s', t))
            k.ds(f"ds_read_b128 v[{N}:{N+3}], v35 offset:{64*t + 512}", ('s', t))
        sread(0)
        for r in range(8):
            fg(f"v_mov_b32_dpp v{ck(r) + (r & 1)}, v{K+r} row_newbcast:0 row_mask:0xf bank_mask:0xf")
            fg(f"v_mov_b32_dpp v{CSQ+r}, v{Q+r} row_newbcast:0 row_mask:0xf bank_mask:0xf")
        fg(f"""v_mov_b32 v{CSV}, v{V0}
              v_mov_b32 v2, v{V0}
              v_mov_b32 v{CSV+1}, v{V1}
              v_mov_b32 v3, v{V1}
              v_permlane16_swap_b32 v{CSV}, v2
              v_permlane16_swap_b32 v{CSV+1}, v3
              v_mov_b32 v2, v{CSV}
              v_mov_b32 v3, v{CSV+1}
              s_nop 0
              v_permlane32_swap_b32 v{CSV}, v2
              v_permlane32_swap_b32 v{CSV+1}, v3""")
        qs = (28 ** -0.5) * math.log2(math.e)
        SP = lambda t: Q + 8*t + 4
        SC = lambda t: K + 8*t + 4
        def smf(t):
            if t: fg(f"v_mfma_f32_16x16x32_bf16 v[{SP(t)}:{SP(t)+3}], v[{K+8*(t-1)}:{K+8*(t-1)+3}], v[{Q+8*t}:{Q+8*t+3}], 0")
            m = MC if t else MC0
            fg(f"v_mfma_f32_16x16x32_bf16 v[{SC(t)}:{SC(t)+3}], v[{K+8*t}:{K+8*t+3}], v[{Q+8*t}:{Q+8*t+3}], v[{m}:{m+3}]")
        for t in range(NT):
            if t + 1 < NT: sread(t + 1)
            k.lwait(('s', t))
            p, R, N = sset[t & 1]
            for h in range(0, 8, 2):
                d = K + 8*t + h
                fg(f"v_pk_fma_f32 v[{d}:{d+1}], v[{ck(h)}:{ck(h)+1}], v[{p}:{p+1}], v[{d}:{d+1}] op_sel:[0,1,0] op_sel_hi:[1,1,1]")
            for h in range(0, 8, 2):
                d = Q + 8*t + h
                fg(f"v_pk_fma_f32 v[{d}:{d+1}], v[{CSQ+h}:{CSQ+h+1}], v[{p}:{p+1}], v[{d}:{d+1}] op_sel:[0,1,0] op_sel_hi:[1,1,1]")
            for a, VB in enumerate((V0, V1)):
                for h in (0, 2):
                    d = VB + 4*t + h
                    sel = "op_sel:[0,1,0] op_sel_hi:[1,1,1]" if a else "op_sel_hi:[1,0,1]"
                    fg(f"v_pk_fma_f32 v[{d}:{d+1}], v[{N+h}:{N+h+1}], v[{CSV}:{CSV+1}], v[{d}:{d+1}] {sel}")
            for h in range(0, 8, 2):
                d = K + 8*t + h
                fg(f"v_pk_mul_f32 v[{d}:{d+1}], v[{d}:{d+1}], v[{p}:{p+1}] op_sel_hi:[1,0]")
            for a, VB in enumerate((V0, V1)):
                for h in (0, 2):
                    d = VB + 4*t + h
                    fg(f"v_pk_mul_f32 v[{d}:{d+1}], v[{d}:{d+1}], v[{R+h}:{R+h+1}]")
            fg(f"v_mul_f32 v{RQ(t)}, {f2u(qs):#x}, v{p}")
            if t: smf(t - 1)
            if pfq and t % 3 == 2: pfq.pop(0)()
            for h in range(4):
                fg(f"v_cvt_pk_bf16_f32 v{Q+8*t+h}, v{Q+8*t+2*h}, v{Q+8*t+2*h+1}")
            for h in range(4):
                fg(f"v_cvt_pk_bf16_f32 v{K+8*t+h}, v{K+8*t+2*h}, v{K+8*t+2*h+1}")
            for a, VB in enumerate((V0, V1)):
                for h in range(2):
                    fg(f"v_cvt_pk_bf16_f32 v{VB+2*t+h}, v{VB+4*t+2*h}, v{VB+4*t+2*h+1}")
        smf(NT - 1)
        while pfq: pfq.pop(0)()
        TS = range(NT)
        MX = lambda t: RQ(t) + 1
        for t in TS:
            if t:
                for r in range(4):
                    fg(f"v_cndmask_b32 v{SC(t)+r}, v{SC(t)+r}, v{SP(t)+r}, s[{SEL[r]}:{SEL[r]+1}]")
            fg(f"v_max3_f32 v{MX(t)}, v{SC(t)}, v{SC(t)+1}, v{SC(t)+2}")
            fg(f"v_max_f32 v{MX(t)}, v{MX(t)}, v{SC(t)+3}")
        def xmax(g, tmp):
            a, b = MX(g[0]), MX(g[1])
            o = [f"v_permlane16_swap_b32 v{a}, v{b}", f"v_max_f32 v{a}, v{a}, v{b}"]
            if len(g) == 2:
                o += [f"v_mov_b32 v{b}, v{a}", f"v_permlane32_swap_b32 v{a}, v{b}", f"v_max_f32 v{a}, v{a}, v{b}"]
            else:
                cc = MX(g[2]); d = MX(g[3]) if len(g) == 4 else tmp
                if len(g) == 3: o = [f"v_mov_b32 v{d}, v{cc}"] + o
                o += [f"v_permlane16_swap_b32 v{cc}, v{d}", f"v_max_f32 v{cc}, v{cc}, v{d}",
                      f"v_permlane32_swap_b32 v{a}, v{cc}", f"v_max_f32 v{a}, v{a}, v{cc}",
                      f"v_mov_b32 v{cc}, v{a}", f"v_permlane32_swap_b32 v{a}, v{cc}"]
                if len(g) == 4: o += [f"v_mov_b32 v{d}, v{cc}"]
            o += [f"v_mov_b32 v{b}, v{a}"]
            if len(g) == 4: o += [f"v_permlane16_swap_b32 v{cc}, v{d}"]
            o += [f"v_permlane16_swap_b32 v{a}, v{b}"]
            return o
        g1, g2 = xmax(list(TS)[:4], 2), xmax(list(TS)[4:], 3)
        while g1 or g2:
            if g1: fg(g1.pop(0))
            if g2: fg(g2.pop(0))
        for t in TS: fg(f"v_mul_f32 v{MX(t)}, -v{MX(t)}, v{RQ(t)}")
        for t in TS:
            for h in (0, 2):
                fg(f"v_pk_fma_f32 v[{SC(t)+h}:{SC(t)+h+1}], v[{SC(t)+h}:{SC(t)+h+1}], v[{RQ(t)}:{RQ(t)+1}], v[{RQ(t)}:{RQ(t)+1}] op_sel:[0,0,1] op_sel_hi:[1,0,1]")
        def pv(t):
            P = Q + 8*t
            return [f"v_mfma_f32_16x16x32_bf16 v[{K+8*t}:{K+8*t+3}], v[{ONES}:{ONES+3}], v[{P}:{P+3}], 0",
                    f"v_mfma_f32_16x16x32_bf16 v[{SP(t)}:{SP(t)+3}], v[{V0+2*(t-1)}:{V0+2*(t-1)+3}], v[{P}:{P+3}], 0",
                    f"v_mfma_f32_16x16x32_bf16 v[{SC(t)}:{SC(t)+3}], v[{V1+2*(t-1)}:{V1+2*(t-1)+3}], v[{P}:{P+3}], 0"]
        pend = []
        for t in TS:
            P = Q + 8*t
            for r in range(4):
                fg(f"v_exp_f32 v{SC(t)+r}, v{SC(t)+r}")
                if pend and r: fg(pend.pop(0))
            for h in range(2):
                fg(f"v_cvt_pk_bf16_f32 v{P+2+h}, v{SC(t)+2*h}, v{SC(t)+2*h+1}")
            for h in range(2):
                fg(f"v_and_b32 v{P+h}, v{AP+h}, v{P+2+h}" if t else f"v_mov_b32 v{P+h}, 0")
            if t:
                for h in range(2):
                    fg(f"v_xor_b32 v{P+2+h}, v{P+h}, v{P+2+h}")
            pend = pv(t)
        for t in TS:
            if t == NT - 1:
                while pend: fg(pend.pop(0))
            fg(f"v_rcp_f32 v{K+8*t}, v{K+8*t}")
            if pend and t: fg(pend.pop(0))
        for t in TS:
            P = Q + 8*t
            for b in (SP(t), SP(t)+2, SC(t), SC(t)+2):
                k(f"v_pk_mul_f32 v[{b}:{b+1}], v[{b}:{b+1}], v[{K+8*t}:{K+8*t+1}] op_sel_hi:[1,0]")
            k(f"""v_cvt_pk_bf16_f32 v{P}, v{SP(t)}, v{SP(t)+1}
                  v_cvt_pk_bf16_f32 v{P+1}, v{SP(t)+2}, v{SP(t)+3}
                  v_cvt_pk_bf16_f32 v{P+2}, v{SC(t)}, v{SC(t)+1}
                  v_cvt_pk_bf16_f32 v{P+3}, v{SC(t)+2}, v{SC(t)+3}""")
            k.vmem(f"buffer_store_dwordx4 v[{P}:{P+3}], v{7 if t else 27}, s[{sWS}:{sWS+3}], s1 offen sc1", 'ost')
            k(f"s_add_u32 s1, s1, 16384")
        self.stamp(5)
        if duty:
            self.keep = 0
            self.to_p2()
        else:
            k.vwait('ost')
            k("s_barrier")
            self.o_flag(17)
            self.stamp(6)
            k("s_branch L_fin")

    def build(self):
        k, c = self.k, self.c
        self.prologue()
        base_vm = list(k.vm)
        k(f"""s_and_b32 s{sT0+2}, s{sXCD}, 1
              s_mul_i32 s{sT0+1}, s{sT0+2}, 6
              s_sub_u32 s{sT0+1}, 24, s{sT0+1}
              s_cmp_ge_u32 s{sIDX}, s{sT0+1}
              s_cbranch_scc1 L_attn""")
        if c.SKIPM:
            self.bg_reset(); self.start_x(); self.start_rest(); self.ln(sW1); k.vwait('hst'); k("s_barrier"); self.h_flag(17); k("s_branch L_fin")
        else: self.m1()
        k.label("L_attn")
        k(f"""s_bfe_u32 s{sPAR}, s{sXCD}, 0x10001
              s_lshr_b32 s{sG}, s{sXCD}, 2
              s_lshl_b32 s{sG}, s{sG}, 1
              s_and_b32 s{sT0}, s{sIDX}, 1
              s_add_u32 s{sG}, s{sG}, s{sT0}
              s_lshl_b32 s{sT0+2}, s{sT0+2}, 1
              s_cmp_ge_u32 s{sIDX}, 28
              s_cbranch_scc1 L_pure
              s_sub_u32 s{sBLK}, s{sIDX}, s{sT0+1}
              s_lshr_b32 s{sBLK}, s{sBLK}, 1
              s_add_u32 s{sBLK}, s{sBLK}, s{sT0+2}
              s_mul_i32 s{sAHI}, s{sBLK}, 11
              s_add_u32 s{sAHI}, s{sAHI}, 52
              s_add_u32 s{sBLK}, s{sBLK}, 4""")
        k.vm = list(base_vm)
        self.attn(6, True)
        k.label("L_pure")
        k(f"""s_bfe_u32 s{sBLK}, s{sIDX}, 0x10001
              s_add_u32 s{sBLK}, s{sBLK}, s{sT0+2}
              s_mul_i32 s{sAHI}, s{sBLK}, 13""")
        k.vm = list(base_vm)
        self.attn(7, False)
        self.p2()
        k.label("L_fin")
        if c.STAMPS:
            k("s_waitcnt vmcnt(0)")
            self.stamp(10)
            k("s_waitcnt lgkmcnt(0)")
            for i in range(22): k(f"v_mov_b32 v{8+i}, s{sSTAMP+i}")
            k(f"""s_lshl_b32 s{sT0}, s{sWG}, 2
                  s_add_u32 s{sT0}, s{sT0}, s{sWAVE}
                  s_lshl_b32 s{sT0}, s{sT0}, 7
                  s_add_u32 s{sT0}, s{sT0}, {WS_TS}
                  v_cmp_eq_u32 vcc, 0, v1
                  v_bfrev_b32 v2, 1
                  v_mov_b32 v30, 0
                  v_mov_b32 v31, 0
                  v_cndmask_b32 v2, v2, 0, vcc""")
            for i in range(6):
                k(f"buffer_store_dwordx4 v[{8+4*i}:{11+4*i}], v2, s[{sWS}:{sWS+3}], s{sT0} offen offset:{16*i}")
        if c.DIAG >= 0:
            k(f"""s_cmp_lg_u32 s{sWG}, {c.DIAGWG}
                  s_cbranch_scc1 L_end
                  s_sub_u32 s4, s{sSTAMP+2*c.DIAG}, s{sSTAMP}
                  {'s_lshr_b32 s4, s4, 1' if c.CYC else 's_mul_i32 s4, s4, 10'}
                  s_min_u32 s4, s4, 60000
                  s_add_u32 s4, s4, 6000""")
            if c.CYC: k(f"s_memrealtime s[{sSTAMP}:{sSTAMP+1}]\ns_waitcnt lgkmcnt(0)")
            k.label("L_diag")
            k(f"""s_memrealtime s[6:7]
                  s_waitcnt lgkmcnt(0)
                  s_sub_u32 s5, s6, s{sSTAMP}
                  s_cmp_lt_u32 s5, s4
                  s_cbranch_scc1 L_diag""")
        k.label("L_end")
        k("s_endpgm")
        lines, nins = hazard_fix(k.lines)
        hdr = open(os.path.join(os.path.dirname(os.path.abspath(__file__)), "..", "cdna_kernels", NAME + ".s.ref")).read().split("; Override launch")[0]
        out = hdr
        out += f"; @launch grid=(256,1,1) block=(256,1,1) lds={self.LDS_SIZE}\n"
        out += f'.amdgcn_target "amdgcn-amd-amdhsa--gfx950"\n.text\n.globl {NAME}_kernel\n.p2align 8\n.type {NAME}_kernel,@function\n{NAME}_kernel:\n'
        body = "\n".join(l if l.endswith(":") else "    " + l for l in lines)
        body = body.replace("CODE_BYTES", "L_end-L_pc")
        out += body + "\n"
        out += f""".section .rodata,"a"
.p2align 6
.amdhsa_kernel {NAME}_kernel
  .amdhsa_next_free_vgpr 512
  .amdhsa_next_free_sgpr 102
  .amdhsa_accum_offset 256
  .amdhsa_group_segment_fixed_size 0
  .amdhsa_kernarg_size 88
  .amdhsa_user_sgpr_count 2
  .amdhsa_user_sgpr_kernarg_segment_ptr 1
  .amdhsa_system_sgpr_workgroup_id_x 1
.end_amdhsa_kernel
"""
        return out, nins, len(lines)

if __name__ == "__main__":
    c = Cfg()
    outp = sys.argv[1]
    for a in sys.argv[2:]:
        kk, v = a.split("=", 1)
        old = getattr(c, kk)
        if isinstance(old, bool): v = v not in ("0", "False")
        elif isinstance(old, int): v = int(v, 0)
        else: v = (" " + v.replace("+", " ")) if v else ""
        setattr(c, kk, v)
    txt, nins, nl = Gen(c).build()
    open(outp, "w").write(txt)
    print(f"wrote {outp}: {nl} lines, {nins} hazard pads")
```

```python
import sys, struct, math, os
sys.path.insert(0, os.path.dirname(os.path.abspath(__file__)))
from kb import *

NAME = "recurrent_scan__sliding_local_dilated__mixer_token_mlp__prompt"
S, D, F = 2048, 448, 1792

class Cfg:
    FS = 16
    NR = 4
    LAG = 3
    PD1 = 12
    PD2 = 12
    LNW = 1
    HLAG = 8
    PRE0 = 8
    HPOS = 8
    UPOS = 8
    OPOS = 10
    S1W = 0xdb8530
    S1H = 0
    S2W = 0
    S2U = 0
    SAB = 3
    SAG = 0
    AMAP = 2
    TW0 = 7
    E1T = 16
    RGAP = 5
    UMID = False
    WRQ = 4
    WOPRE = 15
    WO0 = 4
    WOT = -1
    WLATE = 50
    RPEND = 0
    ULAG = 12
    PFJ = 3
    EW2 = 4
    ARD = 6
    PFWO = 2
    PFWI = 6
    PFP = 0x3e00
    AKEEP = 14
    PFO = -1
    TICK = 60
    WAUX = ""
    QAUX = ""
    XAUX = ""
    OAUX = ""
    LNA = 0
    PFI = 9
    PFD = 1
    APRE = 10
    AMID = 2
    SIDEH = 100
    ADEEP = 3
    SIDE0 = 60
    SIDE1 = 100
    HI = -1
    STI = 5
    AQ = 9
    STAMPS = False
    SMODE = 0
    CYC = False
    SPIN = 200000
    CODEPF = True
    DIAG = -1
    DIAGWG = 0
    SKIPA = False
    SKIPM = False
    NOP2 = False
    NOMFMA = False
    NOADV = False
    NOLD = False
    NOX = False

WS_EPOCH = 0
WS_FH = 0x1000
WS_FU = 0x9000
WS_FO = 0xF000
WS_STATS = 0x14000
WS_TS = 0x18000
WS_HT = 0x40000
WS_U = 0x240000
WS_O = 0x440000
O_PAR = 132 * 8192
WS_END = 0x680000
KS = 28 * 1024
KSU = 29 * 1024
OOB = 0x80000000

def f2u(x): return struct.unpack('<I', struct.pack('<f', x))[0]

sWG, sWAVE = 2, 3
sX, sWQKV, sWO, sW1, sW2, sB1, sB2, sOUT, sWS = 8, 12, 16, 20, 24, 28, 32, 36, 40
sTAG = 44
sXCD, sIDX = 46, 47
sST, sDJ = 48, 49
sFT, sJ = 50, 51
sRING = 52
sWOFF, sWLO, sWHI = 53, 54, 55
sAOFF, sALO, sAHI = 56, 57, 58
sW2OFF, sW2LO, sW2HI = 59, 60, 61
sG, sPAR, sBLK = 62, 63, 64
sSPIN = 65
sUOFF, sULO, sUHI, sWOOFF, sWOM0, sXOFF, sB2OFF, sOOFF = 66, 67, 68, 69, 70, 71, 72, 73
sT0 = 74
sSTAMP = 80

vTR, vW2 = 248, 252
vWOR = 244
vXD = 236
vWOD, vXO, vB2, vUF, vOFL, vOO, vL16 = 224, 225, 227, 228, 229, 230, 231
vPOLL = 232
vFL = 233

LN_PITCH = 960

def cost(line):
    mn = line.split()[0]
    if mn.startswith('v_mfma'): return 16
    if mn in TRANS or mn.startswith('v_permlane'): return 8
    if mn.startswith('ds_write_b128'): return 50
    if mn.startswith('ds_read_b128'): return 16
    if mn.startswith('s_'): return 4
    return 5

class Gap:
    def __init__(self): self.p = 1; self.pd = -9; self.nd = 0; self.v = False
    def take(self, kind):
        p = self.p
        if kind == 'S' or kind == 'V':
            p = max(p, self.pd + 2, 2 if kind == 'V' else 1)
            if p > 3 or self.nd > 1: return False
            self.p = p + 1; self.v |= kind == 'V'
        elif kind == 'T':
            if p > 2 or self.nd: return False
            self.p = 4; self.v = True
        elif kind == 'D':
            if p > 3 or self.v or self.nd > 1: return False
            self.pd = p; self.p = p + 1; self.nd += 1
        else:
            if p > 1: return False
            self.p = 4
        return True

def kind_of(line):
    if '\n' in line.strip(): return 'X'
    mn = line.split()[0]
    if mn in TRANS or mn.startswith('v_permlane'): return 'T'
    if mn.startswith('v_'): return 'V'
    if mn.startswith('ds_read'): return 'D'
    if mn.startswith('s_'): return 'S'
    return 'X'

class Gen:
    def __init__(self, c):
        self.c = c
        self.k = KB()
        self.LDS_WO = 4 * c.NR * 4096
        self.LDS_RED = self.LDS_WO + 58 * 1024
        self.LDS_LN = 153600
        self.LDS_SIZE = 163840
        assert self.LDS_RED + 24576 <= self.LDS_LN
        self.bg_reset()
        self.scc_open = False

    def stamp(self, i, mode=0):
        if self.c.STAMPS and (mode == self.c.SMODE or i in (0, 10)):
            self.k(f"{'s_memtime' if self.c.CYC else 's_memrealtime'} s[{sSTAMP+2*i}:{sSTAMP+2*i+1}]")

    def bg_reset(self):
        self.vq = []
        self.rq = []
        self.nv = 0
        self.nq = 0
        self.budget = 0
        self.keep = 0
        self.reads_done = set()
    def q(self, op):
        self.vq.append(op); self.nq += 1
    def tick(self, n=1, reads=2):
        for _ in range(n):
            if self.vq:
                self.vq.pop(0)(); self.nv += 1
            for _ in range(reads):
                if self.rq and (self.rq[0][0] <= self.nv or not self.vq):
                    self.rq.pop(0)[1]()
    def tick_until(self, count):
        while self.nv < count and self.vq: self.tick()
    def drain_reads(self):
        while self.rq: self.rq.pop(0)[1]()
    def fg(self, text, ds=None, isds=False):
        for l in text.strip('\n').split('\n'):
            l = l.strip()
            if not l: continue
            if isds: self.k.ds(l, ds)
            else: self.k(l)
            self.budget += cost(l)
            if self.budget >= self.c.TICK:
                self.budget -= self.c.TICK
                if len(self.vq) > max(self.keep, self.c.UPOS + 1): self.tick()

    def q_wstream(self, ns, srd, vq, soff, slo, shi, stride, tag, inserts=None):
        k, c = self.k, self.c
        inserts = inserts or {}
        for n in range(ns):
            slot = n % c.NR
            for qq in range(4):
                if 4*n + qq in inserts: self.q(inserts[4*n + qq])
                def op(n=n, qq=qq, slot=slot):
                    if qq == 0:
                        if n >= c.NR:
                            while (tag, n - c.NR) not in self.reads_done: self.rq.pop(0)[1]()
                            k.lwait((tag, n - c.NR))
                        k(f"s_add_u32 m0, s{sRING}, {slot*16384}")
                        if n: k(f"s_add_u32 s{soff}, s{soff}, {32*stride}\ns_cmp_ge_u32 s{soff}, s{shi}\ns_cselect_b32 s{soff}, s{slo}, s{soff}")
                    off = f" offset:{qq*1024}" if qq else ""
                    k.vmem(f"buffer_load_dwordx4 v{vq+qq}, s[{srd}:{srd+3}], s{soff} offen{off}{c.WAUX} lds", (tag, n))
                self.q(op)
            for a in range(4):
                for h in range(2):
                    def rd(n=n, a=a, h=h, slot=slot):
                        k.vwait((tag, n))
                        b = 16*n + 4*a + 2*h
                        k.ds(f"ds_read_b64_tr_b16 a[{b}:{b+1}], v{vTR+a} offset:{slot*16384 + h*2048}", (tag, n))
                        if a == 3 and h == 1: self.reads_done.add((tag, n))
                    self.rq.append((self.nq + 4*(c.LAG - 1) + 1, rd))

    def prologue(self):
        k, c = self.k, self.c
        self.stamp(0)
        for reg, off in ((sX, 0), (sW1, 32), (sWQKV, 8), (sWS, 80), (sB1, 40)):
            k(f"s_load_dwordx2 s[{reg}:{reg+1}], s[0:1], {off}")
        k(f"""s_cmp_ge_u32 s{sWG}, 256
              s_cbranch_scc1 L_end
              s_lshr_b32 s{sIDX}, s{sWG}, 3
              v_lshrrev_b32 v2, 6, v0""")
        if c.CODEPF:
            k(f"s_getpc_b64 s[{sT0}:{sT0+1}]")
            k.label("L_pc")
            k(f"""v_lshrrev_b32 v7, 4, v0
                  v_lshl_add_u32 v7, v7, 5, s{sIDX}
                  v_lshlrev_b32 v7, 7, v7
                  v_min_u32 v7, CODE_BYTES, v7""")
            k.vmem(f"global_load_dword v39, v7, s[{sT0}:{sT0+1}]", 'cpf')
        k(f"""v_readfirstlane_b32 s{sWAVE}, v2
              s_and_b32 s{sXCD}, s{sWG}, 7
              v_and_b32 v1, 63, v0""")

    def start_x(self):
        k, c = self.k, self.c
        k(f"""v_lshrrev_b32 v12, 5, v0
              s_lshl_b32 s{sT0+4}, s{sWG}, 3
              v_and_b32 v13, 31, v0
              v_add_u32 v12, s{sT0+4}, v12
              v_cmp_gt_u32 s[{sT0+4}:{sT0+5}], 28, v13
              v_mul_u32_u24 v12, 896, v12
              v_bfrev_b32 v14, 1
              v_lshl_add_u32 v12, v13, 4, v12
              s_mov_b32 s{sX+2}, {S*D*2}
              s_mov_b32 s{sX+3}, 0x20000
              v_cndmask_b32 v12, v14, v12, s[{sT0+4}:{sT0+5}]
              s_mov_b32 s{sW1+2}, {S*F*2}
              s_mov_b32 s{sW1+3}, 0x20000
              s_mov_b32 s{sWQKV+2}, {D*3*D*2}
              s_mov_b32 s{sWQKV+3}, 0x20000
              s_waitcnt lgkmcnt(0)""")
        k.vmem(f"buffer_load_dwordx4 v[40:43], v12, s[{sX}:{sX+3}], 0 offen{c.XAUX}", 'lnx')
        k.vmem(f"buffer_load_dwordx4 v[44:47], v12, s[{sX}:{sX+3}], 0 offen offset:448{c.XAUX}", 'lnx')

    def start_rest(self):
        k, c = self.k, self.c
        k(f"s_load_dword s{sTAG}, s[{sWS}:{sWS+1}], {WS_EPOCH}")
        for reg, off in ((sWO, 16), (sW2, 48), (sB2, 56), (sOUT, 64)):
            k(f"s_load_dwordx2 s[{reg}:{reg+1}], s[0:1], {off}")
        for reg, n in ((sWS, WS_END), (sWO, D*D*2), (sW2, F*S*2), (sB2, S*2), (sOUT, S*D*2)):
            k(f"s_mov_b32 s{reg+2}, {n}\ns_mov_b32 s{reg+3}, 0x20000")
        if c.STAMPS:
            for i in range(1, 11): k(f"s_mov_b64 s[{sSTAMP+2*i}:{sSTAMP+2*i+1}], 0")

    def ln(self, sL, SD=48, weave=lambda: None, early=lambda: None):
        k, c = self.k, self.c
        k(f"""v_lshrrev_b32 v76, 5, v0
              v_mul_u32_u24 v72, {LN_PITCH}, v76
              v_and_b32 v77, 31, v0
              v_lshl_add_u32 v72, v77, 4, v72
              v_add_u32 v72, {self.LDS_LN}, v72
              v_lshrrev_b32 v73, 5, v1
              v_lshlrev_b32 v73, 4, v73
              s_lshl_b32 s{sL}, s{sWAVE}, 2
              s_add_u32 s{sL}, s{sL}, {self.LDS_LN + 7680}
              v_add_u32 v73, s{sL}, v73
              v_bfe_u32 v76, v1, 2, 2
              v_mul_u32_u24 v76, {LN_PITCH}, v76
              v_lshrrev_b32 v77, 4, v1
              v_lshl_add_u32 v76, v77, 5, v76
              v_and_b32 v78, 3, v1
              v_lshl_add_u32 v76, v78, 3, v76
              s_lshl_b32 s{sL}, s{sWAVE}, 7
              s_add_u32 s{sL}, s{sL}, {self.LDS_LN}
              v_add_u32 v74, s{sL}, v76
              v_and_b32 v79, 15, v1
              v_lshlrev_b32 v79, 4, v79
              v_lshl_add_u32 v75, v77, 10, v79
              s_lshr_b32 s{sL}, s{sWG}, 2
              s_mul_i32 s{sL}, s{sL}, {KS}
              s_and_b32 s{sL+1}, s{sWG}, 3
              s_lshl_b32 s{sL+1}, s{sL+1}, 8
              s_add_u32 s{sL}, s{sL}, s{sL+1}
              s_lshl_b32 s{sL+1}, s{sWAVE}, 12
              s_add_u32 s{sL}, s{sL}, s{sL+1}
              s_add_u32 s{sL}, s{sL}, {WS_HT}
              s_add_u32 s{sL+1}, s{sL}, 16384
              s_mov_b32 s{sL+2}, 0x3f803f80""")
        early()
        k.vwait('lnx')
        self.stamp(1)
        X = 40
        k(f"v_dot2_f32_bf16 v76, v{X}, s{sL+2}, 0\nv_dot2_f32_bf16 v77, v{X}, v{X}, 0")
        for i in range(1, 8):
            k(f"v_dot2_f32_bf16 v76, v{X+i}, s{sL+2}, v76\nv_dot2_f32_bf16 v77, v{X+i}, v{X+i}, v77")
        un = []
        for i in range(8):
            un.append(f"v_lshlrev_b32 v{48+2*i}, 16, v{X+i}")
            un.append(f"v_and_b32 v{49+2*i}, 0xffff0000, v{X+i}")
        def fill(n):
            for _ in range(n):
                if un: k(un.pop(0))
        weave()
        fill(3)
        for m in ("quad_perm:[1,0,3,2]", "quad_perm:[2,3,0,1]", "row_half_mirror", "row_mirror"):
            k(f"v_add_f32_dpp v76, v76, v76 {m} row_mask:0xf bank_mask:0xf")
            k(f"v_add_f32_dpp v77, v77, v77 {m} row_mask:0xf bank_mask:0xf")
            fill(1)
        weave()
        k("v_mov_b32 v78, v76\nv_mov_b32 v79, v77")
        fill(2)
        k("v_permlane16_swap_b32 v76, v78\nv_permlane16_swap_b32 v77, v79")
        fill(1)
        k(f"""v_add_f32 v76, v76, v78
              v_add_f32 v77, v77, v79
              v_mul_f32 v76, {f2u(1.0/D):#x}, v76
              v_mul_f32 v77, {f2u(1.0/D):#x}, v77
              v_fma_f32 v77, -v76, v76, v77
              v_max_f32 v77, 0, v77
              v_add_f32 v78, {f2u(1e-5):#x}, v77
              v_rsq_f32 v78, v78""")
        fill(2)
        k(f"""v_mul_f32 v79, v78, v78
              v_mov_b32 v80, {f2u(1e-5):#x}
              v_fmac_f32 v80, v77, v79
              v_rsq_f32 v80, v80
              v_sub_f32 v79, 0, v76""")
        fill(16)
        k("v_mul_f32 v82, v78, v80\nv_mul_f32 v83, v79, v82")
        k.ds("ds_write2_b32 v73, v78, v79 offset1:8")
        weave()
        for hf in range(2):
            for i in range(4*hf, 4*hf+4):
                k(f"v_pk_fma_f32 v[{48+2*i}:{49+2*i}], v[{48+2*i}:{49+2*i}], v[82:83], v[82:83] op_sel:[0,0,1] op_sel_hi:[1,0,1]")
            for i in range(4*hf, 4*hf+4):
                k(f"v_cvt_pk_bf16_f32 v{X+i}, v{48+2*i}, v{49+2*i}")
            k.ds(f"ds_write_b128 v72, v[{X+4*hf}:{X+4*hf+3}] offset:{448*hf}")
        weave()
        k.lwait_all()
        k("s_barrier")
        l3, lj = k.newlabel("L_ln3"), k.newlabel("L_lnj")
        k(f"""ds_read_b64_tr_b16 v[{SD}:{SD+1}], v74
              ds_read_b64_tr_b16 v[{SD+2}:{SD+3}], v74 offset:{4*LN_PITCH}
              s_cmp_eq_u32 s{sWAVE}, 3
              s_cbranch_scc1 {l3}
              ds_read_b64_tr_b16 v[{SD+4}:{SD+5}], v74 offset:512
              ds_read_b64_tr_b16 v[{SD+6}:{SD+7}], v74 offset:{4*LN_PITCH + 512}
              v_mov_b32 v80, v75
              s_branch {lj}""")
        k.label(l3)
        k(f"""v_and_b32 v78, 3, v1
              v_lshlrev_b32 v78, 4, v78
              v_add_u32 v78, {self.LDS_LN + 7680}, v78
              ds_read_b128 v[{SD+4}:{SD+7}], v78
              v_lshlrev_b32 v80, 12, v1
              v_cmp_gt_u32 vcc, 4, v1
              v_bfrev_b32 v81, 1
              s_lshl_b32 s{sL+1}, s{sWG}, 4
              s_add_u32 s{sL+1}, s{sL+1}, {WS_STATS}
              v_cndmask_b32 v80, v81, v80, vcc""")
        k.label(lj)
        k(f"""s_mul_i32 s{sTAG+1}, s{sTAG}, 0x2c9277b5
              s_mul_i32 s{sTAG}, s{sTAG}, 0x9e3779b1
              s_add_u32 s{sTAG+1}, s{sTAG+1}, 0x5bd1e995
              s_add_u32 s{sTAG}, s{sTAG}, 0x7f4a7c15
              s_waitcnt lgkmcnt(0)""")
        k.vmem(f"buffer_store_dwordx4 v[{SD}:{SD+3}], v75, s[{sWS}:{sWS+3}], s{sL} offen sc1", 'hst')
        k.vmem(f"buffer_store_dwordx4 v[{SD+4}:{SD+7}], v80, s[{sWS}:{sWS+3}], s{sL+1} offen sc1", 'hst')

    def flag(self, addr_code, vt, epoch=False, so=sT0):
        k = self.k
        skip = k.newlabel("L_flag")
        k(f"s_cmp_lg_u32 s{sWAVE}, 0\ns_cbranch_scc1 {skip}")
        k(f"""v_cmp_eq_u32 vcc, 0, v1
              v_bfrev_b32 v{vt}, 1
              v_mov_b32 v{vt+1}, s{sTAG}
              v_mov_b32 v{vt+2}, s{sTAG+1}
              v_cndmask_b32 v{vt}, v{vt}, 0, vcc""")
        k(addr_code)
        k(f"buffer_store_dwordx2 v[{vt+1}:{vt+2}], v{vt}, s[{sWS}:{sWS+3}], s{so} offen sc1")
        if epoch:
            k(f"s_cmp_lg_u32 s{sWG}, 0\ns_cbranch_scc1 {skip}")
            k(f"buffer_store_dword v{vt+1}, v{vt}, s[{sWS}:{sWS+3}], 0 offen sc1")
        k.label(skip)

    def h_flag(self, vt):
        self.flag(f"s_mul_i32 s{sSPIN}, s{sWG}, {self.c.FS}\ns_add_u32 s{sSPIN}, s{sSPIN}, {WS_FH}", vt, so=sSPIN)
        self.stamp(2)

    def poll_issue(self, vaddr, vt, tok):
        self.k.vmem(f"buffer_load_dwordx2 v[{vt}:{vt+1}], v{vaddr}, s[{sWS}:{sWS+3}], 0 offen sc1", tok)

    def poll_check(self, vaddr, vt, tok):
        k, c = self.k, self.c
        lp, done = k.newlabel("L_poll"), k.newlabel("L_polled")
        k.vwait(tok)
        k(f"""v_cmp_ne_u64 vcc, s[{sTAG}:{sTAG+1}], v[{vt}:{vt+1}]
              s_mov_b32 s{sSPIN}, 0
              s_cbranch_vccz {done}""")
        k.label(lp)
        k(f"""buffer_load_dwordx2 v[{vt}:{vt+1}], v{vaddr}, s[{sWS}:{sWS+3}], 0 offen sc1
              s_waitcnt vmcnt(0)
              v_cmp_ne_u64 vcc, s[{sTAG}:{sTAG+1}], v[{vt}:{vt+1}]
              s_add_u32 s{sSPIN}, s{sSPIN}, 1
              s_cbranch_vccz {done}
              s_cmp_lt_u32 s{sSPIN}, {c.SPIN}
              s_cbranch_scc1 {lp}""")
        k.label(done)

    def w_addr_code(self, vq, stride, t=12):
        s = f"""v_lshrrev_b32 v{t}, 3, v1
              v_lshrrev_b32 v{t+1}, 5, v1
              v_and_b32 v{t+2}, 3, v{t}
              v_lshl_add_u32 v{t+1}, v{t+1}, 3, v{t+2}
              v_mul_u32_u24 v{t+1}, {stride}, v{t+1}
              v_and_b32 v{t+2}, 6, v{t}
              v_and_b32 v{t+3}, 7, v1
              v_xor_b32 v{t+2}, v{t+2}, v{t+3}
              v_lshl_add_u32 v{vq}, v{t+2}, 4, v{t+1}\n"""
        for qq in range(1, 4):
            h, G = qq >> 1, qq & 1
            s += f"v_add_u32 v{vq+qq}, {(16*G + 4*h)*stride - qq*1024}, v{vq}\n"
        return s

    def w_tr_code(self, t=12):
        s = f"""v_bfe_u32 v{t}, v1, 2, 3
              v_lshrrev_b32 v{t+1}, 5, v1
              v_lshlrev_b32 v{t+1}, 10, v{t+1}
              v_lshl_add_u32 v{t+1}, v{t}, 7, v{t+1}
              v_and_b32 v{t+2}, 3, v1
              v_lshl_add_u32 v{t+1}, v{t+2}, 3, v{t+1}
              v_add_u32 v{t+1}, s{sRING}, v{t+1}
              v_lshrrev_b32 v{t}, 1, v{t}\n"""
        for a in range(4):
            s += f"""s_add_u32 s{sT0}, s{sWAVE}, {a}
                  s_and_b32 s{sT0}, s{sT0}, 3
                  v_xor_b32 v{t+2}, s{sT0}, v{t}
                  v_lshl_add_u32 v{vTR+a}, v{t+2}, 5, v{t+1}\n"""
        return s

    def p2_setup_code(self, t=12):
        c = self.c
        WO = self.LDS_WO
        a, b, d, e = t, t+1, t+2, t+3
        s = f"""s_mul_i32 s{sT0}, s{sIDX}, 37
              s_lshr_b32 s{sT0}, s{sT0}, 8
              s_mul_i32 s{sT0+1}, s{sT0}, 7
              s_sub_u32 s{sDJ}, s{sIDX}, s{sT0+1}
              s_lshl_b32 s{sST}, s{sXCD}, 2
              s_add_u32 s{sST}, s{sST}, s{sT0}
              s_lshl_b32 s{sT0}, s{sT0}, 2
              s_lshr_b32 s{sT0}, {c.S2U:#x}, s{sT0}
              s_and_b32 s{sT0}, s{sT0}, 15
              s_lshl_b32 s{sT0+1}, s{sDJ}, 2
              s_lshr_b32 s{sT0+1}, {c.S2W:#x}, s{sT0+1}
              s_and_b32 s{sT0+1}, s{sT0+1}, 15
              s_add_u32 s{sT0}, s{sT0}, s{sT0+1}
              s_sub_u32 s{sT0+1}, s{sT0}, 14
              s_min_u32 s{sT0}, s{sT0}, s{sT0+1}
              s_mul_i32 s{sW2LO}, s{sWAVE}, {448*4096}
              s_lshl_b32 s{sT0+1}, s{sST}, 7
              s_add_u32 s{sW2LO}, s{sW2LO}, s{sT0+1}
              s_add_u32 s{sW2HI}, s{sW2LO}, {448*4096}
              s_mul_i32 s{sT0+1}, s{sT0}, {32*4096}
              s_add_u32 s{sW2OFF}, s{sW2LO}, s{sT0+1}
              s_mul_i32 s{sULO}, s{sWAVE}, {14*KSU}
              s_lshl_b32 s{sT0+1}, s{sDJ}, 12
              s_add_u32 s{sULO}, s{sULO}, s{sT0+1}
              s_add_u32 s{sULO}, s{sULO}, {WS_U}
              s_add_u32 s{sUHI}, s{sULO}, {14*KSU}
              s_mul_i32 s{sT0+1}, s{sT0}, {KSU}
              s_add_u32 s{sUOFF}, s{sULO}, s{sT0+1}\n"""
        s += self.w_addr_code(vW2, 4096, t)
        s += f"""v_lshlrev_b32 v{vL16}, 4, v1
              v_lshrrev_b32 v{a}, 3, v1
              v_mul_u32_u24 v{b}, 896, v{a}
              v_and_b32 v{d}, 6, v{a}
              v_and_b32 v{e}, 7, v1
              v_xor_b32 v{d}, v{d}, v{e}
              v_lshl_add_u32 v{vWOD}, v{d}, 4, v{b}
              s_mul_i32 s{sWOOFF}, s{sWAVE}, {112*896}
              s_lshl_b32 s{sT0+2}, s{sDJ}, 7
              s_add_u32 s{sWOOFF}, s{sWOOFF}, s{sT0+2}
              s_mul_i32 s{sWOM0}, s{sWAVE}, {14*1024}
              s_add_u32 s{sWOM0}, s{sWOM0}, {WO}
              v_and_b32 v{a}, 15, v1
              v_mul_u32_u24 v{vXO}, 896, v{a}
              v_bfe_u32 v{b}, v1, 4, 1
              v_lshl_add_u32 v{vXO}, v{b}, 5, v{vXO}
              v_lshrrev_b32 v{b}, 5, v1
              v_lshl_add_u32 v{vXO}, v{b}, 4, v{vXO}
              v_lshlrev_b32 v{vB2-1}, 1, v{a}
              s_lshl_b32 s{sT0}, s{sST}, 2
              s_add_u32 s{sT0}, s{sT0}, s{sWAVE}
              s_mul_i32 s{sXOFF}, s{sT0}, {16*896}
              s_add_u32 s{sXOFF}, s{sXOFF}, s{sT0+2}
              s_lshl_b32 s{sB2OFF}, s{sT0}, 5
              s_lshl_b32 s{sOOFF}, s{sT0}, 13
              s_add_u32 s{sOOFF}, s{sOOFF}, {WS_O}
              s_mul_i32 s{sT0+1}, s{sT0}, 79
              s_lshr_b32 s{sT0+1}, s{sT0+1}, 10
              s_min_u32 s{sT0+1}, s{sT0+1}, 4
              s_max_u32 s{sT0+3}, s{sT0}, 52
              s_sub_u32 s{sT0+3}, s{sT0+3}, 52
              s_mul_i32 s{sT0+3}, s{sT0+3}, 94
              s_lshr_b32 s{sT0+3}, s{sT0+3}, 10
              s_add_u32 s{sT0+3}, s{sT0+3}, s{sT0+1}
              v_min_u32 v{a}, 13, v1
              v_and_b32 v{b}, 1, v{a}
              v_mul_u32_u24 v{b}, 3, v{b}
              s_lshl_b32 s{sT0+1}, s{sDJ}, 2
              v_add_u32 v{b}, s{sT0+1}, v{b}
              v_mul_u32_u24 v{b}, 52, v{b}
              v_lshrrev_b32 v{b}, 8, v{b}
              v_lshrrev_b32 v{a}, 1, v{a}
              s_mul_i32 s{sT0+1}, s{sWAVE}, 7
              v_add_u32 v{a}, s{sT0+1}, v{a}
              v_mad_u32_u24 v{a}, v{a}, 6, v{b}
              v_mul_u32_u24 v{a}, {c.FS}, v{a}
              v_add_u32 v{vUF}, {WS_FU}, v{a}
              v_and_b32 v{a}, 7, v1
              v_lshl_add_u32 v{a}, v{a}, 4, s{sT0+3}
              v_mul_u32_u24 v{a}, {c.FS}, v{a}
              v_add_u32 v{vOFL}, {WS_FO}, v{a}
              v_and_b32 v{a}, 1, v1
              v_mul_u32_u24 v{a}, {O_PAR}, v{a}
              v_lshrrev_b32 v{b}, 4, v1
              v_lshl_add_u32 v{a}, v{b}, 7, v{a}
              v_bfe_u32 v{b}, v1, 1, 3
              v_lshl_add_u32 v{vOO}, v{b}, 4, v{a}
              v_lshrrev_b32 v{a}, 2, v1
              v_lshlrev_b32 v{b}, 7, v{a}
              v_and_b32 v{d}, 3, v1
              v_lshl_add_u32 v{b}, v{d}, 3, v{b}
              v_add_u32 v{b}, {WO}, v{b}
              v_bfe_u32 v{a}, v1, 3, 2\n"""
        for i in range(4):
            s += f"v_xor_b32 v{d}, {i}, v{a}\nv_lshl_add_u32 v{vWOR+i}, v{d}, 5, v{b}\n"
        return s

    def red_addr_code(self, v, vl16):
        RED = self.LDS_RED
        o = [f"""s_mul_i32 s{sT0}, s{sWAVE}, 3072
              s_add_u32 s{sT0}, s{sT0}, {RED}
              v_add_u32 v{v}, s{sT0}, v{vl16}"""]
        for a in range(1, 4):
            o.append(f"""s_sub_u32 s{sT0}, s{sWAVE}, {a}
                  s_and_b32 s{sT0}, s{sT0}, 3
                  s_mul_i32 s{sT0}, s{sT0}, 3072
                  s_add_u32 s{sT0}, s{sT0}, {RED + (a-1)*1024}
                  v_add_u32 v{v+a}, s{sT0}, v{vl16}""")
        return o

    def reduce_ops(self, t, acc, vred, R, T, then):
        k = self.k
        par = (t & 1) * 12288
        o = []
        for a in range(1, 4):
            o.append([3, 'X', lambda a=a: k.ds(f"ds_write_b128 v{vred}, v[{acc+4*a}:{acc+4*a+3}] offset:{par + (a-1)*1024}", ('rw', t))])
        o.append([self.c.RGAP, 'X', lambda: (k.lwait(('rw', t)), k("s_barrier"))])
        for a in range(3):
            o.append([0, 'D', lambda a=a: k.ds(f"ds_read_b128 v[{R+4*a}:{R+4*a+3}], v{vred+1+a} offset:{par}", ('rr', t))])
        o.append([5, 'S', lambda: k.lwait(('rr', t))])
        for a in range(3):
            for r in range(4):
                o.append([0, 'V', lambda a=a, r=r: (k(f"v_add_f32 v{T+r}, v{(T if a else acc)+r}, v{R+4*a+r}"), then() if a == 2 and r == 3 else None)])
        return o

    def group(self, mf, sc, fl, fb, rd=None, dfirst=False):
        k = self.k
        sc = list(sc)
        for a in range(4):
            k(mf[a])
            for q in (fl, fb):
                if q and q[0][0] > 0: q[0][0] -= 1
            if a == 3: break
            g = Gap()
            left = 3 - a
            xq = [q for q in (fl, fb) if q and q[0][0] == 0 and q[0][1] == 'X']
            if xq and len(sc) <= 3*(left - 1) and not self.scc_open:
                xq[0].pop(0)[2](); continue
            need = max(0, len(sc) - 2*(left - 1)) if left > 1 else len(sc)
            want = max(need, min(1, len(sc)))
            nd = 0
            if rd and dfirst and need <= 0 and len(sc) <= left - 1 + (left > 1):
                while rd(False) and g.take('D'): rd(True)
                if g.nd: want = 0
            for _ in range(want):
                g.take('S'); sc.pop(0)()
            if rd and (dfirst or not any(q and q[0][0] == 0 for q in (fl, fb))):
                while rd(False) and g.take('D'): rd(True)
            for q in (fl, fb):
                while q and q[0][0] == 0 and q[0][1] != 'X' and g.take(q[0][1]): q.pop(0)[2]()
            while sc and g.take('S'): sc.pop(0)()
        assert not sc

    def adv_ops(self, off, lo, hi, step):
        k = self.k
        def cmp_(): k(f"s_cmp_ge_u32 s{off}, s{hi}"); self.scc_open = True
        def sel(): k(f"s_cselect_b32 s{off}, s{lo}, s{off}"); self.scc_open = False
        return [lambda: k(f"s_add_u32 s{off}, s{off}, {step}"), cmp_, sel]

    def q_p2(self):
        k, c = self.k, self.c
        tail = 3 + c.WOPRE
        ins = {56 - (c.UPOS - tail): lambda: self.poll_issue(vUF, vPOLL, 'Upoll')} if c.UPOS > tail else None
        self.q_wstream(14, sW2, vW2, sW2OFF, sW2LO, sW2HI, 4096, 'W2', ins)
        ops = [lambda: k.vmem(f"buffer_load_dwordx4 v[{vXD}:{vXD+3}], v{vXO}, s[{sX}:{sX+3}], s{sXOFF} offen", 'x'),
               lambda: k.vmem(f"buffer_load_dwordx4 v[{vXD+4}:{vXD+7}], v{vXO}, s[{sX}:{sX+3}], s{sXOFF} offen offset:64", 'x'),
               lambda: k.vmem(f"buffer_load_ushort v{vB2}, v{vB2-1}, s[{sB2}:{sB2+3}], s{sB2OFF} offen", 'x')]
        ops += [lambda e=e: self.wo_dma(e) for e in range(c.WOPRE)]
        if c.UPOS <= tail: ops.insert(tail - c.UPOS, lambda: self.poll_issue(vUF, vPOLL, 'Upoll'))
        for op in ops: self.q(op)

    def wo_dma(self, e):
        k = self.k
        assert self.red_free
        k(f"s_add_u32 m0, s{sWOM0}, {e*1024}")
        if e: k(f"s_add_u32 s{sWOOFF}, s{sWOOFF}, {8*896}")
        k.vmem(f"buffer_load_dwordx4 v{vWOD}, s[{sWO}:{sWO+3}], s{sWOOFF} offen lds", 'Wo')

    def to_p2(self):
        k, c = self.k, self.c
        while len(self.vq) > 1:
            if len(self.vq) == 19: self.stamp(3, 3)
            if len(self.vq) == 35: self.stamp(2, 3)
            self.tick()
        while len(self.rq) > c.RPEND: self.rq.pop(0)[1]()
        self.tick(reads=0)
        i = k.vm.index('Upoll')
        first = min([i] + [j for j, t in enumerate(k.vm) if len(self.rq) and t == ('W2', 14 - (len(self.rq) + 7)//8)])
        st = (k.vm[first:], len(self.rq))
        if hasattr(self, 'join'): assert self.join[:2] == st, (self.join[:2], st)
        self.join = st + (list(self.rq),)
        self.stamp(7); self.stamp(4, 3)
        k("s_branch L_fin" if self.c.NOP2 else "s_branch L_p2")

    def m1(self):
        k, c = self.k, self.c
        self.bg_reset()
        ACC, STG = 32, 112
        k(f"""s_mul_i32 s{sT0}, s{sIDX}, 43
              s_lshr_b32 s{sT0}, s{sT0}, 8
              s_mul_i32 s{sT0+1}, s{sT0}, 6
              s_sub_u32 s{sJ}, s{sIDX}, s{sT0+1}
              s_lshr_b32 s{sT0+1}, s{sXCD}, 1
              s_mul_i32 s{sT0+1}, s{sT0+1}, 7
              s_and_b32 s{sT0+2}, s{sXCD}, 1
              s_lshl_b32 s{sT0+3}, s{sT0+2}, 2
              s_add_u32 s{sT0+1}, s{sT0+1}, s{sT0+3}
              s_add_u32 s{sFT}, s{sT0+1}, s{sT0}""")
        k(f"""s_lshl_b32 s{sT0}, s{sT0}, 2
              s_lshr_b32 s{sT0}, {c.S1H:#x}, s{sT0}
              s_lshl_b32 s{sT0+1}, s{sJ}, 2
              s_lshr_b32 s{sT0+1}, {c.S1W:#x}, s{sT0+1}
              s_add_u32 s{sT0}, s{sT0}, s{sT0+1}
              s_and_b32 s{sT0}, s{sT0}, 15
              s_lshl_b32 s{sRING}, s{sWAVE}, 12
              s_mul_i32 s{sWLO}, s{sWAVE}, {512*3584}
              s_lshl_b32 s{sT0+1}, s{sFT}, 7
              s_add_u32 s{sWLO}, s{sWLO}, s{sT0+1}
              s_add_u32 s{sWHI}, s{sWLO}, {512*3584}
              s_mul_i32 s{sT0+1}, s{sT0}, {32*3584}
              s_add_u32 s{sWOFF}, s{sWLO}, s{sT0+1}""")
        k(self.w_addr_code(2, 3584))
        vHF = 26
        self.q_wstream(16, sW1, 2, sWOFF, sWLO, sWHI, 3584, 'W1', {64 - c.HPOS: lambda: self.poll_issue(vHF, 28, 'Hpoll')} if c.HPOS else None)
        if not c.HPOS: self.q(lambda: self.poll_issue(vHF, 28, 'Hpoll'))
        nw1 = self.nq
        self.start_x()
        self.tick(c.PRE0, reads=0)
        k(f"""v_lshrrev_b32 v12, 4, v1
              v_lshlrev_b32 v12, 3, v12
              s_lshl_b32 s{sT0+2}, s{sFT}, 7
              s_lshl_b32 s{sT0+1}, s{sWAVE}, 5
              s_add_u32 s{sT0+2}, s{sT0+2}, s{sT0+1}
              s_mov_b32 s{sB1+2}, {F*2}
              s_mov_b32 s{sB1+3}, 0x20000""")
        k.vmem(f"buffer_load_dwordx2 v[24:25], v12, s[{sB1}:{sB1+3}], s{sT0+2} offen", 'b1')
        self.start_rest()
        k(f"""s_mul_i32 s{sALO}, s{sWAVE}, {16*KS}
              s_mul_i32 s{sT0+1}, s{sJ}, 5120
              s_add_u32 s{sALO}, s{sALO}, s{sT0+1}
              s_add_u32 s{sALO}, s{sALO}, {WS_HT}
              s_add_u32 s{sAHI}, s{sALO}, {16*KS}
              s_mul_i32 s{sT0+1}, s{sT0}, {KS}
              s_add_u32 s{sAOFF}, s{sALO}, s{sT0+1}""")
        k(self.w_tr_code())
        self.ln(sWQKV, weave=lambda: self.tick(c.LNW, reads=0))
        self.tick(c.HLAG, reads=4)
        k.vwait('hst')
        k("s_barrier")
        self.h_flag(17)
        self.fg(f"""v_lshlrev_b32 v10, 4, v1
              s_mov_b32 s{sG}, -1
              v_add_u32 v11, 4096, v10""")
        self.fg(f"""s_mul_i32 s{sT0}, s{sWAVE}, {64*c.FS}
              s_add_u32 s{sT0}, s{sT0}, {WS_FH}
              v_mul_u32_u24 v{vHF}, {c.FS}, v1
              v_add_u32 v{vHF}, s{sT0}, v{vHF}""")
        self.fg(self.p2_setup_code())
        for l in self.red_addr_code(6, 10): self.fg(l)
        self.fg(f"""v_lshrrev_b32 v12, 4, v1
              v_and_b32 v13, 1, v12
              v_lshrrev_b32 v12, 1, v12
              v_lshlrev_b32 v12, 8, v12
              v_and_b32 v14, 15, v1
              v_lshl_add_u32 v12, v14, 4, v12
              v_lshl_add_u32 v20, v13, 10, v12
              v_lshl_add_u32 v21, v13, 31, v12""")
        c1 = -2.0 * math.sqrt(2.0 / math.pi) * math.log2(math.e)
        self.fg(f"""v_add_u32 v21, 2048, v21
              s_lshl_b32 s0, s{sFT}, 1
              s_lshr_b32 s{sT0+1}, s{sWAVE}, 1
              s_add_u32 s0, s0, s{sT0+1}
              s_mul_i32 s0, s0, {KSU}
              s_mul_i32 s{sT0+1}, s{sJ}, 5120
              s_add_u32 s0, s0, s{sT0+1}
              s_and_b32 s{sT0+1}, s{sWAVE}, 1
              s_lshl_b32 s{sT0+1}, s{sT0+1}, 9
              s_add_u32 s0, s0, s{sT0+1}
              s_add_u32 s0, s0, {WS_U}
              v_mov_b32 v30, {f2u(c1):#x}
              s_mov_b32 s1, {f2u(c1*0.044715):#x}""")
        assert self.nv < nw1 - c.HPOS - 1
        self.tick_until(nw1 - 1)
        k(f"s_cmp_eq_u32 s{sJ}, 5\ns_cbranch_scc1 L_m3")
        st = (list(k.vm), list(k.lg), list(self.vq), list(self.rq), self.nv, self.nq, set(self.reads_done))
        self.m1_rest(5, nw1, vHF)
        k.label("L_m3")
        k.vm, k.lg, self.vq, self.rq, self.nv, self.nq, self.reads_done = st
        self.m1_rest(3, nw1, vHF)

    def m1_rest(self, NL, nw1, vHF):
        k, c = self.k, self.c
        ACC, STG = 32, 112
        RED = self.LDS_RED
        NF = 16*NL
        def hload(n):
            t, i = divmod(n, 16)
            b = STG + 4*(n % c.PD1)
            va, off = (10, t*1024) if t < 4 else (11, 0)
            o = f" offset:{off}" if off else ""
            k.vmem(f"buffer_load_dwordx4 v[{b}:{b+3}], v{va}, s[{sWS}:{sWS+3}], s{sAOFF} offen{o} sc1", ('H', n))
            if n < c.PD1 - 1: k(hadv)
        hadv = f"s_add_u32 s{sAOFF}, s{sAOFF}, {KS}\ns_cmp_ge_u32 s{sAOFF}, s{sAHI}\ns_cselect_b32 s{sAOFF}, s{sALO}, s{sAOFF}"
        for n in range(NF): self.q(lambda n=n: hload(n))
        self.tick_until(nw1)
        if NL == 3 and c.PFJ:
            k(f"""v_lshrrev_b32 v12, 2, v1
                  v_lshlrev_b32 v12, 12, v12
                  v_and_b32 v13, 3, v1
                  v_lshl_add_u32 v12, v13, 7, v12
                  s_lshl_b32 s{sT0}, s{sXCD}, 9
                  s_mul_i32 s{sT0+1}, s{sWAVE}, {448*4096}
                  s_add_u32 s{sT0}, s{sT0}, s{sT0+1}
                  s_mul_i32 s{sT0+1}, s{sIDX}, 43
                  s_lshr_b32 s{sT0+1}, s{sT0+1}, 8
                  s_lshl_b32 s{sT0+1}, s{sT0+1}, 16
                  s_add_u32 s{sT0}, s{sT0}, s{sT0+1}
                  s_and_b32 s{sT0+1}, s{sXCD}, 1
                  s_sub_u32 s{sT0+1}, 4, s{sT0+1}
                  s_lshl_b32 s{sT0+1}, s{sT0+1}, 16""")
            for e in range(c.PFJ):
                k.vmem(f"buffer_load_dword v27, v12, s[{sW2}:{sW2+3}], s{sT0} offen", 'pf')
                k(f"s_add_u32 s{sT0}, s{sT0}, s{sT0+1}")
        self.stamp(3)
        self.poll_check(vHF, 28, 'Hpoll')
        self.stamp(4)
        k.vwait('b1')
        k(f"""v_lshlrev_b32 v12, 16, v24
              v_and_b32 v13, 0xffff0000, v24
              v_lshlrev_b32 v14, 16, v25
              v_and_b32 v15, 0xffff0000, v25""")
        self.tick(c.PD1)
        self.drain_reads()
        self.red_free = True
        self.q_p2()
        R, E, PK, TS = 64, 76, 80, 92
        def epi(t):
            return self.reduce_ops(t, ACC + 16*(t & 1), 6, R, TS + 4*(t & 1), lambda: fb.extend(act(t)))
        def act(t):
            d = TS + 4*(t & 1)
            o = []
            pk = PK + 4*(t >> 1)
            L = []
            L += [f"v_mul_f32 v{E+r}, v{d+r}, v{d+r}" for r in range(4)]
            L += [f"v_fma_f32 v{E+r}, v{E+r}, s1, v30" for r in range(4)]
            L += [f"v_mul_f32 v{E+r}, v{E+r}, v{d+r}" for r in range(4)]
            L += [f"v_exp_f32 v{E+r}, v{E+r}" for r in range(4)]
            L += [f"v_add_f32 v{E+r}, 1.0, v{E+r}" for r in range(4)]
            L += [f"v_rcp_f32 v{E+r}, v{E+r}" for r in range(4)]
            L += [f"v_mul_f32 v{E+r}, v{E+r}, v{d+r}" for r in range(4)]
            L += [f"v_cvt_pk_bf16_f32 v{pk+2*(t&1)+h}, v{E+2*h}, v{E+2*h+1}" for h in range(2)]
            o += [[0, kind_of(l), lambda l=l: k(l)] for l in L]
            if t & 1 or t == NL - 1:
                va, off = {1: (20, ""), 2: (21, ""), 3: (20, " offset:2048"), 4: (21, " offset:2048")}[t]
                o.append([1, 'T', lambda: k(f"v_permlane16_swap_b32 v{pk}, v{pk+2}")])
                o.append([0, 'T', lambda: k(f"v_permlane16_swap_b32 v{pk+1}, v{pk+3}")])
                st = lambda: k.vmem(f"buffer_store_dwordx4 v[{pk}:{pk+3}], v{va}, s[{sWS}:{sWS+3}], s0 offen{off} sc1", 'ust')
                if c.UMID or t == NL - 1: o.append([1, 'X', st])
                else: held.append(st)
            return o
        fl = []; fb = []; held = []
        for n in range(NF):
            t, i = divmod(n, 16)
            b = STG + 4*(n % c.PD1)
            if i == 0:
                assert not fl, len(fl)
                if t: fl = epi(t - 1)
            k.lwait(('W1', i))
            k.vwait(('H', n))
            mf = []
            for a in (1, 2, 3, 0):
                d = ACC + 16*(t & 1) + 4*a
                cin = ("v[12:15]" if a == 0 else "0") if i == 0 else f"v[{d}:{d+3}]"
                mf.append(f"v_mfma_f32_16x16x32_bf16 v[{d}:{d+3}], a[{16*i+4*a}:{16*i+4*a+3}], v[{b}:{b+3}], {cin}")
            sc = self.adv_ops(sAOFF, sALO, sAHI, KS) if n + c.PD1 < NF else []
            if n + 1 < NF: sc.append(lambda: k.vwait(('H', n + 1)))
            self.group(mf, sc, fl, fb)
            if n + c.PD1 == NF: k.lwait(('W1', 15))
            self.tick(reads=0)
        assert not fl
        self.stamp(5); self.stamp(5, 3)
        self.budget = 0
        cnt = 0
        old, fb[:] = list(fb), []
        for gap, _, op in epi(NL - 1):
            if gap >= 3:
                self.tick()
                for _ in range(6):
                    if old: old.pop(0)[2]()
                if not old:
                    while held: held.pop(0)()
            op()
        assert not old and not held
        for gap, _, op in fb:
            op()
            cnt += 1
            if cnt % c.E1T == 0: self.tick()
        self.stamp(6, 3)
        self.tick(min(c.ULAG, len(self.vq) - c.UPOS - 1))
        self.stamp(7, 3)
        k.vwait('ust')
        self.stamp(8, 3)
        k("s_barrier")
        self.stamp(9, 3)
        self.flag(f"""s_mul_i32 s{sT0}, s{sFT}, 6
              s_add_u32 s{sT0}, s{sT0}, s{sJ}
              s_mul_i32 s{sT0}, s{sT0}, {c.FS}
              s_add_u32 s{sT0}, s{sT0}, {WS_FU}""", 17, epoch=True)
        self.stamp(6)
        self.to_p2()

    def p2(self):
        k, c = self.k, self.c
        k.label("L_p2")
        self.bg_reset()
        k.vm = list(self.join[0])
        k.lg = ['w2r']
        self.rq = [(0, r[1]) for r in self.join[2]]
        self.red_free = True
        ACC, SAC, G, R, E, STG, WV = 32, 64, 80, 96, 108, 112, 160
        assert STG + 4*c.PD2 <= WV
        self.poll_check(vUF, vPOLL, 'Upoll')
        self.stamp(8)
        NF = 56
        uadv = f"s_add_u32 s{sUOFF}, s{sUOFF}, {KSU}\ns_cmp_ge_u32 s{sUOFF}, s{sUHI}\ns_cselect_b32 s{sUOFF}, s{sULO}, s{sUOFF}"
        def uload(n):
            t, i = divmod(n, 14)
            b = STG + 4*(n % c.PD2)
            o = f" offset:{t*1024}" if t else ""
            if n == NF - c.OPOS: self.poll_issue(vOFL, vPOLL, 'Opoll')
            k.vmem(f"buffer_load_dwordx4 v[{b}:{b+3}], v{vL16}, s[{sWS}:{sWS+3}], s{sUOFF} offen{o} sc1", ('U', n))
            if n < c.PD2 - 1: k(uadv)
        def oload(hd):
            if hd == 0: self.poll_check(vOFL, vPOLL, 'Opoll')
            b = STG + 4*((NF + hd) % c.PD2)
            o = f" offset:{(hd&7)*512}" if hd & 7 else ""
            if hd == 8: k(f"s_add_u32 s{sOOFF}, s{sOOFF}, 4096")
            k.vmem(f"buffer_load_dwordx4 v[{b}:{b+3}], v{vOO}, s[{sWS}:{sWS+3}], s{sOOFF} offen{o} sc1", ('U', NF + hd))
        for n in range(NF): self.q(lambda n=n: uload(n))
        for hd in range(16): self.q(lambda hd=hd: oload(hd))
        self.tick(c.PD2)
        self.drain_reads()
        k.vwait('x')
        if c.WOT < 0:
            assert c.WOPRE == 15
            k.vwait('Wo')
            k(f"s_barrier\ns_cmp_eq_u32 s{sG}, -1\ns_cbranch_scc1 L_noflag")
        else: k(f"s_cmp_eq_u32 s{sG}, -1\ns_cbranch_scc1 L_noflag\ns_barrier")
        self.o_flag(17)
        k.label("L_noflag")
        k.lwait('w2r')
        woq = list(range(c.WOPRE, 15))
        wo_ok = [None] if c.WOT >= 0 else []
        XF = 2
        for r in range(4): k(f"v_lshlrev_b32 v{20+r}, 16, v{vB2}")
        side = [f"v_permlane16_swap_b32 v{vXD+p}, v{vXD+p+2}" for p in (0, 1, 4, 5)]
        for i in range(8):
            side += [f"v_lshlrev_b32 v{XF+2*i}, 16, v{vXD+i}", f"v_and_b32 v{XF+2*i+1}, 0xffff0000, v{vXD+i}"]
        side += self.red_addr_code(24, vL16)
        fl = []; fb = [[0, kind_of(l), lambda l=l: k(l)] for l in side]
        def wreg(hd, o, n):
            if hd < 2: return ar(224 + 16*hd + o, n)
            if hd < 6: return vr(WV + 16*(hd - 2) + o, n)
            return ar(16*(hd - 6) + o, n)
        wr = []
        for hd in range(16):
            for t in range(4):
                for hh in range(2):
                    wr.append((0 if hd < 6 else 42 + hd - 6 + 1, f"ds_read_b64_tr_b16 {wreg(hd, 4*t + 2*hh, 2)}, v{vWOR + (t ^ (2*(hd & 1)))} offset:{(28*hd + 16*hh)*128}", ('wo', hd)))
        nl2e = f"{f2u(-math.log2(math.e)):#x}"
        def epi(t):
            if t == 0: assert not fb
            o = self.reduce_ops(t, ACC + 16*(t & 1), 24, R, G + 4*t, lambda: fb.extend(act(t)))
            if t == c.WOT:
                assert not woq
                bar = o[3][2]
                o[3][2] = lambda: (k.vwait('Wo'), bar(), wo_ok.pop())
            return o
        def act(t):
            d = G + 4*t
            L = []
            L += [f"v_mul_f32 v{E+r}, {nl2e}, v{d+r}" for r in range(4)]
            L += [f"v_exp_f32 v{E+r}, v{E+r}" for r in range(4)]
            L += [f"v_add_f32 v{E+r}, 1.0, v{E+r}" for r in range(4)]
            L += [f"v_rcp_f32 v{E+r}, v{E+r}" for r in range(4)]
            L += [f"v_mul_f32 v{G+4*t+r}, v{E+r}, v{d+r}" for r in range(4)]
            return [[0, kind_of(l), lambda l=l: k(l)] for l in L]
        for n in range(NF + 16):
            t, i = divmod(n, 14)
            b = STG + 4*(n % c.PD2)
            if i == 0 and 1 <= t <= 4:
                assert not fl, len(fl)
                fl = epi(t - 1)
            if n == NF: self.stamp(9)
            if t == 0: k.lwait(('W2', i))
            k.vwait(('U', n))
            if n >= NF:
                assert not any(w[2] == ('wo', n - NF) for w in wr)
                k.lwait(('wo', n - NF))
            mf = []
            for a in (1, 2, 3, 0):
                if n < NF:
                    d = ACC + 16*(t & 1) + 4*a
                    cin = ("v[20:23]" if a == 0 else "0") if i == 0 else f"v[{d}:{d+3}]"
                    mf.append(f"v_mfma_f32_16x16x32_bf16 v[{d}:{d+3}], v[{b}:{b+3}], a[{16*i+4*a}:{16*i+4*a+3}], {cin}")
                else:
                    tt = (a - 1) & 3
                    d = SAC + 4*tt
                    cin = "0" if n == NF else f"v[{d}:{d+3}]"
                    mf.append(f"v_mfma_f32_16x16x32_bf16 v[{d}:{d+3}], {wreg(n - NF, 4*tt, 4)}, v[{b}:{b+3}], {cin}")
            sc = self.adv_ops(sUOFF, sULO, sUHI, KSU) if n + c.PD2 < NF else []
            if n + 1 < NF + 16: sc.append(lambda: k.vwait(('U', n + 1)))
            quota = [c.WRQ]
            def rd(do):
                if not (wr and not wo_ok and wr[0][0] <= n and quota[0]): return False
                if do:
                    w = wr.pop(0); k.ds(w[1], w[2]); quota[0] -= 1
                return True
            self.group(mf, sc, fl, fb, rd, n >= c.WLATE)
            if woq and n >= c.WO0: self.wo_dma(woq.pop(0))
            if self.vq: self.tick()
            else:
                quota[0] = 2
                while rd(True): pass
        assert not wr
        self.left = len(fl) + len(fb)
        while fl: fl.pop(0)[2]()
        while fb: fb.pop(0)[2]()
        for t in range(4):
            d = G + 4*t; s_ = SAC + 4*t; x = XF + 4*t
            for h in (0, 2):
                k(f"v_pk_fma_f32 v[{d+h}:{d+h+1}], v[{d+h}:{d+h+1}], v[{s_+h}:{s_+h+1}], v[{x+h}:{x+h+1}]")
            k(f"v_cvt_pk_bf16_f32 v{vXD+2*t}, v{d}, v{d+1}\nv_cvt_pk_bf16_f32 v{vXD+1+2*t}, v{d+2}, v{d+3}")
            if t & 1:
                p = vXD + 4*(t >> 1)
                k(f"v_permlane16_swap_b32 v{p}, v{p+2}\nv_permlane16_swap_b32 v{p+1}, v{p+3}")
                o = " offset:64" if t == 3 else ""
                k.vmem(f"buffer_store_dwordx4 v[{p}:{p+3}], v{vXO}, s[{sOUT}:{sOUT+3}], s{sXOFF} offen{o}{c.OAUX}", 'out')
        self.stamp(8, 4)

    def o_flag(self, vt):
        self.flag(f"""s_lshl_b32 s{sT0}, s{sG}, 1
              s_add_u32 s{sT0}, s{sT0}, s{sPAR}
              s_lshl_b32 s{sT0}, s{sT0}, 4
              s_add_u32 s{sT0}, s{sT0}, s{sBLK}
              s_mul_i32 s{sT0}, s{sT0}, {self.c.FS}
              s_add_u32 s{sT0}, s{sT0}, {WS_FO}""", vt)

    def attn(self, NT, duty):
        k, c = self.k, self.c
        self.bg_reset()
        k.lg = []
        if c.SKIPA:
            self.start_x(); self.start_rest(); self.ln(sW1)
            k(f"s_lshl_b32 s{sRING}, s{sWAVE}, 12")
            if duty: k(self.w_tr_code()); k(self.p2_setup_code())
            k.vwait('hst'); k("s_barrier"); self.h_flag(17); self.o_flag(21)
            if duty:
                k("s_sleep 127\ns_sleep 30")
                self.red_free = True; self.q_p2(); self.to_p2()
            else: k("s_branch L_fin")
            return
        WSLOT, NW = 24576, 4
        XB = NW * WSLOT
        XSLOT, NX = NT * 2048, 3
        nx = 2*NT
        nxe = (nx + 3) // 4
        nxmin = nx // 4
        sWO0, sWO1, sXO, sWM, sXM, sOCT = sWOFF, sWLO, sWHI, sAOFF, sALO, sAHI
        sXE = 4
        vW, vX, vXR, vWR = 2, 3, 8, 30
        Q, K = 40, 40 + 8*NT
        V0 = K + 8*NT + 4
        V1 = V0 + 4*NT + 4
        T0 = V1 + 4*NT
        RQ = lambda t: T0 + 2*t
        CSQ = T0 + 2*NT
        MC, MC0 = CSQ + 8, CSQ + 12
        assert MC0 + 4 <= (224 if duty else 256)
        ONES, AP = 20, 10
        k(f"""s_mul_i32 s{sT0}, s{sBLK}, {c.SAB}
              s_mul_i32 s{sT0+1}, s{sPAR if c.AMAP == 1 else sG}, {c.SAG}
              s_add_u32 s{sT0}, s{sT0}, s{sT0+1}
              s_mul_i32 s{sT0+1}, s{sT0}, 147
              s_lshr_b32 s{sT0+1}, s{sT0+1}, 10
              s_mul_i32 s{sT0+1}, s{sT0+1}, 7
              s_sub_u32 s{sT0}, s{sT0}, s{sT0+1}
              s_lshl_b32 s{sXO}, s{sT0}, 7
              s_mul_i32 s{sWO0}, s{sT0}, {64*2688}
              s_add_u32 s{sWO1}, s{sWO0}, {4*2688}""")
        k(f"""s_and_b32 s{sT0+2}, s{sWAVE}, 1
              s_lshl_b32 s{sT0}, s{sT0+2}, 3
              v_subrev_u32 v12, s{sT0}, v1
              v_mul_u32_u24 v13, 147, v12
              v_lshrrev_b32 v13, 11, v13
              v_mul_u32_u24 v14, 14, v13
              v_sub_u32 v14, v12, v14
              s_lshl_b32 s{sT0+3}, s{sWAVE}, 3
              v_add_u32 v13, s{sT0+3}, v13
              v_mul_u32_u24 v13, 2688, v13
              v_lshl_add_u32 v13, v14, 4, v13
              s_mul_i32 s{sT0}, s{sG}, 224
              v_cmp_gt_u32 s[6:7], 56, v12
              v_add_u32 v13, s{sT0}, v13
              v_bfrev_b32 v14, 1
              s_lshl_b32 s{sWM}, s{sWAVE}, 10
              s_add_u32 s{sXM}, s{sWM}, {XB}
              v_cndmask_b32 v{vW}, v14, v13, s[6:7]""")
        def wdma(i):
            ops = []
            slot = (i + 2) % NW
            for sec in range(3):
                for h in range(2):
                    pre = f"s_add_u32 m0, s{sWM}, {slot*WSLOT + (2*sec+h)*4096 - sec*896}\n"
                    if sec == 0 and h == 0 and i and not c.NOADV:
                        pre += f"s_add_u32 s{sWO0}, s{sWO0}, {32*2688}\n"
                        if i % 2 == 0: pre += f"s_cmp_ge_u32 s{sWO0}, {448*2688}\ns_cselect_b32 s{sWO0}, 0, s{sWO0}\n"
                    if sec == 0 and h == 1 and i:
                        pre += f"s_add_u32 s{sWO1}, s{sWO0}, {4*2688}\n"
                    def op(sec=sec, h=h):
                        if c.NOLD and i >= 2: return
                        o = f" offset:{sec*896}" if sec else ""
                        k.vmem(f"buffer_load_dwordx4 v{vW}, s[{sWQKV}:{sWQKV+3}], s{sWO1 if h else sWO0} offen{o}{c.QAUX} lds", ('W', i))
                    ops.append((max(i - NW, -1), i, pre, op))
            return ops
        def xdma(ch):
            ops = []
            slot = ch % NX
            first = -1 if ch < NX else 2*(ch - NX) + 1
            for e in reversed(range(nxe)):
                pre = f"s_add_u32 m0, s{sXM}, {slot*XSLOT + e*4096}\n"
                if e == nxe - 1 and ch and not c.NOADV:
                    pre += f"s_add_u32 s{sXO}, s{sXO}, 128\ns_cmp_ge_u32 s{sXO}, 896\ns_cselect_b32 s{sXO}, 0, s{sXO}\n"
                def op(e=e):
                    if (c.NOLD or c.NOX) and ch >= 1: return
                    t = f"buffer_load_dwordx4 v{vX+e}, s[{sX}:{sX+3}], s{sXO} offen{c.XAUX} lds"
                    if e >= nxmin:
                        l = k.newlabel("L_xs")
                        k(f"s_cmp_ge_u32 s{sWAVE}, {nx - 4*nxmin}\ns_cbranch_scc1 {l}")
                        k(t); k.label(l)
                    elif e == 0:
                        k(f"s_mov_b64 exec, s[{sXE}:{sXE+1}]")
                        k.vmem(t, ('X', ch))
                        k("s_mov_b64 exec, -1")
                    else:
                        k.vmem(t, ('X', ch))
                ops.append((first, 2*ch, pre, op))
            return ops
        dq = wdma(0) + xdma(0) + wdma(1)
        for ch in range(1, 7):
            dq += xdma(ch) + wdma(2*ch) + wdma(2*ch + 1)
        def pop(n=1):
            for _ in range(n):
                e = dq.pop(0); k(e[2]); e[3]()
        self.start_x()
        pop(min(6, c.APRE))
        k(f"""s_lshl_b32 s{sT0}, s{sOCT}, 3
              s_add_u32 s{sT0}, s{sT0}, s{sT0+3}
              s_sub_u32 s{sT0}, s{sT0}, 8
              v_lshrrev_b32 v12, 3, v1
              v_add_u32 v13, s{sT0}, v12
              s_lshl_b32 s{sT0+1}, s{sT0+2}, 2
              v_lshrrev_b32 v12, 1, v12
              v_add_u32 v12, s{sT0+1}, v12
              v_and_b32 v14, 7, v1
              v_xor_b32 v12, v12, v14
              v_lshlrev_b32 v12, 4, v12
              s_mul_i32 s{sT0+1}, s{sPAR}, 896
              v_add_u32 v12, s{sT0+1}, v12
              s_movk_i32 s{sT0+2}, 1023
              s_movk_i32 s{sT0+3}, 1792
              s_cmp_eq_u32 s{sWAVE}, 0
              s_cselect_b32 s{sXE}, 0xffffff00, -1
              s_mov_b32 s{sXE+1}, -1""")
        for e in range(nxe):
            k(f"""v_add_u32 v14, {32*e}, v13
                  v_med3_i32 v14, v14, 0, s{sT0+2}
                  v_mad_u32_u24 v{vX+e}, v14, s{sT0+3}, v12""")
        pop(max(0, c.APRE - 6))
        self.start_rest()
        k(f"""v_mov_b32 v{ONES}, 0x3f803f80
              v_and_b32 v13, 31, v0
              v_lshlrev_b32 v13, 2, v13
              v_add_u32 v13, {XB}, v13""")
        for sl in range(NX):
            k.ds(f"ds_write_b32 v13, v{ONES} offset:{sl*XSLOT}")
        k(f"""v_and_b32 v12, 15, v1
              v_lshrrev_b32 v13, 4, v1
              v_lshrrev_b32 v14, 1, v12
              v_xor_b32 v14, v14, v13
              v_lshlrev_b32 v14, 4, v14
              v_lshl_add_u32 v14, v12, 7, v14
              v_add_u32 v{vXR}, {XB}, v14
              v_xor_b32 v{vXR+1}, 64, v{vXR}
              v_lshlrev_b32 v14, 10, v13
              v_and_b32 v15, 1, v13
              v_xor_b32 v16, 1, v15
              v_mul_u32_u24 v16, 896, v16
              v_add_u32 v16, v14, v16
              v_lshl_add_u32 v14, v15, 7, v14
              v_bfe_u32 v15, v1, 2, 2
              v_mul_u32_u24 v15, 224, v15
              v_add_u32 v14, v14, v15
              v_and_b32 v15, 3, v1
              v_lshl_add_u32 v14, v15, 3, v14
              s_mul_i32 s{sT0}, s{sWAVE}, 56
              v_cmp_eq_u32 s[6:7], 3, v15
              v_add_u32 v{vWR}, s{sT0}, v14
              v_add_u32 v{vWR+1}, {2*WSLOT}, v{vWR}
              v_add_u32 v14, 32, v{vWR}
              v_cndmask_b32 v{vWR+2}, v14, v16, s[6:7]
              v_add_u32 v{vWR+3}, {2*WSLOT}, v{vWR+2}""")
        FB = 4*NT + 24
        def fx(i, t): return 256 - 2*FB + (i & 1)*FB + 4*t
        def fw(i, sec, a): return 256 - 2*FB + (i & 1)*FB + 4*NT + 8*sec + 4*a
        def reads(i):
            ops = []
            ws = (i + 2) % NW; xs = (i >> 1) % NX
            b = fx(i, 0)
            xr = lambda t: f"ds_read_b128 a[{fx(i,t)}:{fx(i,t)+3}], v{vXR + (i & 1)} offset:{xs*XSLOT + t*2048}"
            ops.append(xr(0))
            for sec in range(3):
                for a in range(2):
                    for h in range(2):
                        b = fw(i, sec, a) + 2*h
                        ops.append(f"ds_read_b64_tr_b16 a[{b}:{b+1}], v{vWR + 2*a + (ws >> 1)} offset:{(ws & 1)*WSLOT + (2*sec+h)*4096}")
            for t in range(1, NT): ops.append(xr(t))
            return ops
        def mfmas(i):
            ops = []
            for t in range(NT):
                x = f"a[{fx(i,t)}:{fx(i,t)+3}]"
                for sec in range(3):
                    for a in range(2):
                        w = f"a[{fw(i,sec,a)}:{fw(i,sec,a)+3}]"
                        d = (Q + 8*t + 4*a, K + 8*t + 4*a, (V1 if a else V0) + 4*t)[sec]
                        cin = "0" if i == 0 else f"v[{d}:{d+3}]"
                        A, B = (x, w) if sec == 2 else (w, x)
                        ops.append(f"v_mfma_f32_16x16x32_bf16 v[{d}:{d+3}], {A}, {B}, {cin}")
            return ops
        SB = self.LDS_LN
        side = f"""s_lshl_b32 s{sT0}, s{sOCT}, 1
              s_sub_u32 s{sT0}, s{sT0}, 2
              v_and_b32 v12, 31, v1
              v_min_u32 v12, {4*NT-1}, v12
              v_add_u32 v12, s{sT0}, v12
              s_movk_i32 s{sT0+1}, 255
              v_med3_i32 v12, v12, 0, s{sT0+1}
              v_mul_u32_u24 v13, {c.FS}, v12
              v_add_u32 v24, {WS_FH}, v13
              v_lshrrev_b32 v13, 5, v1
              v_lshlrev_b32 v13, 13, v13
              v_lshl_add_u32 v25, v12, 4, v13
              s_lshl_b32 s0, s{sPAR}, 12
              s_add_u32 s0, s0, {WS_STATS}
              s_lshl_b32 s{sT0}, s{sWAVE}, 10
              s_add_u32 s{sT0}, s{sT0}, {SB}
              v_lshl_add_u32 v26, v1, 4, s{sT0}
              v_and_b32 v12, 15, v1
              v_lshl_add_u32 v34, v12, 2, s{sT0}
              v_lshrrev_b32 v13, 4, v1
              v_lshl_add_u32 v35, v13, 4, s{sT0}
              v_mov_b32 v{ONES+1}, v{ONES}
              v_mov_b32 v{ONES+2}, v{ONES}
              v_mov_b32 v{ONES+3}, v{ONES}
              v_mov_b32 v{V0-2}, 0
              v_mov_b32 v{V0-1}, 0
              v_mov_b32 v{V1-2}, 0
              v_mov_b32 v{V1-1}, 0
              s_lshl_b32 s{sRING}, s{sWAVE}, 12\n"""
        if duty: side += self.w_tr_code() + self.p2_setup_code()
        pfo = c.PFJ if c.PFO < 0 else c.PFO
        side += f"""s_and_b32 s{sT0}, s{sXCD}, 1
              s_mul_i32 s{sT0+1}, s{sT0}, 6\n"""
        if duty:
            side += f"""s_add_u32 s{sT0+5}, s{sT0+1}, 4
              s_add_u32 s{sT0+4}, s{sIDX}, s{sT0+1}
              s_sub_u32 s{sT0+4}, s{sT0+4}, 24
              s_sub_u32 s{sT0}, 4, s{sT0}
              s_mul_i32 s{sT0}, s{sT0}, {pfo}
              s_add_u32 s{sT0+4}, s{sT0+4}, s{sT0}\n"""
        else:
            side += f"""s_add_u32 s{sT0+4}, s{sT0+1}, 4
              s_mul_i32 s{sT0+4}, s{sT0+4}, {c.PFD}
              s_sub_u32 s{sT0+1}, 4, s{sT0}
              s_mul_i32 s{sT0+1}, s{sT0+1}, {pfo}
              s_add_u32 s{sT0+4}, s{sT0+4}, s{sT0+1}
              s_and_b32 s{sT0+1}, s{sIDX}, 3
              s_add_u32 s{sT0+4}, s{sT0+4}, s{sT0+1}
              s_mov_b32 s{sT0+5}, 4
              s_lshl_b32 s{sT0+1}, s{sT0+1}, 2
              s_add_u32 s{sT0+1}, s{sT0+1}, s{sWAVE}
              s_lshl_b32 s{sT0+1}, s{sT0+1}, 13
              v_lshl_add_u32 v36, v1, 7, s{sT0+1}
              s_and_b32 s{sT0+1}, s{sIDX}, 3
              s_lshl_b32 s{sT0+1}, s{sT0+1}, 3
              s_add_u32 s{sT0+1}, s{sT0+1}, s{sXCD}
              s_lshl_b32 s{sT0}, s{sWAVE}, 5
              s_add_u32 s{sT0+1}, s{sT0+1}, s{sT0}
              s_lshl_b32 s{sT0+1}, s{sT0+1}, 13
              v_lshl_add_u32 v{MC0+9}, v1, 7, s{sT0+1}
              v_mov_b32 v{MC0+8}, v36\n"""
        side += f"""v_lshrrev_b32 v12, 2, v1
              v_lshlrev_b32 v12, 12, v12
              v_and_b32 v13, 3, v1
              v_lshl_add_u32 v12, v13, 7, v12
              s_lshl_b32 s{sT0}, s{sXCD}, 9
              s_mul_i32 s{sT0+1}, s{sWAVE}, {448*4096}
              s_add_u32 s{sT0}, s{sT0}, s{sT0+1}
              v_add_u32 v38, s{sT0}, v12\n"""
        def pf_w2():
            k(f"""s_lshl_b32 s{sT0}, s{sT0+4}, 16
                  s_cmp_ge_u32 s{sT0+4}, 28
                  s_cselect_b32 s{sT0}, 0x40000000, s{sT0}
                  s_add_u32 s{sT0+4}, s{sT0+4}, s{sT0+5}""")
            k.vmem(f"buffer_load_dword v39, v38, s[{sW2}:{sW2+3}], s{sT0} offen", 'pf')
        def pf_wo(e):
            k(f"s_mov_b32 s{sT0}, {e*16*8192}")
            k.vmem(f"buffer_load_dword v39, v{MC0+8}, s[{sWO}:{sWO+3}], s{sT0} offen", 'pf')
        pfq = []
        if c.PFI >= 0:
            if duty: pfq = [pf_w2] * c.PFD
            else:
                nw2 = max(7 - c.PFD - pfo, -(-(28 - 3*pfo - 10*c.PFD) // 4))
                pfq = [lambda: (k.vmem(f"buffer_load_dword v39, v36, s[{sB2}:{sB2+3}], 0 offen", 'pf'), pf_w2())]
                pfq += [pf_w2] * (nw2 - 1)
                if c.PFWO == 2: pfq += [lambda: (pf_wo(0), pf_wo(3)), lambda: pf_wo(1), lambda: pf_wo(2)]
        SEL = [6, 46, 48, 50]
        side += f"""v_lshrrev_b32 v12, 4, v1
              v_lshlrev_b32 v12, 2, v12
              v_and_b32 v13, 15, v1
              v_sub_u32 v12, v12, v13
              v_mov_b32 v14, 0xff800000
              s_min_u32 s{sT0}, s{sBLK}, 1
              s_sub_u32 s{sT0}, s{sT0}, 1
              s_mov_b32 s{sT0+1}, 0\n"""
        for r in range(4):
            side += f"""v_add_u32 v13, {r+7}, v12
                  v_cmp_gt_u32 s[{sT0+2}:{sT0+3}], 8, v13
                  v_cmp_lt_i32 s[{SEL[r]}:{SEL[r]+1}], 15, v13
                  v_cndmask_b32 v{MC+r}, v14, 0, s[{sT0+2}:{sT0+3}]
                  v_cndmask_b32 v{MC0+r}, v{MC+r}, v14, s[{sT0}:{sT0+1}]\n"""
        side += "v_mov_b32 v14, 0xffff\nv_mov_b32 v15, 0xffff0000\n"
        for h in range(2):
            side += f"""v_cndmask_b32 v{AP+h}, 0, v14, s[{SEL[2*h]}:{SEL[2*h]+1}]
                  v_cndmask_b32 v13, 0, v15, s[{SEL[2*h+1]}:{SEL[2*h+1]+1}]
                  v_or_b32 v{AP+h}, v{AP+h}, v13\n"""
        side += f"""v_bfe_u32 v12, v1, 3, 1
              v_lshrrev_b32 v13, 4, v1
              v_lshlrev_b32 v13, 7, v13
              v_and_b32 v14, 7, v1
              v_lshl_add_u32 v13, v14, 4, v13
              v_lshl_add_u32 v7, v12, 13, v13
              v_xor_b32 v12, 1, v12
              v_lshl_or_b32 v27, v12, 31, v7
              s_mul_i32 s1, s{sPAR}, {O_PAR}
              s_lshl_b32 s{sT0}, s{sOCT}, 13
              s_add_u32 s1, s1, s{sT0}
              s_lshl_b32 s{sT0}, s{sG}, 2
              s_add_u32 s{sT0}, s{sT0}, s{sWAVE}
              s_lshl_b32 s{sT0}, s{sT0}, 9
              s_add_u32 s1, s1, s{sT0}
              s_add_u32 s1, s1, {WS_O - 8192}\n"""
        side = [l.strip() for l in side.strip().split('\n')]
        def sidework(n, every=0):
            for e in range(n):
                if side: k(side.pop(0))
                if every and e % every == every - 1 and dq[0][1] < c.ADEEP: pop()
        def weave():
            for _ in range(c.LNA):
                if dq[0][1] < c.ADEEP: pop()
        self.ln(sW1, T0, weave, lambda: sidework(c.SIDE0))
        while dq[0][1] < c.AMID: pop()
        if c.HI < 0:
            sidework(c.SIDEH)
            k.vwait('hst'); k("s_barrier"); self.h_flag(17)
            if c.ADEEP > c.AMID:
                sidework(40, 4)
        k.vwait(('X', 0))
        k("s_barrier")
        for r in reads(0): k.ds(r)
        sidework(c.SIDE1, 12)
        while dq[0][1] < c.ADEEP: pop()
        self.stamp(3)
        for i in range(14):
            if i + 1 < 14:
                assert not dq or dq[0][1] > i + 1
                k.vwait(('W', i+1))
            if i == c.HI: k.vwait('hst')
            k.lwait_all()
            k("s_barrier")
            if i == c.HI: self.h_flag(17)
            if i in (0, 1, 2, 3, 4, 6, 8, 10, 13): self.stamp(1 + (0, 1, 2, 3, 4, 6, 8, 10, 13).index(i), 1)
            quota = c.AQ
            if duty and i == 11:
                self.red_free = False
                self.q_p2()
            rd = reads(i+1) if i + 1 < 14 else []
            mf = mfmas(i)
            nd = 0
            while nd < len(dq) and dq[nd][0] <= i and (nd < quota or dq[nd][1] <= i + 2): nd += 1
            early = duty and i >= 11
            if early: nd = len(mf) // c.EW2
            nm = len(mf) - 1
            lgaps = {1 + (j * (nm - 1)) // nd for j in range(nd)} if nd else set()
            dm = None
            for n, m in enumerate(mf):
                if not c.NOMFMA or i == 0: k(m)
                if n == nm: break
                if n in lgaps:
                    if dm: dm[3](); dm = None; continue
                    if early and (i >= 12 or self.nv < 12): self.tick(reads=0); continue
                g = Gap()
                if n + 1 in lgaps and not early:
                    dm = dq.pop(0)
                    for l in dm[2].strip().split('\n'): g.take('S'); k(l)
                free = sum(1 for j in range(n, nm - c.ARD) if j not in lgaps)
                want = 2 if len(rd) > free else 1
                while rd and want and g.take('D'):
                    k.ds(rd.pop(0)); want -= 1
                while early and self.rq and self.rq[0][0] <= self.nv and g.take('D'): self.rq.pop(0)[1]()
                while side and g.take(kind_of(side[0])): k(side.pop(0))
            assert not dm
            for r in rd: k.ds(r)
            while dq and dq[0][1] <= i + 2:
                assert dq[0][0] <= i
                pop()
            if i == c.STI:
                self.poll_issue(24, 28, 'Hpoll')
            if i == c.STI + 2:
                self.poll_check(24, 28, 'Hpoll')
                k.vmem(f"buffer_load_dwordx4 v[16:19], v25, s[{sWS}:{sWS+3}], s0 offen sc1", 'st')
            if i == c.STI + 4:
                k.vwait('st')
                k.ds("ds_write_b128 v26, v[16:19]")
            if i == 10: assert not side and not dq, (len(side), len(dq))
            if not duty and c.PFWO == 1 and i == c.PFWI:
                k.vmem(f"buffer_load_dword v39, v{MC0+9}, s[{sWO}:{sWO+3}], 0 offen", 'pf')
            if pfq and (c.PFI == i if duty else c.PFP >> i & 1):
                assert not side
                for _ in range(c.PFD if duty else 1): pfq.pop(0)()
        self.stamp(4)
        if duty:
            assert self.nv <= 40
            self.keep = c.AKEEP
            self.red_free = True
            self.tick(max(0, 8 - self.nv), reads=0)
        fg = self.fg
        CSV = 8
        ck = lambda h: (28, 30, 32, 36)[h >> 1]
        sset = ((24, 12, 16), (V0 - 4, 2, MC0 + 4))
        assert MC0 + 8 <= (224 if duty else 256)
        def sread(t):
            p, R, N = sset[t & 1]
            k.ds(f"ds_read2_b32 v[{p}:{p+1}], v34 offset0:{16*t} offset1:{16*t + 128}", ('s', t))
            k.ds(f"ds_read_b128 v[{R}:{R+3}], v35 offset:{64*t}", ('s', t))
            k.ds(f"ds_read_b128 v[{N}:{N+3}], v35 offset:{64*t + 512}", ('s', t))
        sread(0)
        for r in range(8):
            fg(f"v_mov_b32_dpp v{ck(r) + (r & 1)}, v{K+r} row_newbcast:0 row_mask:0xf bank_mask:0xf")
            fg(f"v_mov_b32_dpp v{CSQ+r}, v{Q+r} row_newbcast:0 row_mask:0xf bank_mask:0xf")
        fg(f"""v_mov_b32 v{CSV}, v{V0}
              v_mov_b32 v2, v{V0}
              v_mov_b32 v{CSV+1}, v{V1}
              v_mov_b32 v3, v{V1}
              v_permlane16_swap_b32 v{CSV}, v2
              v_permlane16_swap_b32 v{CSV+1}, v3
              v_mov_b32 v2, v{CSV}
              v_mov_b32 v3, v{CSV+1}
              s_nop 0
              v_permlane32_swap_b32 v{CSV}, v2
              v_permlane32_swap_b32 v{CSV+1}, v3""")
        qs = (28 ** -0.5) * math.log2(math.e)
        SP = lambda t: Q + 8*t + 4
        SC = lambda t: K + 8*t + 4
        def smf(t):
            if t: fg(f"v_mfma_f32_16x16x32_bf16 v[{SP(t)}:{SP(t)+3}], v[{K+8*(t-1)}:{K+8*(t-1)+3}], v[{Q+8*t}:{Q+8*t+3}], 0")
            m = MC if t else MC0
            fg(f"v_mfma_f32_16x16x32_bf16 v[{SC(t)}:{SC(t)+3}], v[{K+8*t}:{K+8*t+3}], v[{Q+8*t}:{Q+8*t+3}], v[{m}:{m+3}]")
        for t in range(NT):
            if t + 1 < NT: sread(t + 1)
            k.lwait(('s', t))
            p, R, N = sset[t & 1]
            for h in range(0, 8, 2):
                d = K + 8*t + h
                fg(f"v_pk_fma_f32 v[{d}:{d+1}], v[{ck(h)}:{ck(h)+1}], v[{p}:{p+1}], v[{d}:{d+1}] op_sel:[0,1,0] op_sel_hi:[1,1,1]")
            for h in range(0, 8, 2):
                d = Q + 8*t + h
                fg(f"v_pk_fma_f32 v[{d}:{d+1}], v[{CSQ+h}:{CSQ+h+1}], v[{p}:{p+1}], v[{d}:{d+1}] op_sel:[0,1,0] op_sel_hi:[1,1,1]")
            for a, VB in enumerate((V0, V1)):
                for h in (0, 2):
                    d = VB + 4*t + h
                    sel = "op_sel:[0,1,0] op_sel_hi:[1,1,1]" if a else "op_sel_hi:[1,0,1]"
                    fg(f"v_pk_fma_f32 v[{d}:{d+1}], v[{N+h}:{N+h+1}], v[{CSV}:{CSV+1}], v[{d}:{d+1}] {sel}")
            for h in range(0, 8, 2):
                d = K + 8*t + h
                fg(f"v_pk_mul_f32 v[{d}:{d+1}], v[{d}:{d+1}], v[{p}:{p+1}] op_sel_hi:[1,0]")
            for a, VB in enumerate((V0, V1)):
                for h in (0, 2):
                    d = VB + 4*t + h
                    fg(f"v_pk_mul_f32 v[{d}:{d+1}], v[{d}:{d+1}], v[{R+h}:{R+h+1}]")
            fg(f"v_mul_f32 v{RQ(t)}, {f2u(qs):#x}, v{p}")
            if t: smf(t - 1)
            if pfq and t % 3 == 2: pfq.pop(0)()
            for h in range(4):
                fg(f"v_cvt_pk_bf16_f32 v{Q+8*t+h}, v{Q+8*t+2*h}, v{Q+8*t+2*h+1}")
            for h in range(4):
                fg(f"v_cvt_pk_bf16_f32 v{K+8*t+h}, v{K+8*t+2*h}, v{K+8*t+2*h+1}")
            for a, VB in enumerate((V0, V1)):
                for h in range(2):
                    fg(f"v_cvt_pk_bf16_f32 v{VB+2*t+h}, v{VB+4*t+2*h}, v{VB+4*t+2*h+1}")
        smf(NT - 1)
        while pfq: pfq.pop(0)()
        TS = range(NT)
        MX = lambda t: RQ(t) + 1
        for t in TS:
            if t:
                for r in range(4):
                    fg(f"v_cndmask_b32 v{SC(t)+r}, v{SC(t)+r}, v{SP(t)+r}, s[{SEL[r]}:{SEL[r]+1}]")
            fg(f"v_max3_f32 v{MX(t)}, v{SC(t)}, v{SC(t)+1}, v{SC(t)+2}")
            fg(f"v_max_f32 v{MX(t)}, v{MX(t)}, v{SC(t)+3}")
        def xmax(g, tmp):
            a, b = MX(g[0]), MX(g[1])
            o = [f"v_permlane16_swap_b32 v{a}, v{b}", f"v_max_f32 v{a}, v{a}, v{b}"]
            if len(g) == 2:
                o += [f"v_mov_b32 v{b}, v{a}", f"v_permlane32_swap_b32 v{a}, v{b}", f"v_max_f32 v{a}, v{a}, v{b}"]
            else:
                cc = MX(g[2]); d = MX(g[3]) if len(g) == 4 else tmp
                if len(g) == 3: o = [f"v_mov_b32 v{d}, v{cc}"] + o
                o += [f"v_permlane16_swap_b32 v{cc}, v{d}", f"v_max_f32 v{cc}, v{cc}, v{d}",
                      f"v_permlane32_swap_b32 v{a}, v{cc}", f"v_max_f32 v{a}, v{a}, v{cc}",
                      f"v_mov_b32 v{cc}, v{a}", f"v_permlane32_swap_b32 v{a}, v{cc}"]
                if len(g) == 4: o += [f"v_mov_b32 v{d}, v{cc}"]
            o += [f"v_mov_b32 v{b}, v{a}"]
            if len(g) == 4: o += [f"v_permlane16_swap_b32 v{cc}, v{d}"]
            o += [f"v_permlane16_swap_b32 v{a}, v{b}"]
            return o
        g1, g2 = xmax(list(TS)[:4], 2), xmax(list(TS)[4:], 3)
        while g1 or g2:
            if g1: fg(g1.pop(0))
            if g2: fg(g2.pop(0))
        for t in TS: fg(f"v_mul_f32 v{MX(t)}, -v{MX(t)}, v{RQ(t)}")
        for t in TS:
            for h in (0, 2):
                fg(f"v_pk_fma_f32 v[{SC(t)+h}:{SC(t)+h+1}], v[{SC(t)+h}:{SC(t)+h+1}], v[{RQ(t)}:{RQ(t)+1}], v[{RQ(t)}:{RQ(t)+1}] op_sel:[0,0,1] op_sel_hi:[1,0,1]")
        def pv(t):
            P = Q + 8*t
            return [f"v_mfma_f32_16x16x32_bf16 v[{K+8*t}:{K+8*t+3}], v[{ONES}:{ONES+3}], v[{P}:{P+3}], 0",
                    f"v_mfma_f32_16x16x32_bf16 v[{SP(t)}:{SP(t)+3}], v[{V0+2*(t-1)}:{V0+2*(t-1)+3}], v[{P}:{P+3}], 0",
                    f"v_mfma_f32_16x16x32_bf16 v[{SC(t)}:{SC(t)+3}], v[{V1+2*(t-1)}:{V1+2*(t-1)+3}], v[{P}:{P+3}], 0"]
        pend = []
        for t in TS:
            P = Q + 8*t
            for r in range(4):
                fg(f"v_exp_f32 v{SC(t)+r}, v{SC(t)+r}")
                if pend and r: fg(pend.pop(0))
            for h in range(2):
                fg(f"v_cvt_pk_bf16_f32 v{P+2+h}, v{SC(t)+2*h}, v{SC(t)+2*h+1}")
            for h in range(2):
                fg(f"v_and_b32 v{P+h}, v{AP+h}, v{P+2+h}" if t else f"v_mov_b32 v{P+h}, 0")
            if t:
                for h in range(2):
                    fg(f"v_xor_b32 v{P+2+h}, v{P+h}, v{P+2+h}")
            pend = pv(t)
        for t in TS:
            if t == NT - 1:
                while pend: fg(pend.pop(0))
            fg(f"v_rcp_f32 v{K+8*t}, v{K+8*t}")
            if pend and t: fg(pend.pop(0))
        for t in TS:
            P = Q + 8*t
            for b in (SP(t), SP(t)+2, SC(t), SC(t)+2):
                k(f"v_pk_mul_f32 v[{b}:{b+1}], v[{b}:{b+1}], v[{K+8*t}:{K+8*t+1}] op_sel_hi:[1,0]")
            k(f"""v_cvt_pk_bf16_f32 v{P}, v{SP(t)}, v{SP(t)+1}
                  v_cvt_pk_bf16_f32 v{P+1}, v{SP(t)+2}, v{SP(t)+3}
                  v_cvt_pk_bf16_f32 v{P+2}, v{SC(t)}, v{SC(t)+1}
                  v_cvt_pk_bf16_f32 v{P+3}, v{SC(t)+2}, v{SC(t)+3}""")
            k.vmem(f"buffer_store_dwordx4 v[{P}:{P+3}], v{7 if t else 27}, s[{sWS}:{sWS+3}], s1 offen sc1", 'ost')
            k(f"s_add_u32 s1, s1, 16384")
        self.stamp(5)
        if duty:
            self.keep = 0
            self.to_p2()
        else:
            k.vwait('ost')
            k("s_barrier")
            self.o_flag(17)
            self.stamp(6)
            k("s_branch L_fin")

    def build(self):
        k, c = self.k, self.c
        self.prologue()
        base_vm = list(k.vm)
        k(f"""s_and_b32 s{sT0+2}, s{sXCD}, 1
              s_mul_i32 s{sT0+1}, s{sT0+2}, 6
              s_sub_u32 s{sT0+1}, 24, s{sT0+1}
              s_cmp_ge_u32 s{sIDX}, s{sT0+1}
              s_cbranch_scc1 L_attn""")
        if c.SKIPM:
            self.bg_reset(); self.start_x(); self.start_rest(); self.ln(sW1); k.vwait('hst'); k("s_barrier"); self.h_flag(17); k("s_branch L_fin")
        else: self.m1()
        k.label("L_attn")
        if c.AMAP == 1:
            k(f"s_lshr_b32 s{sG}, s{sXCD}, 1\ns_and_b32 s{sPAR}, s{sIDX}, 1")
        else:
            k(f"""s_bfe_u32 s{sPAR}, s{sXCD}, 0x10001
              s_lshr_b32 s{sG}, s{sXCD}, 2
              s_lshl_b32 s{sG}, s{sG}, 1
              s_and_b32 s{sT0}, s{sIDX}, 1
              s_add_u32 s{sG}, s{sG}, s{sT0}""")
        k(f"""s_lshl_b32 s{sT0+2}, s{sT0+2}, 1
              s_cmp_ge_u32 s{sIDX}, 28
              s_cbranch_scc1 L_pure
              s_sub_u32 s{sBLK}, s{sIDX}, s{sT0+1}
              s_lshr_b32 s{sBLK}, s{sBLK}, 1
              s_add_u32 s{sBLK}, s{sBLK}, s{sT0+2}
              s_mul_i32 s{sAHI}, s{sBLK}, 11
              s_add_u32 s{sAHI}, s{sAHI}, 52
              s_add_u32 s{sBLK}, s{sBLK}, 4""")
        k.vm = list(base_vm)
        self.attn(6, True)
        k.label("L_pure")
        k(f"""s_bfe_u32 s{sBLK}, s{sIDX}, 0x10001
              s_add_u32 s{sBLK}, s{sBLK}, s{sT0+2}
              s_mul_i32 s{sAHI}, s{sBLK}, 13""")
        k.vm = list(base_vm)
        self.attn(7, False)
        self.p2()
        k.label("L_fin")
        if c.STAMPS:
            k("s_waitcnt vmcnt(0)")
            self.stamp(10)
            k("s_waitcnt lgkmcnt(0)")
            for i in range(22): k(f"v_mov_b32 v{8+i}, s{sSTAMP+i}")
            k(f"""s_lshl_b32 s{sT0}, s{sWG}, 2
                  s_add_u32 s{sT0}, s{sT0}, s{sWAVE}
                  s_lshl_b32 s{sT0}, s{sT0}, 7
                  s_add_u32 s{sT0}, s{sT0}, {WS_TS}
                  v_cmp_eq_u32 vcc, 0, v1
                  v_bfrev_b32 v2, 1
                  v_mov_b32 v30, 0
                  v_mov_b32 v31, 0
                  v_cndmask_b32 v2, v2, 0, vcc""")
            for i in range(6):
                k(f"buffer_store_dwordx4 v[{8+4*i}:{11+4*i}], v2, s[{sWS}:{sWS+3}], s{sT0} offen offset:{16*i}")
        if c.DIAG >= 0:
            k(f"""s_cmp_lg_u32 s{sWG}, {c.DIAGWG}
                  s_cbranch_scc1 L_end
                  s_sub_u32 s4, s{sSTAMP+2*c.DIAG}, s{sSTAMP}
                  {'s_lshr_b32 s4, s4, 1' if c.CYC else 's_mul_i32 s4, s4, 10'}
                  s_min_u32 s4, s4, 60000
                  s_add_u32 s4, s4, 6000""")
            if c.CYC: k(f"s_memrealtime s[{sSTAMP}:{sSTAMP+1}]\ns_waitcnt lgkmcnt(0)")
            k.label("L_diag")
            k(f"""s_memrealtime s[6:7]
                  s_waitcnt lgkmcnt(0)
                  s_sub_u32 s5, s6, s{sSTAMP}
                  s_cmp_lt_u32 s5, s4
                  s_cbranch_scc1 L_diag""")
        k.label("L_end")
        k("s_endpgm")
        lines, nins = hazard_fix(k.lines)
        hdr = open(os.path.join(os.path.dirname(os.path.abspath(__file__)), "..", "cdna_kernels", NAME + ".s.ref")).read().split("; Override launch")[0]
        out = hdr
        out += f"; @launch grid=(256,1,1) block=(256,1,1) lds={self.LDS_SIZE}\n"
        out += f'.amdgcn_target "amdgcn-amd-amdhsa--gfx950"\n.text\n.globl {NAME}_kernel\n.p2align 8\n.type {NAME}_kernel,@function\n{NAME}_kernel:\n'
        body = "\n".join(l if l.endswith(":") else "    " + l for l in lines)
        body = body.replace("CODE_BYTES", "L_end-L_pc")
        out += body + "\n"
        out += f""".section .rodata,"a"
.p2align 6
.amdhsa_kernel {NAME}_kernel
  .amdhsa_next_free_vgpr 512
  .amdhsa_next_free_sgpr 102
  .amdhsa_accum_offset 256
  .amdhsa_group_segment_fixed_size 0
  .amdhsa_kernarg_size 88
  .amdhsa_user_sgpr_count 2
  .amdhsa_user_sgpr_kernarg_segment_ptr 1
  .amdhsa_system_sgpr_workgroup_id_x 1
.end_amdhsa_kernel
"""
        return out, nins, len(lines)

if __name__ == "__main__":
    c = Cfg()
    outp = sys.argv[1]
    for a in sys.argv[2:]:
        kk, v = a.split("=", 1)
        old = getattr(c, kk)
        if isinstance(old, bool): v = v not in ("0", "False")
        elif isinstance(old, int): v = int(v, 0)
        else: v = (" " + v.replace("+", " ")) if v else ""
        setattr(c, kk, v)
    g = Gen(c)
    txt, nins, nl = g.build()
    open(outp, "w").write(txt)
    print(f"wrote {outp}: {nl} lines, {nins} hazard pads, {g.left} ops left after M2")
```

```python
import sys, struct, math, os
sys.path.insert(0, os.path.dirname(os.path.abspath(__file__)))
from kb import *

NAME = "recurrent_scan__sliding_local_dilated__mixer_token_mlp__prompt"
S, D, F = 2048, 448, 1792

class Cfg:
    FS = 64
    NR = 4
    LAG = 3
    PD1 = 12
    PD2 = 12
    LNW = 1
    HLAG = 8
    XBAR = False
    HDEF = False
    XLATE = True
    PRE0 = 4
    HPOS = 8
    UPOS = 8
    OPOS = 10
    S1W = 0xdb8530
    S1H = 0
    S2W = 0
    S2U = 0
    SAB = 3
    SAG = 0
    AMAP = 2
    TW0 = 7
    E1T = 16
    RGAP = 5
    UMID = False
    WRQ = 4
    WOPRE = 15
    WO0 = 4
    WOT = -1
    WLATE = 50
    RPEND = 0
    ULAG = 12
    PFJ = 2
    EW2 = 4
    ARD = 6
    PFWO = 2
    PFWI = 6
    PFP = 0x3e00
    AKEEP = 0
    PFO = -1
    ATICK = 50
    TICK = 60
    WAUX = ""
    QAUX = ""
    XAUX = ""
    OAUX = ""
    LNA = 0
    PFI = 9
    PFD = 1
    APRE = 10
    AMID = 2
    SIDEH = 100
    ADEEP = 3
    SIDE0 = 200
    SEV0 = 16
    SIDE1 = 100
    HI = -1
    STI = 5
    AQ = 9
    STAMPS = False
    SMODE = 0
    CYC = False
    SPIN = 200000
    ALIGN = True
    BACKOFF = 0
    KA1 = False
    SKIP3 = 1
    CODEPF = True
    DIAG = -1
    DIAGWG = 0
    SKIPA = False
    SKIPM = False
    NOP2 = False
    NOMFMA = False
    NOADV = False
    NOLD = False
    NOX = False

WS_EPOCH = 0
WS_FH = 0x1000
WS_FU = 0x9000
WS_FO = 0xF000
WS_STATS = 0x14000
WS_TS = 0x18000
WS_HT = 0x40000
WS_U = 0x400000
WS_O = 0x740000
WS_END = 0xB80000
SK = 0 if "SKIP3=0" in sys.argv else 1
HL = 9 + SK
FR = 2 << HL
KS = KSU = 29 * FR
O_OCT = 16 << HL
O_PAR = 132 * O_OCT
def lmap(v, t):
    return f"v_add_u32 v{t}, 1, v{v}\nv_lshrrev_b32 v{t}, 2, v{t}\nv_add_u32 v{v}, v{v}, v{t}\n" if SK else ""
def frag_off(d, t):
    return f"""v_bfe_u32 v{t}, v1, 3, 2
              {lmap(t, t+1)}v_and_b32 v{t+1}, 7, v1
              v_lshlrev_b32 v{t+1}, 4, v{t+1}
              v_lshl_add_u32 v{t}, v{t}, 7, v{t+1}
              v_lshrrev_b32 v{t+1}, 5, v1
              v_lshl_add_u32 v{d}, v{t+1}, {HL}, v{t}\n"""
OOB = 0x80000000

def f2u(x): return struct.unpack('<I', struct.pack('<f', x))[0]

sWG, sWAVE = 2, 3
sX, sWQKV, sWO, sW1, sW2, sB1, sB2, sOUT, sWS = 8, 12, 16, 20, 24, 28, 32, 36, 40
sTAG = 44
sXCD, sIDX = 46, 47
sST, sDJ = 48, 49
sFT, sJ = 50, 51
sRING = 52
sWOFF, sWLO, sWHI = 53, 54, 55
sAOFF, sALO, sAHI = 56, 57, 58
sW2OFF, sW2LO, sW2HI = 59, 60, 61
sG, sPAR, sBLK = 62, 63, 64
sSPIN = 65
sUOFF, sULO, sUHI, sWOOFF, sWOM0, sXOFF, sB2OFF, sOOFF = 66, 67, 68, 69, 70, 71, 72, 73
sT0 = 74
sSTAMP = 80

vTR, vW2 = 248, 252
vWOR = 244
vXD = 236
vWOD, vXO, vB2, vUF, vOFL, vOO, vL16 = 224, 225, 227, 228, 229, 230, 231
vPOLL = 232
vUO = 234

LN_PITCH = 960

def cost(line):
    mn = line.split()[0]
    if mn.startswith('v_mfma'): return 16
    if mn in TRANS or mn.startswith('v_permlane'): return 8
    if mn.startswith('ds_write_b128'): return 50
    if mn.startswith('ds_read_b128'): return 16
    if mn.startswith('s_'): return 4
    return 5

class Gap:
    def __init__(self): self.p = 1; self.pd = -9; self.nd = 0; self.v = False
    def take(self, kind):
        p = self.p
        if kind == 'S' or kind == 'V':
            p = max(p, self.pd + 2, 2 if kind == 'V' else 1)
            if p > 3 or self.nd > 1: return False
            self.p = p + 1; self.v |= kind == 'V'
        elif kind == 'T':
            if p > 2 or self.nd: return False
            self.p = 4; self.v = True
        elif kind == 'D':
            if p > 3 or self.v or self.nd > 1: return False
            self.pd = p; self.p = p + 1; self.nd += 1
        else:
            if p > 1: return False
            self.p = 4
        return True

def kind_of(line):
    if '\n' in line.strip(): return 'X'
    mn = line.split()[0]
    if mn in TRANS or mn.startswith('v_permlane'): return 'T'
    if mn.startswith('v_'): return 'V'
    if mn.startswith('ds_read'): return 'D'
    if mn.startswith('s_'): return 'S'
    return 'X'

class Gen:
    def __init__(self, c):
        self.c = c
        self.k = KB()
        self.LDS_WO = 4 * c.NR * 4096
        self.LDS_RED = self.LDS_WO + 58 * 1024
        self.LDS_LN = 153600
        self.LDS_SIZE = 163840
        assert self.LDS_RED + 24576 <= self.LDS_LN
        self.bg_reset()
        self.scc_open = False

    def stamp(self, i, mode=0):
        if self.c.STAMPS and (mode == self.c.SMODE or i in (0, 10)):
            self.k(f"{'s_memtime' if self.c.CYC else 's_memrealtime'} s[{sSTAMP+2*i}:{sSTAMP+2*i+1}]")

    def bg_reset(self):
        self.vq = []
        self.rq = []
        self.nv = 0
        self.nq = 0
        self.budget = 0
        self.keep = 0
        self.reads_done = set()
    def q(self, op):
        self.vq.append(op); self.nq += 1
    def tick(self, n=1, reads=2):
        for _ in range(n):
            if self.vq:
                self.vq.pop(0)(); self.nv += 1
            for _ in range(reads):
                if self.rq and (self.rq[0][0] <= self.nv or not self.vq):
                    self.rq.pop(0)[1]()
    def tick_until(self, count):
        while self.nv < count and self.vq: self.tick()
    def drain_reads(self):
        while self.rq: self.rq.pop(0)[1]()
    def fg(self, text, ds=None, isds=False):
        for l in text.strip('\n').split('\n'):
            l = l.strip()
            if not l: continue
            if isds: self.k.ds(l, ds)
            else: self.k(l)
            self.budget += cost(l)
            if self.budget >= self.c.TICK:
                self.budget -= self.c.TICK
                if len(self.vq) > self.keep: self.tick()

    def q_wstream(self, ns, srd, vq, soff, slo, shi, stride, tag, inserts=None):
        k, c = self.k, self.c
        inserts = inserts or {}
        for n in range(ns):
            slot = n % c.NR
            for qq in range(4):
                if 4*n + qq in inserts: self.q(inserts[4*n + qq])
                def op(n=n, qq=qq, slot=slot):
                    if qq == 0:
                        if n >= c.NR:
                            while (tag, n - c.NR) not in self.reads_done: self.rq.pop(0)[1]()
                            k.lwait((tag, n - c.NR))
                        k(f"s_add_u32 m0, s{sRING}, {slot*16384}")
                        if n: k(f"s_add_u32 s{soff}, s{soff}, {32*stride}\ns_cmp_ge_u32 s{soff}, s{shi}\ns_cselect_b32 s{soff}, s{slo}, s{soff}")
                    off = f" offset:{qq*1024}" if qq else ""
                    k.vmem(f"buffer_load_dwordx4 v{vq+qq}, s[{srd}:{srd+3}], s{soff} offen{off}{c.WAUX} lds", (tag, n))
                self.q(op)
            for a in range(4):
                for h in range(2):
                    def rd(n=n, a=a, h=h, slot=slot):
                        k.vwait((tag, n))
                        b = 16*n + 4*a + 2*h
                        k.ds(f"ds_read_b64_tr_b16 a[{b}:{b+1}], v{vTR+a} offset:{slot*16384 + h*2048}", (tag, n))
                        if a == 3 and h == 1: self.reads_done.add((tag, n))
                    self.rq.append((self.nq + 4*(c.LAG - 1) + 1, rd))

    def prologue(self):
        k, c = self.k, self.c
        self.stamp(0)
        for reg, off in ((sX, 0), (sW1, 32), (sWQKV, 8), (sWS, 80), (sB1, 40)):
            if reg != sWS or not c.KA1: k(f"s_load_dwordx2 s[{reg}:{reg+1}], s[0:1], {off}")
        k(f"""s_cmp_ge_u32 s{sWG}, 256
              s_cbranch_scc1 L_end
              s_lshr_b32 s{sIDX}, s{sWG}, 3
              v_lshrrev_b32 v2, 6, v0""")
        if c.CODEPF:
            k(f"s_getpc_b64 s[{sT0}:{sT0+1}]")
            k.label("L_pc")
            k(f"""v_lshrrev_b32 v7, 4, v0
                  v_lshl_add_u32 v7, v7, 5, s{sIDX}
                  v_lshlrev_b32 v7, 7, v7
                  v_min_u32 v7, CODE_BYTES, v7""")
            k.vmem(f"global_load_dword v39, v7, s[{sT0}:{sT0+1}]", 'cpf')
        k(f"""v_readfirstlane_b32 s{sWAVE}, v2
              s_and_b32 s{sXCD}, s{sWG}, 7
              v_and_b32 v1, 63, v0""")
        self.stamp(1, 5)

    def start_x(self, ln=True):
        k, c = self.k, self.c
        if ln:
            k(f"""v_lshrrev_b32 v12, 4, v0
              s_lshl_b32 s{sT0+4}, s{sWG}, 4
              v_and_b32 v13, 15, v0
              v_add_u32 v12, s{sT0+4}, v12
              v_cmp_gt_u32 s[{sT0+4}:{sT0+5}], 14, v13
              v_mul_u32_u24 v12, 896, v12
              v_bfrev_b32 v14, 1
              v_lshl_add_u32 v12, v13, 4, v12
              s_mov_b32 s{sW1+2}, {S*F*2}
              s_mov_b32 s{sW1+3}, 0x20000
              v_cndmask_b32 v12, v14, v12, s[{sT0+4}:{sT0+5}]""")
        else:
            k(f"s_mov_b32 s{sWQKV+2}, {D*3*D*2}\ns_mov_b32 s{sWQKV+3}, 0x20000")
        k(f"""s_mov_b32 s{sX+2}, {S*D*2}
              s_mov_b32 s{sX+3}, 0x20000""")
        self.stamp(2, 5)
        k("s_waitcnt lgkmcnt(0)")
        self.stamp(3, 5)
        if ln:
            for e in range(4):
                k.vmem(f"buffer_load_dwordx4 v[{40+4*e}:{43+4*e}], v12, s[{sX}:{sX+3}], 0 offen offset:{224*e}{c.XAUX}", ('lnx', e))

    def tag_code(self):
        return f"""s_mul_i32 s{sTAG+1}, s{sTAG}, 0x2c9277b5
              s_mul_i32 s{sTAG}, s{sTAG}, 0x9e3779b1
              s_add_u32 s{sTAG+1}, s{sTAG+1}, 0x5bd1e995
              s_add_u32 s{sTAG}, s{sTAG}, 0x7f4a7c15"""

    def start_rest(self):
        k, c = self.k, self.c
        if c.KA1: k(f"s_load_dwordx2 s[{sWS}:{sWS+1}], s[0:1], 80\ns_waitcnt lgkmcnt(0)")
        k(f"s_load_dword s{sTAG}, s[{sWS}:{sWS+1}], {WS_EPOCH}")
        for reg, off in ((sWO, 16), (sW2, 48), (sB2, 56), (sOUT, 64)):
            k(f"s_load_dwordx2 s[{reg}:{reg+1}], s[0:1], {off}")
        for reg, n in ((sWS, WS_END), (sWO, D*D*2), (sW2, F*S*2), (sB2, S*2), (sOUT, S*D*2)):
            k(f"s_mov_b32 s{reg+2}, {n}\ns_mov_b32 s{reg+3}, 0x20000")
        if c.STAMPS:
            for i in range({2: 3, 5: 5}.get(c.SMODE, 1), 11): k(f"s_mov_b64 s[{sSTAMP+2*i}:{sSTAMP+2*i+1}], 0")

    def ln(self, sL, weave=lambda: None):
        k, c = self.k, self.c
        LB = self.LDS_WO
        SBL = LB + 16*LN_PITCH
        X, Y, A = 40, 56, 88
        k(f"""v_lshrrev_b32 v92, 4, v0
              v_mul_u32_u24 v{A}, {LN_PITCH}, v92
              v_and_b32 v93, 15, v0
              v_lshl_add_u32 v{A}, v93, 4, v{A}
              v_add_u32 v{A}, {LB}, v{A}
              v_and_b32 v94, 1, v92
              v_lshrrev_b32 v95, 1, v92
              v_lshlrev_b32 v95, 2, v95
              v_lshl_add_u32 v95, v94, 5, v95
              v_add_u32 v{A+1}, {SBL}, v95
              v_bfe_u32 v95, v1, 2, 2
              v_lshl_add_u32 v95, v94, 3, v95
              v_mul_u32_u24 v95, {LN_PITCH}, v95
              v_lshrrev_b32 v96, 5, v1
              v_lshl_add_u32 v95, v96, 5, v95
              v_and_b32 v97, 3, v1
              v_lshl_add_u32 v95, v97, 3, v95
              s_lshl_b32 s{sL}, s{sWAVE}, 6
              s_add_u32 s{sL}, s{sL}, {LB}
              v_add_u32 v{A+2}, s{sL}, v95
              v_bfe_u32 v94, v1, 3, 2
              {lmap(94, 95)}v_and_b32 v93, 7, v1
              v_lshlrev_b32 v93, 4, v93
              v_lshl_add_u32 v93, v94, 7, v93
              v_lshl_add_u32 v93, v96, {HL+1}, v93
              s_lshl_b32 s{sL}, s{sWG}, 24
              s_and_b32 s{sL+3}, s{sL}, {OOB:#x}
              v_or_b32 v{A+3}, s{sL+3}, v93
              s_lshr_b32 s{sL}, s{sWG}, 1
              s_mul_i32 s{sL}, s{sL}, {KS}
              s_and_b32 s{sL+1}, s{sWG}, 1
              s_lshl_b32 s{sL+1}, s{sL+1}, {HL}
              s_add_u32 s{sL}, s{sL}, s{sL+1}
              s_lshl_b32 s{sL+1}, s{sWAVE}, {HL+2}
              s_add_u32 s{sL}, s{sL}, s{sL+1}
              s_add_u32 s{sL}, s{sL}, {WS_HT}
              s_mov_b32 s{sL+2}, 0x3f803f80""")
        for e in range(4):
            k.vwait(('lnx', e))
            if e == 0: self.stamp(1); self.stamp(3, 2)
            if e == 3: self.stamp(4, 2)
            for i in range(4*e, 4*e + 4):
                k(f"v_dot2_f32_bf16 v92, v{X+i}, s{sL+2}, {'v92' if i else '0'}\nv_dot2_f32_bf16 v93, v{X+i}, v{X+i}, {'v93' if i else '0'}")
        un = []
        for i in range(16):
            un.append(f"v_lshlrev_b32 v{Y+2*i}, 16, v{X+i}")
            un.append(f"v_and_b32 v{Y+1+2*i}, 0xffff0000, v{X+i}")
        def fill(n):
            for _ in range(n):
                if un: k(un.pop(0))
        weave()
        fill(3)
        for m in ("quad_perm:[1,0,3,2]", "quad_perm:[2,3,0,1]", "row_half_mirror", "row_mirror"):
            k(f"v_add_f32_dpp v92, v92, v92 {m} row_mask:0xf bank_mask:0xf")
            k(f"v_add_f32_dpp v93, v93, v93 {m} row_mask:0xf bank_mask:0xf")
            fill(1)
        k(f"""v_mul_f32 v92, {f2u(1.0/D):#x}, v92
              v_mul_f32 v93, {f2u(1.0/D):#x}, v93
              v_fma_f32 v93, -v92, v92, v93
              v_max_f32 v93, 0, v93
              v_add_f32 v94, {f2u(1e-5):#x}, v93
              v_rsq_f32 v94, v94""")
        fill(2)
        k(f"""v_mul_f32 v95, v94, v94
              v_mov_b32 v96, {f2u(1e-5):#x}
              v_fmac_f32 v96, v93, v95
              v_rsq_f32 v96, v96
              v_sub_f32 v95, 0, v92""")
        weave()
        fill(2)
        k("v_mul_f32 v98, v94, v96\nv_mul_f32 v99, v95, v98")
        k.ds(f"ds_write2_b32 v{A+1}, v94, v95 offset1:16")
        for e in range(4):
            while len(un) > 24 - 8*e: fill(1)
            for i in range(4*e, 4*e+4):
                k(f"v_pk_fma_f32 v[{Y+2*i}:{Y+1+2*i}], v[{Y+2*i}:{Y+1+2*i}], v[98:99], v[98:99] op_sel:[0,0,1] op_sel_hi:[1,0,1]")
            for i in range(4*e, 4*e+4):
                k(f"v_cvt_pk_bf16_f32 v{X+i}, v{Y+2*i}, v{Y+1+2*i}")
            k.ds(f"ds_write_b128 v{A}, v[{X+4*e}:{X+4*e+3}] offset:{224*e}")
            if e & 1: weave()
        self.stamp(5, 2)
        k.lwait_all()
        k("s_barrier")
        self.stamp(6, 2)
        for e in range(3):
            for h in range(2):
                k.ds(f"ds_read_b64_tr_b16 v[{Y+4*e+2*h}:{Y+4*e+2*h+1}], v{A+2} offset:{h*4*LN_PITCH + e*256}", ('q', e))
        l3, lj = k.newlabel("L_ln3"), k.newlabel("L_lnj")
        k(f"""s_cmp_ge_u32 s{sWAVE}, 2
              s_cbranch_scc1 {l3}
              ds_read_b64_tr_b16 v[{Y+12}:{Y+13}], v{A+2} offset:768
              ds_read_b64_tr_b16 v[{Y+14}:{Y+15}], v{A+2} offset:{4*LN_PITCH + 768}
              v_mov_b32 v92, v{A+3}
              s_add_u32 s{sL+1}, s{sL}, {3*8*FR}
              s_branch {lj}""")
        k.label(l3)
        k(f"""v_and_b32 v94, 7, v1
              v_lshlrev_b32 v93, 4, v94
              v_add_u32 v93, {SBL}, v93
              ds_read_b128 v[{Y+12}:{Y+15}], v93
              v_subrev_u32 v95, 192, v0
              v_cmp_gt_u32 vcc, 8, v95
              v_lshrrev_b32 v92, 1, v94
              v_lshlrev_b32 v92, 12, v92
              v_and_b32 v94, 1, v94
              v_lshl_add_u32 v92, v94, 4, v92
              v_or_b32 v92, s{sL+3}, v92
              v_bfrev_b32 v93, 1
              s_lshl_b32 s{sL+1}, s{sWG}, 5
              s_add_u32 s{sL+1}, s{sL+1}, {WS_STATS}
              v_cndmask_b32 v92, v93, v92, vcc""")
        k.label(lj)
        k(self.tag_code())
        for e in range(3):
            k.lwait(('q', e))
            k.vmem(f"buffer_store_dwordx4 v[{Y+4*e}:{Y+4*e+3}], v{A+3}, s[{sWS}:{sWS+3}], s{sL} offen sc1", 'hst')
            if e < 2: k(f"s_add_u32 s{sL}, s{sL}, {8*FR}")
        k.lwait_all()
        k.vmem(f"buffer_store_dwordx4 v[{Y+12}:{Y+15}], v92, s[{sWS}:{sWS+3}], s{sL+1} offen sc1", 'hst')

    def flag(self, addr_code, vt, epoch=False, so=sT0):
        k = self.k
        skip = k.newlabel("L_flag")
        k(f"s_cmp_lg_u32 s{sWAVE}, 0\ns_cbranch_scc1 {skip}")
        k(f"""v_cmp_eq_u32 vcc, 0, v1
              v_bfrev_b32 v{vt}, 1
              v_mov_b32 v{vt+1}, s{sTAG}
              v_mov_b32 v{vt+2}, s{sTAG+1}
              v_cndmask_b32 v{vt}, v{vt}, 0, vcc""")
        k(addr_code)
        k(f"buffer_store_dwordx2 v[{vt+1}:{vt+2}], v{vt}, s[{sWS}:{sWS+3}], s{so} offen sc1")
        if epoch:
            k(f"s_cmp_lg_u32 s{sWG}, 0\ns_cbranch_scc1 {skip}")
            k(f"buffer_store_dword v{vt+1}, v{vt}, s[{sWS}:{sWS+3}], 0 offen sc1")
        k.label(skip)

    def h_flag(self, vt):
        self.flag(f"s_mul_i32 s{sSPIN}, s{sWG}, {self.c.FS}\ns_add_u32 s{sSPIN}, s{sSPIN}, {WS_FH}", vt, so=sSPIN)
        self.stamp(2)

    def poll_issue(self, vaddr, vt, tok):
        self.k.vmem(f"buffer_load_dwordx2 v[{vt}:{vt+1}], v{vaddr}, s[{sWS}:{sWS+3}], 0 offen sc1", tok)

    def poll_check(self, vaddr, vt, tok):
        k, c = self.k, self.c
        lp, done = k.newlabel("L_poll"), k.newlabel("L_polled")
        k.vwait(tok)
        k(f"""v_cmp_ne_u64 vcc, s[{sTAG}:{sTAG+1}], v[{vt}:{vt+1}]
              s_mov_b32 s{sSPIN}, 0
              s_cbranch_vccz {done}""")
        k.label(lp)
        if c.BACKOFF: k(f"s_sleep {c.BACKOFF}")
        k(f"""buffer_load_dwordx2 v[{vt}:{vt+1}], v{vaddr}, s[{sWS}:{sWS+3}], 0 offen sc1
              s_waitcnt vmcnt(0)
              v_cmp_ne_u64 vcc, s[{sTAG}:{sTAG+1}], v[{vt}:{vt+1}]
              s_add_u32 s{sSPIN}, s{sSPIN}, 1
              s_cbranch_vccz {done}
              s_cmp_lt_u32 s{sSPIN}, {c.SPIN}
              s_cbranch_scc1 {lp}""")
        k.label(done)

    def w_addr_code(self, vq, stride, t=12):
        s = f"""v_lshrrev_b32 v{t}, 3, v1
              v_lshrrev_b32 v{t+1}, 5, v1
              v_and_b32 v{t+2}, 3, v{t}
              v_lshl_add_u32 v{t+1}, v{t+1}, 3, v{t+2}
              v_mul_u32_u24 v{t+1}, {stride}, v{t+1}
              v_and_b32 v{t+2}, 6, v{t}
              v_and_b32 v{t+3}, 7, v1
              v_xor_b32 v{t+2}, v{t+2}, v{t+3}
              v_lshl_add_u32 v{vq}, v{t+2}, 4, v{t+1}\n"""
        for qq in range(1, 4):
            h, G = qq >> 1, qq & 1
            s += f"v_add_u32 v{vq+qq}, {(16*G + 4*h)*stride - qq*1024}, v{vq}\n"
        return s

    def w_tr_code(self, t=12):
        s = f"""v_bfe_u32 v{t}, v1, 2, 3
              v_lshrrev_b32 v{t+1}, 5, v1
              v_lshlrev_b32 v{t+1}, 10, v{t+1}
              v_lshl_add_u32 v{t+1}, v{t}, 7, v{t+1}
              v_and_b32 v{t+2}, 3, v1
              v_lshl_add_u32 v{t+1}, v{t+2}, 3, v{t+1}
              v_add_u32 v{t+1}, s{sRING}, v{t+1}
              v_lshrrev_b32 v{t}, 1, v{t}\n"""
        for a in range(4):
            s += f"""s_add_u32 s{sT0}, s{sWAVE}, {a}
                  s_and_b32 s{sT0}, s{sT0}, 3
                  v_xor_b32 v{t+2}, s{sT0}, v{t}
                  v_lshl_add_u32 v{vTR+a}, v{t+2}, 5, v{t+1}\n"""
        return s

    def p2_setup_code(self, t=12):
        c = self.c
        WO = self.LDS_WO
        a, b, d, e = t, t+1, t+2, t+3
        s = f"""s_mul_i32 s{sT0}, s{sIDX}, 37
              s_lshr_b32 s{sT0}, s{sT0}, 8
              s_mul_i32 s{sT0+1}, s{sT0}, 7
              s_sub_u32 s{sDJ}, s{sIDX}, s{sT0+1}
              s_lshl_b32 s{sST}, s{sXCD}, 2
              s_add_u32 s{sST}, s{sST}, s{sT0}
              s_lshl_b32 s{sT0}, s{sT0}, 2
              s_lshr_b32 s{sT0}, {c.S2U:#x}, s{sT0}
              s_and_b32 s{sT0}, s{sT0}, 15
              s_lshl_b32 s{sT0+1}, s{sDJ}, 2
              s_lshr_b32 s{sT0+1}, {c.S2W:#x}, s{sT0+1}
              s_and_b32 s{sT0+1}, s{sT0+1}, 15
              s_add_u32 s{sT0}, s{sT0}, s{sT0+1}
              s_sub_u32 s{sT0+1}, s{sT0}, 14
              s_min_u32 s{sT0}, s{sT0}, s{sT0+1}
              s_mul_i32 s{sW2LO}, s{sWAVE}, {448*4096}
              s_lshl_b32 s{sT0+1}, s{sST}, 7
              s_add_u32 s{sW2LO}, s{sW2LO}, s{sT0+1}
              s_add_u32 s{sW2HI}, s{sW2LO}, {448*4096}
              s_mul_i32 s{sT0+1}, s{sT0}, {32*4096}
              s_add_u32 s{sW2OFF}, s{sW2LO}, s{sT0+1}
              s_mul_i32 s{sULO}, s{sWAVE}, {14*KSU}
              s_lshl_b32 s{sT0+1}, s{sDJ}, {HL+3}
              s_add_u32 s{sULO}, s{sULO}, s{sT0+1}
              s_add_u32 s{sULO}, s{sULO}, {WS_U}
              s_add_u32 s{sUHI}, s{sULO}, {14*KSU}
              s_mul_i32 s{sT0+1}, s{sT0}, {KSU}
              s_add_u32 s{sUOFF}, s{sULO}, s{sT0+1}\n"""
        s += self.w_addr_code(vW2, 4096, t)
        s += frag_off(vUO, t) + f"v_add_u32 v{vUO+1}, {2*FR}, v{vUO}\n"
        s += f"""v_lshlrev_b32 v{vL16}, 4, v1
              v_lshrrev_b32 v{a}, 3, v1
              v_mul_u32_u24 v{b}, 896, v{a}
              v_and_b32 v{d}, 6, v{a}
              v_and_b32 v{e}, 7, v1
              v_xor_b32 v{d}, v{d}, v{e}
              v_lshl_add_u32 v{vWOD}, v{d}, 4, v{b}
              s_mul_i32 s{sWOOFF}, s{sWAVE}, {112*896}
              s_lshl_b32 s{sT0+2}, s{sDJ}, 7
              s_add_u32 s{sWOOFF}, s{sWOOFF}, s{sT0+2}
              s_mul_i32 s{sWOM0}, s{sWAVE}, {14*1024}
              s_add_u32 s{sWOM0}, s{sWOM0}, {WO}
              v_and_b32 v{a}, 15, v1
              v_mul_u32_u24 v{vXO}, 896, v{a}
              v_bfe_u32 v{b}, v1, 4, 1
              v_lshl_add_u32 v{vXO}, v{b}, 5, v{vXO}
              v_lshrrev_b32 v{b}, 5, v1
              v_lshl_add_u32 v{vXO}, v{b}, 4, v{vXO}
              v_lshlrev_b32 v{vB2-1}, 1, v{a}
              s_lshl_b32 s{sT0}, s{sST}, 2
              s_add_u32 s{sT0}, s{sT0}, s{sWAVE}
              s_mul_i32 s{sXOFF}, s{sT0}, {16*896}
              s_add_u32 s{sXOFF}, s{sXOFF}, s{sT0+2}
              s_lshl_b32 s{sB2OFF}, s{sT0}, 5
              s_lshl_b32 s{sOOFF}, s{sT0}, {HL+4}
              s_add_u32 s{sOOFF}, s{sOOFF}, {WS_O}
              s_mul_i32 s{sT0+1}, s{sT0}, 79
              s_lshr_b32 s{sT0+1}, s{sT0+1}, 10
              s_min_u32 s{sT0+1}, s{sT0+1}, 4
              s_max_u32 s{sT0+3}, s{sT0}, 52
              s_sub_u32 s{sT0+3}, s{sT0+3}, 52
              s_mul_i32 s{sT0+3}, s{sT0+3}, 94
              s_lshr_b32 s{sT0+3}, s{sT0+3}, 10
              s_add_u32 s{sT0+3}, s{sT0+3}, s{sT0+1}
              v_min_u32 v{a}, 13, v1
              v_and_b32 v{b}, 1, v{a}
              v_mul_u32_u24 v{b}, 3, v{b}
              s_lshl_b32 s{sT0+1}, s{sDJ}, 2
              v_add_u32 v{b}, s{sT0+1}, v{b}
              v_mul_u32_u24 v{b}, 52, v{b}
              v_lshrrev_b32 v{b}, 8, v{b}
              v_lshrrev_b32 v{a}, 1, v{a}
              s_mul_i32 s{sT0+1}, s{sWAVE}, 7
              v_add_u32 v{a}, s{sT0+1}, v{a}
              v_mad_u32_u24 v{a}, v{a}, 6, v{b}
              v_mul_u32_u24 v{a}, {c.FS}, v{a}
              v_add_u32 v{vUF}, {WS_FU}, v{a}
              v_and_b32 v{a}, 7, v1
              v_lshl_add_u32 v{a}, v{a}, 4, s{sT0+3}
              v_mul_u32_u24 v{a}, {c.FS}, v{a}
              v_add_u32 v{vOFL}, {WS_FO}, v{a}
              v_and_b32 v{a}, 1, v1
              v_mul_u32_u24 v{a}, {O_PAR}, v{a}
              v_lshrrev_b32 v{b}, 4, v1
              {lmap(b, d)}v_lshl_add_u32 v{a}, v{b}, 7, v{a}
              v_bfe_u32 v{b}, v1, 1, 3
              v_lshl_add_u32 v{vOO}, v{b}, 4, v{a}
              v_lshrrev_b32 v{a}, 2, v1
              v_lshlrev_b32 v{b}, 7, v{a}
              v_and_b32 v{d}, 3, v1
              v_lshl_add_u32 v{b}, v{d}, 3, v{b}
              v_add_u32 v{b}, {WO}, v{b}
              v_bfe_u32 v{a}, v1, 3, 2\n"""
        for i in range(4):
            s += f"v_xor_b32 v{d}, {i}, v{a}\nv_lshl_add_u32 v{vWOR+i}, v{d}, 5, v{b}\n"
        return s

    def red_addr_code(self, v, vl16):
        RED = self.LDS_RED
        o = [f"""s_mul_i32 s{sT0}, s{sWAVE}, 3072
              s_add_u32 s{sT0}, s{sT0}, {RED}
              v_add_u32 v{v}, s{sT0}, v{vl16}"""]
        for a in range(1, 4):
            o.append(f"""s_sub_u32 s{sT0}, s{sWAVE}, {a}
                  s_and_b32 s{sT0}, s{sT0}, 3
                  s_mul_i32 s{sT0}, s{sT0}, 3072
                  s_add_u32 s{sT0}, s{sT0}, {RED + (a-1)*1024}
                  v_add_u32 v{v+a}, s{sT0}, v{vl16}""")
        return o

    def reduce_ops(self, t, acc, vred, R, T, then):
        k = self.k
        par = (t & 1) * 12288
        o = []
        for a in range(1, 4):
            o.append([3, 'X', lambda a=a: k.ds(f"ds_write_b128 v{vred}, v[{acc+4*a}:{acc+4*a+3}] offset:{par + (a-1)*1024}", ('rw', t))])
        o.append([self.c.RGAP, 'X', lambda: (k.lwait(('rw', t)), k("s_barrier"))])
        for a in range(3):
            o.append([0, 'D', lambda a=a: k.ds(f"ds_read_b128 v[{R+4*a}:{R+4*a+3}], v{vred+1+a} offset:{par}", ('rr', t))])
        o.append([5, 'S', lambda: k.lwait(('rr', t))])
        for a in range(3):
            for r in range(4):
                o.append([0, 'V', lambda a=a, r=r: (k(f"v_add_f32 v{T+r}, v{(T if a else acc)+r}, v{R+4*a+r}"), then() if a == 2 and r == 3 else None)])
        return o

    def group(self, mf, sc, fl, fb, rd=None, dfirst=False):
        k = self.k
        sc = list(sc)
        for a in range(4):
            k(mf[a])
            for q in (fl, fb):
                if q and q[0][0] > 0: q[0][0] -= 1
            if a == 3: break
            g = Gap()
            left = 3 - a
            xq = [q for q in (fl, fb) if q and q[0][0] == 0 and q[0][1] == 'X']
            if xq and len(sc) <= 3*(left - 1) and not self.scc_open:
                xq[0].pop(0)[2](); continue
            need = max(0, len(sc) - 2*(left - 1)) if left > 1 else len(sc)
            want = max(need, min(1, len(sc)))
            nd = 0
            if rd and dfirst and need <= 0 and len(sc) <= left - 1 + (left > 1):
                while rd(False) and g.take('D'): rd(True)
                if g.nd: want = 0
            for _ in range(want):
                g.take('S'); sc.pop(0)()
            if rd and (dfirst or not any(q and q[0][0] == 0 for q in (fl, fb))):
                while rd(False) and g.take('D'): rd(True)
            for q in (fl, fb):
                while q and q[0][0] == 0 and q[0][1] != 'X' and g.take(q[0][1]): q.pop(0)[2]()
            while sc and g.take('S'): sc.pop(0)()
        assert not sc

    def adv_ops(self, off, lo, hi, step):
        k = self.k
        def cmp_(): k(f"s_cmp_ge_u32 s{off}, s{hi}"); self.scc_open = True
        def sel(): k(f"s_cselect_b32 s{off}, s{lo}, s{off}"); self.scc_open = False
        return [lambda: k(f"s_add_u32 s{off}, s{off}, {step}"), cmp_, sel]

    def q_p2(self):
        k, c = self.k, self.c
        tail = (1 if c.XLATE else 3) + c.WOPRE
        ins = {56 - (c.UPOS - tail): lambda: self.poll_issue(vUF, vPOLL, 'Upoll')} if c.UPOS > tail else None
        self.q_wstream(14, sW2, vW2, sW2OFF, sW2LO, sW2HI, 4096, 'W2', ins)
        ops = [lambda: k.vmem(f"buffer_load_dwordx4 v[{vXD}:{vXD+3}], v{vXO}, s[{sX}:{sX+3}], s{sXOFF} offen", 'x'),
               lambda: k.vmem(f"buffer_load_dwordx4 v[{vXD+4}:{vXD+7}], v{vXO}, s[{sX}:{sX+3}], s{sXOFF} offen offset:64", 'x'),
               lambda: k.vmem(f"buffer_load_ushort v{vB2}, v{vB2-1}, s[{sB2}:{sB2+3}], s{sB2OFF} offen", 'x')]
        self.xops = ops[:2]
        if c.XLATE: ops = ops[2:]
        ops += [lambda e=e: self.wo_dma(e) for e in range(c.WOPRE)]
        if c.UPOS <= tail: ops.insert(tail - c.UPOS, lambda: self.poll_issue(vUF, vPOLL, 'Upoll'))
        for op in ops: self.q(op)

    def wo_dma(self, e):
        k = self.k
        assert self.red_free
        k(f"s_add_u32 m0, s{sWOM0}, {e*1024}")
        if e: k(f"s_add_u32 s{sWOOFF}, s{sWOOFF}, {8*896}")
        k.vmem(f"buffer_load_dwordx4 v{vWOD}, s[{sWO}:{sWO+3}], s{sWOOFF} offen lds", 'Wo')

    def to_p2(self):
        k, c = self.k, self.c
        while len(self.vq) > 1:
            if len(self.vq) == 19: self.stamp(3, 3)
            if len(self.vq) == 35: self.stamp(2, 3)
            self.tick()
        while len(self.rq) > c.RPEND: self.rq.pop(0)[1]()
        self.tick(reads=0)
        assert not self.rq and not self.vq and c.WOPRE == 15
        self.stamp(7); self.stamp(4, 3)
        self.poll_check(vUF, vPOLL, 'Upoll')
        k("s_branch L_fin" if self.c.NOP2 else "s_branch L_p2")

    def m1(self):
        k, c = self.k, self.c
        self.bg_reset()
        ACC, STG = 32, 112
        k(f"""s_mul_i32 s{sT0}, s{sIDX}, 43
              s_lshr_b32 s{sT0}, s{sT0}, 8
              s_mul_i32 s{sT0+1}, s{sT0}, 6
              s_sub_u32 s{sJ}, s{sIDX}, s{sT0+1}
              s_lshr_b32 s{sT0+1}, s{sXCD}, 1
              s_mul_i32 s{sT0+1}, s{sT0+1}, 7
              s_and_b32 s{sT0+2}, s{sXCD}, 1
              s_lshl_b32 s{sT0+3}, s{sT0+2}, 2
              s_add_u32 s{sT0+1}, s{sT0+1}, s{sT0+3}
              s_add_u32 s{sFT}, s{sT0+1}, s{sT0}""")
        k(f"""s_lshl_b32 s{sT0}, s{sT0}, 2
              s_lshr_b32 s{sT0}, {c.S1H:#x}, s{sT0}
              s_lshl_b32 s{sT0+1}, s{sJ}, 2
              s_lshr_b32 s{sT0+1}, {c.S1W:#x}, s{sT0+1}
              s_add_u32 s{sT0}, s{sT0}, s{sT0+1}
              s_and_b32 s{sT0}, s{sT0}, 15
              s_lshl_b32 s{sRING}, s{sWAVE}, 12
              s_mul_i32 s{sWLO}, s{sWAVE}, {512*3584}
              s_lshl_b32 s{sT0+1}, s{sFT}, 7
              s_add_u32 s{sWLO}, s{sWLO}, s{sT0+1}
              s_add_u32 s{sWHI}, s{sWLO}, {512*3584}
              s_mul_i32 s{sT0+1}, s{sT0}, {32*3584}
              s_add_u32 s{sWOFF}, s{sWLO}, s{sT0+1}""")
        k(self.w_addr_code(2, 3584))
        vHF = 26
        self.q_wstream(16, sW1, 2, sWOFF, sWLO, sWHI, 3584, 'W1', {64 - c.HPOS: lambda: self.poll_issue(vHF, 28, 'Hpoll')} if c.HPOS else None)
        if not c.HPOS: self.q(lambda: self.poll_issue(vHF, 28, 'Hpoll'))
        nw1 = self.nq
        self.start_x()
        self.stamp(1, 2); self.stamp(4, 5)
        if c.XBAR: k("s_barrier")
        self.tick(c.PRE0, reads=0)
        self.stamp(2, 2)
        k(f"""v_lshrrev_b32 v12, 4, v1
              v_lshlrev_b32 v12, 3, v12
              s_lshl_b32 s{sT0+2}, s{sFT}, 7
              s_lshl_b32 s{sT0+1}, s{sWAVE}, 5
              s_add_u32 s{sT0+2}, s{sT0+2}, s{sT0+1}
              s_mov_b32 s{sB1+2}, {F*2}
              s_mov_b32 s{sB1+3}, 0x20000""")
        k.vmem(f"buffer_load_dwordx2 v[24:25], v12, s[{sB1}:{sB1+3}], s{sT0+2} offen", 'b1')
        self.start_rest()
        k(f"""s_mul_i32 s{sALO}, s{sWAVE}, {16*KS}
              s_mul_i32 s{sT0+1}, s{sJ}, {5*FR}
              s_add_u32 s{sALO}, s{sALO}, s{sT0+1}
              s_add_u32 s{sALO}, s{sALO}, {WS_HT}
              s_add_u32 s{sAHI}, s{sALO}, {16*KS}
              s_mul_i32 s{sT0+1}, s{sT0}, {KS}
              s_add_u32 s{sAOFF}, s{sALO}, s{sT0+1}""")
        k(self.w_tr_code())
        self.ln(sWQKV, weave=lambda: self.tick(c.LNW, reads=0))
        self.stamp(7, 2)
        if c.HDEF:
            nold = 8 * (self.nv // 4)
            for _ in range(c.HLAG):
                self.tick(reads=0)
                for _ in range(4):
                    if 128 - len(self.rq) < nold: self.rq.pop(0)[1]()
        else: self.tick(c.HLAG, reads=4)
        self.stamp(8, 2)
        k.vwait('hst')
        self.stamp(9, 2)
        k("s_barrier")
        self.h_flag(17)
        self.fg(f"""v_lshlrev_b32 v10, 4, v1
              s_mov_b32 s{sG}, -1
              s_nop 0""")
        self.fg(f"""s_mul_i32 s{sT0}, s{sWAVE}, {32*c.FS}
              s_add_u32 s{sT0}, s{sT0}, {WS_FH}
              v_and_b32 v{vHF}, 31, v1
              v_mul_u32_u24 v{vHF}, {c.FS}, v{vHF}
              v_add_u32 v{vHF}, s{sT0}, v{vHF}""")
        self.fg(self.p2_setup_code())
        self.fg(f"v_add_u32 v11, {4*FR}, v{vUO}")
        for l in self.red_addr_code(6, 10): self.fg(l)
        self.fg(f"""v_bfe_u32 v13, v1, 4, 1
              v_lshrrev_b32 v12, 5, v1
              v_bfe_u32 v14, v1, 3, 1
              v_lshl_add_u32 v12, v12, 1, v14
              {lmap(12, 14)}v_and_b32 v14, 7, v1
              v_lshlrev_b32 v14, 4, v14
              v_lshl_add_u32 v12, v12, 7, v14
              v_lshl_add_u32 v20, v13, {HL+1}, v12
              v_lshl_add_u32 v21, v13, 31, v12""")
        c1 = -2.0 * math.sqrt(2.0 / math.pi) * math.log2(math.e)
        self.fg(f"""v_add_u32 v22, {2*FR}, v20
              v_add_u32 v23, {4*FR}, v21
              v_add_u32 v21, {2*FR}, v21
              s_lshl_b32 s0, s{sFT}, 1
              s_lshr_b32 s{sT0+1}, s{sWAVE}, 1
              s_add_u32 s0, s0, s{sT0+1}
              s_mul_i32 s0, s0, {KSU}
              s_mul_i32 s{sT0+1}, s{sJ}, {5*FR}
              s_add_u32 s0, s0, s{sT0+1}
              s_and_b32 s{sT0+1}, s{sWAVE}, 1
              s_lshl_b32 s{sT0+1}, s{sT0+1}, {HL}
              s_add_u32 s0, s0, s{sT0+1}
              s_add_u32 s0, s0, {WS_U}
              v_mov_b32 v30, {f2u(c1):#x}
              s_mov_b32 s1, {f2u(c1*0.044715):#x}""")
        assert self.nv < nw1 - c.HPOS - 1
        self.tick_until(nw1 - 1)
        k(f"s_cmp_eq_u32 s{sJ}, 5\ns_cbranch_scc1 L_m3")
        st = (list(k.vm), list(k.lg), list(self.vq), list(self.rq), self.nv, self.nq, set(self.reads_done))
        self.m1_rest(5, nw1, vHF)
        k.label("L_m3")
        k.vm, k.lg, self.vq, self.rq, self.nv, self.nq, self.reads_done = st
        self.m1_rest(3, nw1, vHF)

    def m1_rest(self, NL, nw1, vHF):
        k, c = self.k, self.c
        ACC, STG = 32, 112
        RED = self.LDS_RED
        NF = 16*NL
        def hload(n):
            t, i = divmod(n, 16)
            b = STG + 4*(n % c.PD1)
            va, off = (vUO + (t >> 1), (t & 1)*FR) if t < 4 else (11, 0)
            o = f" offset:{off}" if off else ""
            k.vmem(f"buffer_load_dwordx4 v[{b}:{b+3}], v{va}, s[{sWS}:{sWS+3}], s{sAOFF} offen{o} sc1", ('H', n))
            if n < c.PD1 - 1: k(hadv)
        hadv = f"s_add_u32 s{sAOFF}, s{sAOFF}, {KS}\ns_cmp_ge_u32 s{sAOFF}, s{sAHI}\ns_cselect_b32 s{sAOFF}, s{sALO}, s{sAOFF}"
        for n in range(NF): self.q(lambda n=n: hload(n))
        self.tick_until(nw1)
        if NL == 3 and c.PFJ:
            k(f"""v_lshrrev_b32 v12, 2, v1
                  v_lshlrev_b32 v12, 12, v12
                  v_and_b32 v13, 3, v1
                  v_lshl_add_u32 v12, v13, 7, v12
                  s_lshl_b32 s{sT0}, s{sXCD}, 9
                  s_mul_i32 s{sT0+1}, s{sWAVE}, {448*4096}
                  s_add_u32 s{sT0}, s{sT0}, s{sT0+1}
                  s_mul_i32 s{sT0+1}, s{sIDX}, 43
                  s_lshr_b32 s{sT0+1}, s{sT0+1}, 8
                  s_lshl_b32 s{sT0+1}, s{sT0+1}, 16
                  s_add_u32 s{sT0}, s{sT0}, s{sT0+1}
                  s_and_b32 s{sT0+1}, s{sXCD}, 1
                  s_sub_u32 s{sT0+1}, 4, s{sT0+1}
                  s_lshl_b32 s{sT0+1}, s{sT0+1}, 16""")
            for e in range(c.PFJ):
                k.vmem(f"buffer_load_dword v27, v12, s[{sW2}:{sW2+3}], s{sT0} offen", 'pf')
                k(f"s_add_u32 s{sT0}, s{sT0}, s{sT0+1}")
        self.stamp(3)
        self.poll_check(vHF, 28, 'Hpoll')
        self.stamp(4)
        k.vwait('b1')
        k(f"""v_lshlrev_b32 v12, 16, v24
              v_and_b32 v13, 0xffff0000, v24
              v_lshlrev_b32 v14, 16, v25
              v_and_b32 v15, 0xffff0000, v25""")
        self.tick(c.PD1)
        self.drain_reads()
        self.red_free = True
        self.q_p2()
        R, E, PK, TS = 64, 76, 80, 92
        def epi(t):
            return self.reduce_ops(t, ACC + 16*(t & 1), 6, R, TS + 4*(t & 1), lambda: fb.extend(act(t)))
        def act(t):
            d = TS + 4*(t & 1)
            o = []
            pk = PK + 4*(t >> 1)
            L = []
            L += [f"v_mul_f32 v{E+r}, v{d+r}, v{d+r}" for r in range(4)]
            L += [f"v_fma_f32 v{E+r}, v{E+r}, s1, v30" for r in range(4)]
            L += [f"v_mul_f32 v{E+r}, v{E+r}, v{d+r}" for r in range(4)]
            L += [f"v_exp_f32 v{E+r}, v{E+r}" for r in range(4)]
            L += [f"v_add_f32 v{E+r}, 1.0, v{E+r}" for r in range(4)]
            L += [f"v_rcp_f32 v{E+r}, v{E+r}" for r in range(4)]
            L += [f"v_mul_f32 v{E+r}, v{E+r}, v{d+r}" for r in range(4)]
            L += [f"v_cvt_pk_bf16_f32 v{pk+2*(t&1)+h}, v{E+2*h}, v{E+2*h+1}" for h in range(2)]
            o += [[0, kind_of(l), lambda l=l: k(l)] for l in L]
            if t & 1 or t == NL - 1:
                va, off = 19 + t, ""
                o.append([1, 'T', lambda: k(f"v_permlane16_swap_b32 v{pk}, v{pk+2}")])
                o.append([0, 'T', lambda: k(f"v_permlane16_swap_b32 v{pk+1}, v{pk+3}")])
                st = lambda: k.vmem(f"buffer_store_dwordx4 v[{pk}:{pk+3}], v{va}, s[{sWS}:{sWS+3}], s0 offen{off} sc1", 'ust')
                if c.UMID or t == NL - 1: o.append([1, 'X', st])
                else: held.append(st)
            return o
        fl = []; fb = []; held = []
        for n in range(NF):
            t, i = divmod(n, 16)
            b = STG + 4*(n % c.PD1)
            if i == 0:
                assert not fl, len(fl)
                if t: fl = epi(t - 1)
            k.lwait(('W1', i))
            k.vwait(('H', n))
            mf = []
            for a in (1, 2, 3, 0):
                d = ACC + 16*(t & 1) + 4*a
                cin = ("v[12:15]" if a == 0 else "0") if i == 0 else f"v[{d}:{d+3}]"
                mf.append(f"v_mfma_f32_16x16x32_bf16 v[{d}:{d+3}], a[{16*i+4*a}:{16*i+4*a+3}], v[{b}:{b+3}], {cin}")
            sc = self.adv_ops(sAOFF, sALO, sAHI, KS) if n + c.PD1 < NF else []
            if n + 1 < NF: sc.append(lambda: k.vwait(('H', n + 1)))
            self.group(mf, sc, fl, fb)
            if n + c.PD1 == NF: k.lwait(('W1', 15))
            self.tick(reads=0)
        assert not fl
        self.stamp(5); self.stamp(5, 3)
        self.budget = 0
        cnt = 0
        old, fb[:] = list(fb), []
        for gap, _, op in epi(NL - 1):
            if gap >= 3:
                self.tick()
                for _ in range(6):
                    if old: old.pop(0)[2]()
                if not old:
                    while held: held.pop(0)()
            op()
        assert not old and not held
        for gap, _, op in fb:
            op()
            cnt += 1
            if cnt % c.E1T == 0: self.tick()
        self.stamp(6, 3)
        self.tick(min(c.ULAG, len(self.vq) - c.UPOS - 1))
        self.stamp(7, 3)
        k.vwait('ust')
        self.stamp(8, 3)
        k("s_barrier")
        self.stamp(9, 3)
        self.flag(f"""s_mul_i32 s{sT0}, s{sFT}, 6
              s_add_u32 s{sT0}, s{sT0}, s{sJ}
              s_mul_i32 s{sT0}, s{sT0}, {c.FS}
              s_add_u32 s{sT0}, s{sT0}, {WS_FU}""", 17)
        self.stamp(6)
        self.to_p2()

    def p2(self):
        k, c = self.k, self.c
        k.label("L_p2")
        self.bg_reset()
        k.vm = ['Wo']
        k.lg = ['w2r']
        self.red_free = True
        ACC, SAC, G, R, E, STG, WV = 32, 64, 80, 96, 108, 112, 160
        assert STG + 4*c.PD2 <= WV
        self.stamp(8)
        NF = 56
        uadv = f"s_add_u32 s{sUOFF}, s{sUOFF}, {KSU}\ns_cmp_ge_u32 s{sUOFF}, s{sUHI}\ns_cselect_b32 s{sUOFF}, s{sULO}, s{sUOFF}"
        def uload(n):
            t, i = divmod(n, 14)
            b = STG + 4*(n % c.PD2)
            o = f" offset:{FR}" if t & 1 else ""
            if n == NF - c.OPOS: self.poll_issue(vOFL, vPOLL, 'Opoll')
            k.vmem(f"buffer_load_dwordx4 v[{b}:{b+3}], v{vUO + (t >> 1)}, s[{sWS}:{sWS+3}], s{sUOFF} offen{o} sc1", ('U', n))
            if n < c.PD2 - 1: k(uadv)
        def oload(hd):
            if hd == 0: self.poll_check(vOFL, vPOLL, 'Opoll')
            b = STG + 4*((NF + hd) % c.PD2)
            o = f" offset:{(hd&3) << HL}" if hd & 3 else ""
            if hd and hd & 3 == 0: k(f"s_add_u32 s{sOOFF}, s{sOOFF}, {4 << HL}")
            k.vmem(f"buffer_load_dwordx4 v[{b}:{b+3}], v{vOO}, s[{sWS}:{sWS+3}], s{sOOFF} offen{o} sc1", ('U', NF + hd))
        for n in range(NF): self.q(lambda n=n: uload(n))
        for hd in range(16): self.q(lambda hd=hd: oload(hd))
        self.tick(c.PD2)
        self.drain_reads()
        k.vwait('x')
        if c.WOT < 0:
            assert c.WOPRE == 15
            k.vwait('Wo')
            k(f"s_barrier\ns_cmp_eq_u32 s{sG}, -1\ns_cbranch_scc1 L_noflag")
        else: k(f"s_cmp_eq_u32 s{sG}, -1\ns_cbranch_scc1 L_noflag\ns_barrier")
        self.o_flag(17)
        k.label("L_noflag")
        k.lwait('w2r')
        woq = list(range(c.WOPRE, 15))
        wo_ok = [None] if c.WOT >= 0 else []
        XF = 2
        for r in range(4): k(f"v_lshlrev_b32 v{20+r}, 16, v{vB2}")
        side = [f"v_permlane16_swap_b32 v{vXD+p}, v{vXD+p+2}" for p in (0, 1, 4, 5)]
        for i in range(8):
            side += [f"v_lshlrev_b32 v{XF+2*i}, 16, v{vXD+i}", f"v_and_b32 v{XF+2*i+1}, 0xffff0000, v{vXD+i}"]
        xside = [[0, kind_of(l), lambda l=l: k(l)] for l in side]
        fl = []; fb = [[0, kind_of(l), lambda l=l: k(l)] for l in self.red_addr_code(24, vL16)]
        if not c.XLATE: fb = xside + fb
        def wreg(hd, o, n):
            if hd < 2: return ar(224 + 16*hd + o, n)
            if hd < 6: return vr(WV + 16*(hd - 2) + o, n)
            return ar(16*(hd - 6) + o, n)
        wr = []
        for hd in range(16):
            for t in range(4):
                for hh in range(2):
                    wr.append((0 if hd < 6 else 42 + hd - 6 + 1, f"ds_read_b64_tr_b16 {wreg(hd, 4*t + 2*hh, 2)}, v{vWOR + (t ^ (2*(hd & 1)))} offset:{(28*hd + 16*hh)*128}", ('wo', hd)))
        nl2e = f"{f2u(-math.log2(math.e)):#x}"
        def epi(t):
            if t == 0: assert not fb
            o = self.reduce_ops(t, ACC + 16*(t & 1), 24, R, G + 4*t, lambda: fb.extend(act(t)))
            if t == c.WOT:
                assert not woq
                bar = o[3][2]
                o[3][2] = lambda: (k.vwait('Wo'), bar(), wo_ok.pop())
            return o
        def act(t):
            d = G + 4*t
            L = []
            L += [f"v_mul_f32 v{E+r}, {nl2e}, v{d+r}" for r in range(4)]
            L += [f"v_exp_f32 v{E+r}, v{E+r}" for r in range(4)]
            L += [f"v_add_f32 v{E+r}, 1.0, v{E+r}" for r in range(4)]
            L += [f"v_rcp_f32 v{E+r}, v{E+r}" for r in range(4)]
            L += [f"v_mul_f32 v{G+4*t+r}, v{E+r}, v{d+r}" for r in range(4)]
            return [[0, kind_of(l), lambda l=l: k(l)] for l in L]
        for n in range(NF + 16):
            t, i = divmod(n, 14)
            b = STG + 4*(n % c.PD2)
            if i == 0 and 1 <= t <= 4:
                assert not fl, len(fl)
                fl = epi(t - 1)
            if n == NF: self.stamp(9)
            if t == 0: k.lwait(('W2', i))
            k.vwait(('U', n))
            if n >= NF:
                assert not any(w[2] == ('wo', n - NF) for w in wr)
                k.lwait(('wo', n - NF))
            mf = []
            for a in (1, 2, 3, 0):
                if n < NF:
                    d = ACC + 16*(t & 1) + 4*a
                    cin = ("v[20:23]" if a == 0 else "0") if i == 0 else f"v[{d}:{d+3}]"
                    mf.append(f"v_mfma_f32_16x16x32_bf16 v[{d}:{d+3}], v[{b}:{b+3}], a[{16*i+4*a}:{16*i+4*a+3}], {cin}")
                else:
                    tt = (a - 1) & 3
                    d = SAC + 4*tt
                    cin = "0" if n == NF else f"v[{d}:{d+3}]"
                    mf.append(f"v_mfma_f32_16x16x32_bf16 v[{d}:{d+3}], {wreg(n - NF, 4*tt, 4)}, v[{b}:{b+3}], {cin}")
            sc = self.adv_ops(sUOFF, sULO, sUHI, KSU) if n + c.PD2 < NF else []
            if n + 1 < NF + 16: sc.append(lambda: k.vwait(('U', n + 1)))
            quota = [c.WRQ]
            def rd(do):
                if not (wr and not wo_ok and wr[0][0] <= n and quota[0]): return False
                if do:
                    w = wr.pop(0); k.ds(w[1], w[2]); quota[0] -= 1
                return True
            self.group(mf, sc, fl, fb, rd, n >= c.WLATE)
            if c.XLATE and n in (1, 3): self.xops[n >> 1]()
            if c.XLATE and n == 4 + c.PD2:
                assert 'x' not in k.vm
                fb[:0] = xside
            if woq and n >= c.WO0: self.wo_dma(woq.pop(0))
            if self.vq: self.tick()
            else:
                quota[0] = 2
                while rd(True): pass
        assert not wr
        self.left = len(fl) + len(fb)
        while fl: fl.pop(0)[2]()
        while fb: fb.pop(0)[2]()
        for t in range(4):
            d = G + 4*t; s_ = SAC + 4*t; x = XF + 4*t
            for h in (0, 2):
                k(f"v_pk_fma_f32 v[{d+h}:{d+h+1}], v[{d+h}:{d+h+1}], v[{s_+h}:{s_+h+1}], v[{x+h}:{x+h+1}]")
            k(f"v_cvt_pk_bf16_f32 v{vXD+2*t}, v{d}, v{d+1}\nv_cvt_pk_bf16_f32 v{vXD+1+2*t}, v{d+2}, v{d+3}")
            if t & 1:
                p = vXD + 4*(t >> 1)
                k(f"v_permlane16_swap_b32 v{p}, v{p+2}\nv_permlane16_swap_b32 v{p+1}, v{p+3}")
                o = " offset:64" if t == 3 else ""
                k.vmem(f"buffer_store_dwordx4 v[{p}:{p+3}], v{vXO}, s[{sOUT}:{sOUT+3}], s{sXOFF} offen{o}{c.OAUX}", 'out')
        self.stamp(8, 4)

    def o_flag(self, vt):
        self.flag(f"""s_lshl_b32 s{sT0}, s{sG}, 1
              s_add_u32 s{sT0}, s{sT0}, s{sPAR}
              s_lshl_b32 s{sT0}, s{sT0}, 4
              s_add_u32 s{sT0}, s{sT0}, s{sBLK}
              s_mul_i32 s{sT0}, s{sT0}, {self.c.FS}
              s_add_u32 s{sT0}, s{sT0}, {WS_FO}""", vt)

    def attn(self, NT, duty):
        k, c = self.k, self.c
        self.bg_reset()
        k.lg = []
        if c.SKIPA:
            self.start_x(); self.start_rest(); self.ln(sW1)
            k(f"s_lshl_b32 s{sRING}, s{sWAVE}, 12")
            if duty: k(self.w_tr_code()); k(self.p2_setup_code())
            k.vwait('hst'); k("s_barrier"); self.h_flag(17); self.o_flag(21)
            if duty:
                k("s_sleep 127\ns_sleep 30")
                self.red_free = True; self.q_p2(); self.to_p2()
            else: k("s_branch L_fin")
            return
        WSLOT, NW = 24576, 4
        XB = NW * WSLOT
        XSLOT, NX = NT * 2048, 3
        nx = 2*NT
        nxe = (nx + 3) // 4
        nxmin = nx // 4
        sWO0, sWO1, sXO, sWM, sXM, sOCT = sWOFF, sWLO, sWHI, sAOFF, sALO, sAHI
        sXE = 4
        vW, vX, vXR, vWR = 2, 3, 8, 30
        Q, K = 40, 40 + 8*NT
        V0 = K + 8*NT + 4
        V1 = V0 + 4*NT + 4
        T0 = V1 + 4*NT
        RQ = lambda t: T0 + 2*t
        CSQ = T0 + 2*NT
        MC, MC0 = CSQ + 8, CSQ + 12
        assert MC0 + 4 <= (224 if duty else 256)
        ONES, AP = 20, 10
        k(f"""s_mul_i32 s{sT0}, s{sBLK}, {c.SAB}
              s_mul_i32 s{sT0+1}, s{sPAR if c.AMAP == 1 else sG}, {c.SAG}
              s_add_u32 s{sT0}, s{sT0}, s{sT0+1}
              s_mul_i32 s{sT0+1}, s{sT0}, 147
              s_lshr_b32 s{sT0+1}, s{sT0+1}, 10
              s_mul_i32 s{sT0+1}, s{sT0+1}, 7
              s_sub_u32 s{sT0}, s{sT0}, s{sT0+1}
              s_lshl_b32 s{sXO}, s{sT0}, 7
              s_mul_i32 s{sWO0}, s{sT0}, {64*2688}
              s_add_u32 s{sWO1}, s{sWO0}, {4*2688}""")
        k(f"""s_and_b32 s{sT0+2}, s{sWAVE}, 1
              s_lshl_b32 s{sT0}, s{sT0+2}, 3
              v_subrev_u32 v12, s{sT0}, v1
              v_mul_u32_u24 v13, 147, v12
              v_lshrrev_b32 v13, 11, v13
              v_mul_u32_u24 v14, 14, v13
              v_sub_u32 v14, v12, v14
              s_lshl_b32 s{sT0+3}, s{sWAVE}, 3
              v_add_u32 v13, s{sT0+3}, v13
              v_mul_u32_u24 v13, 2688, v13
              v_lshl_add_u32 v13, v14, 4, v13
              s_mul_i32 s{sT0}, s{sG}, 224
              v_cmp_gt_u32 s[6:7], 56, v12
              v_add_u32 v13, s{sT0}, v13
              v_bfrev_b32 v14, 1
              s_lshl_b32 s{sWM}, s{sWAVE}, 10
              s_add_u32 s{sXM}, s{sWM}, {XB}
              v_cndmask_b32 v{vW}, v14, v13, s[6:7]""")
        def wdma(i):
            ops = []
            slot = (i + 2) % NW
            for sec in range(3):
                for h in range(2):
                    pre = f"s_add_u32 m0, s{sWM}, {slot*WSLOT + (2*sec+h)*4096 - sec*896}\n"
                    if sec == 0 and h == 0 and i and not c.NOADV:
                        pre += f"s_add_u32 s{sWO0}, s{sWO0}, {32*2688}\n"
                        if i % 2 == 0: pre += f"s_cmp_ge_u32 s{sWO0}, {448*2688}\ns_cselect_b32 s{sWO0}, 0, s{sWO0}\n"
                    if sec == 0 and h == 1 and i:
                        pre += f"s_add_u32 s{sWO1}, s{sWO0}, {4*2688}\n"
                    def op(sec=sec, h=h):
                        if c.NOLD and i >= 2: return
                        o = f" offset:{sec*896}" if sec else ""
                        k.vmem(f"buffer_load_dwordx4 v{vW}, s[{sWQKV}:{sWQKV+3}], s{sWO1 if h else sWO0} offen{o}{c.QAUX} lds", ('W', i))
                    ops.append((max(i - NW, -1), i, pre, op))
            return ops
        def xdma(ch):
            ops = []
            slot = ch % NX
            first = -1 if ch < NX else 2*(ch - NX) + 1
            for e in reversed(range(nxe)):
                pre = f"s_add_u32 m0, s{sXM}, {slot*XSLOT + e*4096}\n"
                if e == nxe - 1 and ch and not c.NOADV:
                    pre += f"s_add_u32 s{sXO}, s{sXO}, 128\ns_cmp_ge_u32 s{sXO}, 896\ns_cselect_b32 s{sXO}, 0, s{sXO}\n"
                def op(e=e):
                    if (c.NOLD or c.NOX) and ch >= 1: return
                    t = f"buffer_load_dwordx4 v{vX+e}, s[{sX}:{sX+3}], s{sXO} offen{c.XAUX} lds"
                    if e >= nxmin:
                        l = k.newlabel("L_xs")
                        k(f"s_cmp_ge_u32 s{sWAVE}, {nx - 4*nxmin}\ns_cbranch_scc1 {l}")
                        k(t); k.label(l)
                    elif e == 0:
                        k(f"s_mov_b64 exec, s[{sXE}:{sXE+1}]")
                        k.vmem(t, ('X', ch))
                        k("s_mov_b64 exec, -1")
                    else:
                        k.vmem(t, ('X', ch))
                ops.append((first, 2*ch, pre, op))
            return ops
        dq = wdma(0) + xdma(0) + wdma(1)
        for ch in range(1, 7):
            dq += xdma(ch) + wdma(2*ch) + wdma(2*ch + 1)
        def pop(n=1):
            for _ in range(n):
                e = dq.pop(0); k(e[2]); e[3]()
        self.start_x(False)
        pop(min(6, c.APRE))
        k(f"""s_lshl_b32 s{sT0}, s{sOCT}, 3
              s_add_u32 s{sT0}, s{sT0}, s{sT0+3}
              s_sub_u32 s{sT0}, s{sT0}, 8
              v_lshrrev_b32 v12, 3, v1
              v_add_u32 v13, s{sT0}, v12
              s_lshl_b32 s{sT0+1}, s{sT0+2}, 2
              v_lshrrev_b32 v12, 1, v12
              v_add_u32 v12, s{sT0+1}, v12
              v_and_b32 v14, 7, v1
              v_xor_b32 v12, v12, v14
              v_lshlrev_b32 v12, 4, v12
              s_mul_i32 s{sT0+1}, s{sPAR}, 896
              v_add_u32 v12, s{sT0+1}, v12
              s_movk_i32 s{sT0+2}, 1023
              s_movk_i32 s{sT0+3}, 1792
              s_cmp_eq_u32 s{sWAVE}, 0
              s_cselect_b32 s{sXE}, 0xffffff00, -1
              s_mov_b32 s{sXE+1}, -1""")
        for e in range(nxe):
            k(f"""v_add_u32 v14, {32*e}, v13
                  v_med3_i32 v14, v14, 0, s{sT0+2}
                  v_mad_u32_u24 v{vX+e}, v14, s{sT0+3}, v12""")
        pop(max(0, c.APRE - 6))
        self.start_rest()
        k(f"""v_mov_b32 v{ONES}, 0x3f803f80
              v_and_b32 v13, 31, v0
              v_lshlrev_b32 v13, 2, v13
              v_add_u32 v13, {XB}, v13""")
        for sl in range(NX):
            k.ds(f"ds_write_b32 v13, v{ONES} offset:{sl*XSLOT}")
        k(f"""v_and_b32 v12, 15, v1
              v_lshrrev_b32 v13, 4, v1
              v_lshrrev_b32 v14, 1, v12
              v_xor_b32 v14, v14, v13
              v_lshlrev_b32 v14, 4, v14
              v_lshl_add_u32 v14, v12, 7, v14
              v_add_u32 v{vXR}, {XB}, v14
              v_xor_b32 v{vXR+1}, 64, v{vXR}
              v_lshlrev_b32 v14, 10, v13
              v_and_b32 v15, 1, v13
              v_xor_b32 v16, 1, v15
              v_mul_u32_u24 v16, 896, v16
              v_add_u32 v16, v14, v16
              v_lshl_add_u32 v14, v15, 7, v14
              v_bfe_u32 v15, v1, 2, 2
              v_mul_u32_u24 v15, 224, v15
              v_add_u32 v14, v14, v15
              v_and_b32 v15, 3, v1
              v_lshl_add_u32 v14, v15, 3, v14
              s_mul_i32 s{sT0}, s{sWAVE}, 56
              v_cmp_eq_u32 s[6:7], 3, v15
              v_add_u32 v{vWR}, s{sT0}, v14
              v_add_u32 v{vWR+1}, {2*WSLOT}, v{vWR}
              v_add_u32 v14, 32, v{vWR}
              v_cndmask_b32 v{vWR+2}, v14, v16, s[6:7]
              v_add_u32 v{vWR+3}, {2*WSLOT}, v{vWR+2}""")
        FB = 4*NT + 24
        def fx(i, t): return 256 - 2*FB + (i & 1)*FB + 4*t
        def fw(i, sec, a): return 256 - 2*FB + (i & 1)*FB + 4*NT + 8*sec + 4*a
        def reads(i):
            ops = []
            ws = (i + 2) % NW; xs = (i >> 1) % NX
            b = fx(i, 0)
            xr = lambda t: f"ds_read_b128 a[{fx(i,t)}:{fx(i,t)+3}], v{vXR + (i & 1)} offset:{xs*XSLOT + t*2048}"
            ops.append(xr(0))
            for sec in range(3):
                for a in range(2):
                    for h in range(2):
                        b = fw(i, sec, a) + 2*h
                        ops.append(f"ds_read_b64_tr_b16 a[{b}:{b+1}], v{vWR + 2*a + (ws >> 1)} offset:{(ws & 1)*WSLOT + (2*sec+h)*4096}")
            for t in range(1, NT): ops.append(xr(t))
            return ops
        def mfmas(i):
            ops = []
            for t in range(NT):
                x = f"a[{fx(i,t)}:{fx(i,t)+3}]"
                for sec in range(3):
                    for a in range(2):
                        w = f"a[{fw(i,sec,a)}:{fw(i,sec,a)+3}]"
                        d = (Q + 8*t + 4*a, K + 8*t + 4*a, (V1 if a else V0) + 4*t)[sec]
                        cin = "0" if i == 0 else f"v[{d}:{d+3}]"
                        A, B = (x, w) if sec == 2 else (w, x)
                        ops.append(f"v_mfma_f32_16x16x32_bf16 v[{d}:{d+3}], {A}, {B}, {cin}")
            return ops
        SB = self.LDS_LN
        side = f"""s_lshl_b32 s{sT0}, s{sOCT}, 1
              s_sub_u32 s{sT0}, s{sT0}, 2
              v_and_b32 v12, 31, v1
              v_min_u32 v12, {4*NT-1}, v12
              v_add_u32 v12, s{sT0}, v12
              s_movk_i32 s{sT0+1}, 255
              v_med3_i32 v12, v12, 0, s{sT0+1}
              v_lshrrev_b32 v13, 1, v12
              v_mul_u32_u24 v13, {c.FS}, v13
              v_add_u32 v24, {WS_FH}, v13
              v_lshrrev_b32 v13, 5, v1
              v_lshlrev_b32 v13, 13, v13
              v_lshl_add_u32 v25, v12, 4, v13
              s_lshl_b32 s0, s{sPAR}, 12
              s_add_u32 s0, s0, {WS_STATS}
              s_lshl_b32 s{sT0}, s{sWAVE}, 10
              s_add_u32 s{sT0}, s{sT0}, {SB}
              v_lshl_add_u32 v26, v1, 4, s{sT0}
              v_and_b32 v12, 15, v1
              v_lshl_add_u32 v34, v12, 2, s{sT0}
              v_lshrrev_b32 v13, 4, v1
              v_lshl_add_u32 v35, v13, 4, s{sT0}
              v_mov_b32 v{ONES+1}, v{ONES}
              v_mov_b32 v{ONES+2}, v{ONES}
              v_mov_b32 v{ONES+3}, v{ONES}
              v_mov_b32 v{V0-2}, 0
              v_mov_b32 v{V0-1}, 0
              v_mov_b32 v{V1-2}, 0
              v_mov_b32 v{V1-1}, 0
              s_lshl_b32 s{sRING}, s{sWAVE}, 12\n"""
        if duty: side += self.w_tr_code() + self.p2_setup_code()
        pfo = c.PFJ if c.PFO < 0 else c.PFO
        side += f"""s_and_b32 s{sT0}, s{sXCD}, 1
              s_mul_i32 s{sT0+1}, s{sT0}, 6\n"""
        if duty:
            side += f"""s_add_u32 s{sT0+5}, s{sT0+1}, 4
              s_add_u32 s{sT0+4}, s{sIDX}, s{sT0+1}
              s_sub_u32 s{sT0+4}, s{sT0+4}, 24
              s_sub_u32 s{sT0}, 4, s{sT0}
              s_mul_i32 s{sT0}, s{sT0}, {pfo}
              s_add_u32 s{sT0+4}, s{sT0+4}, s{sT0}\n"""
        else:
            side += f"""s_add_u32 s{sT0+4}, s{sT0+1}, 4
              s_mul_i32 s{sT0+4}, s{sT0+4}, {c.PFD}
              s_sub_u32 s{sT0+1}, 4, s{sT0}
              s_mul_i32 s{sT0+1}, s{sT0+1}, {pfo}
              s_add_u32 s{sT0+4}, s{sT0+4}, s{sT0+1}
              s_and_b32 s{sT0+1}, s{sIDX}, 3
              s_add_u32 s{sT0+4}, s{sT0+4}, s{sT0+1}
              s_mov_b32 s{sT0+5}, 4
              s_lshl_b32 s{sT0+1}, s{sT0+1}, 2
              s_add_u32 s{sT0+1}, s{sT0+1}, s{sWAVE}
              s_lshl_b32 s{sT0+1}, s{sT0+1}, 13
              v_lshl_add_u32 v36, v1, 7, s{sT0+1}
              s_and_b32 s{sT0+1}, s{sIDX}, 3
              s_lshl_b32 s{sT0+1}, s{sT0+1}, 3
              s_add_u32 s{sT0+1}, s{sT0+1}, s{sXCD}
              s_lshl_b32 s{sT0}, s{sWAVE}, 5
              s_add_u32 s{sT0+1}, s{sT0+1}, s{sT0}
              s_lshl_b32 s{sT0+1}, s{sT0+1}, 13
              v_lshl_add_u32 v{MC0+9}, v1, 7, s{sT0+1}
              v_mov_b32 v{MC0+8}, v36\n"""
        side += f"""v_lshrrev_b32 v12, 2, v1
              v_lshlrev_b32 v12, 12, v12
              v_and_b32 v13, 3, v1
              v_lshl_add_u32 v12, v13, 7, v12
              s_lshl_b32 s{sT0}, s{sXCD}, 9
              s_mul_i32 s{sT0+1}, s{sWAVE}, {448*4096}
              s_add_u32 s{sT0}, s{sT0}, s{sT0+1}
              v_add_u32 v38, s{sT0}, v12\n"""
        def pf_w2():
            k(f"""s_lshl_b32 s{sT0}, s{sT0+4}, 16
                  s_cmp_ge_u32 s{sT0+4}, 28
                  s_cselect_b32 s{sT0}, 0x40000000, s{sT0}
                  s_add_u32 s{sT0+4}, s{sT0+4}, s{sT0+5}""")
            k.vmem(f"buffer_load_dword v39, v38, s[{sW2}:{sW2+3}], s{sT0} offen", 'pf')
        def pf_wo(e):
            k(f"s_mov_b32 s{sT0}, {e*16*8192}")
            k.vmem(f"buffer_load_dword v39, v{MC0+8}, s[{sWO}:{sWO+3}], s{sT0} offen", 'pf')
        pfq = []
        if c.PFI >= 0:
            if duty: pfq = [pf_w2] * c.PFD
            else:
                nw2 = max(7 - c.PFD - pfo, -(-(28 - 3*pfo - 10*c.PFD) // 4))
                pfq = [lambda: (k.vmem(f"buffer_load_dword v39, v36, s[{sB2}:{sB2+3}], 0 offen", 'pf'), pf_w2())]
                pfq += [pf_w2] * (nw2 - 1)
                if c.PFWO == 2: pfq += [lambda: (pf_wo(0), pf_wo(3)), lambda: pf_wo(1), lambda: pf_wo(2)]
        SEL = [6, 46, 48, 50]
        side += f"""v_lshrrev_b32 v12, 4, v1
              v_lshlrev_b32 v12, 2, v12
              v_and_b32 v13, 15, v1
              v_sub_u32 v12, v12, v13
              v_mov_b32 v14, 0xff800000
              s_min_u32 s{sT0}, s{sBLK}, 1
              s_sub_u32 s{sT0}, s{sT0}, 1
              s_mov_b32 s{sT0+1}, 0\n"""
        for r in range(4):
            side += f"""v_add_u32 v13, {r+7}, v12
                  v_cmp_gt_u32 s[{sT0+2}:{sT0+3}], 8, v13
                  v_cmp_lt_i32 s[{SEL[r]}:{SEL[r]+1}], 15, v13
                  v_cndmask_b32 v{MC+r}, v14, 0, s[{sT0+2}:{sT0+3}]
                  v_cndmask_b32 v{MC0+r}, v{MC+r}, v14, s[{sT0}:{sT0+1}]\n"""
        side += "v_mov_b32 v14, 0xffff\nv_mov_b32 v15, 0xffff0000\n"
        for h in range(2):
            side += f"""v_cndmask_b32 v{AP+h}, 0, v14, s[{SEL[2*h]}:{SEL[2*h]+1}]
                  v_cndmask_b32 v13, 0, v15, s[{SEL[2*h+1]}:{SEL[2*h+1]+1}]
                  v_or_b32 v{AP+h}, v{AP+h}, v13\n"""
        side += f"""v_bfe_u32 v12, v1, 3, 1
              v_lshrrev_b32 v13, 4, v1
              {lmap(13, 14)}v_lshlrev_b32 v13, 7, v13
              v_and_b32 v14, 7, v1
              v_lshl_add_u32 v13, v14, 4, v13
              v_lshl_add_u32 v7, v12, {HL+4}, v13
              v_xor_b32 v12, 1, v12
              v_lshl_or_b32 v27, v12, 31, v7
              s_mul_i32 s1, s{sPAR}, {O_PAR}
              s_lshl_b32 s{sT0}, s{sOCT}, {HL+4}
              s_add_u32 s1, s1, s{sT0}
              s_lshl_b32 s{sT0}, s{sG}, 2
              s_add_u32 s{sT0}, s{sT0}, s{sWAVE}
              s_lshl_b32 s{sT0}, s{sT0}, {HL}
              s_add_u32 s1, s1, s{sT0}
              s_add_u32 s1, s1, {WS_O - O_OCT}\n"""
        side = [l.strip() for l in side.strip().split('\n') if l.strip()]
        def sidework(n, every=0):
            for e in range(n):
                if side: k(side.pop(0))
                if every and e % every == every - 1 and dq[0][1] < c.ADEEP: pop()
        self.stamp(1)
        sidework(c.SIDE0, c.SEV0)
        while dq[0][1] < c.AMID: pop()
        k.lwait_all()
        k(self.tag_code())
        self.stamp(2)
        k.vwait(('X', 0))
        k("s_barrier")
        for r in reads(0): k.ds(r)
        sidework(c.SIDE1, 12)
        while dq[0][1] < c.ADEEP: pop()
        self.stamp(3)
        for i in range(14):
            if i + 1 < 14:
                assert not dq or dq[0][1] > i + 1
                k.vwait(('W', i+1))
            k.lwait_all()
            k("s_barrier")
            if i in (0, 1, 2, 3, 4, 6, 8, 10, 13): self.stamp(1 + (0, 1, 2, 3, 4, 6, 8, 10, 13).index(i), 1)
            quota = c.AQ
            if duty and i == 11:
                self.red_free = False
                self.q_p2()
            rd = reads(i+1) if i + 1 < 14 else []
            mf = mfmas(i)
            nd = 0
            while nd < len(dq) and dq[nd][0] <= i and (nd < quota or dq[nd][1] <= i + 2): nd += 1
            early = duty and i >= 11
            if early: nd = len(mf) // c.EW2
            nm = len(mf) - 1
            lgaps = {1 + (j * (nm - 1)) // nd for j in range(nd)} if nd else set()
            dm = None
            for n, m in enumerate(mf):
                if not c.NOMFMA or i == 0: k(m)
                if n == nm: break
                if n in lgaps:
                    if dm: dm[3](); dm = None; continue
                    if early and (i >= 12 or self.nv < 12): self.tick(reads=0); continue
                g = Gap()
                if n + 1 in lgaps and not early:
                    dm = dq.pop(0)
                    for l in dm[2].strip().split('\n'): g.take('S'); k(l)
                free = sum(1 for j in range(n, nm - c.ARD) if j not in lgaps)
                want = 2 if len(rd) > free else 1
                while rd and want and g.take('D'):
                    k.ds(rd.pop(0)); want -= 1
                while early and self.rq and self.rq[0][0] <= self.nv and g.take('D'): self.rq.pop(0)[1]()
                while side and g.take(kind_of(side[0])): k(side.pop(0))
            assert not dm
            for r in rd: k.ds(r)
            while dq and dq[0][1] <= i + 2:
                assert dq[0][0] <= i
                pop()
            if i == c.STI:
                self.poll_issue(24, 28, 'Hpoll')
            if i == c.STI + 2:
                self.poll_check(24, 28, 'Hpoll')
                k.vmem(f"buffer_load_dwordx4 v[16:19], v25, s[{sWS}:{sWS+3}], s0 offen sc1", 'st')
            if i == c.STI + 4:
                k.vwait('st')
                k.ds("ds_write_b128 v26, v[16:19]")
            if i == 10: assert not side and not dq, (len(side), len(dq))
            if not duty and c.PFWO == 1 and i == c.PFWI:
                k.vmem(f"buffer_load_dword v39, v{MC0+9}, s[{sWO}:{sWO+3}], 0 offen", 'pf')
            if pfq and (c.PFI == i if duty else c.PFP >> i & 1):
                assert not side
                for _ in range(c.PFD if duty else 1): pfq.pop(0)()
        self.stamp(4)
        if duty:
            assert self.nv <= 40
            self.keep = c.AKEEP
            c.TICK = c.ATICK
            self.red_free = True
            self.tick(max(0, 8 - self.nv), reads=0)
        fg = self.fg
        CSV = 8
        ck = lambda h: (28, 30, 32, 36)[h >> 1]
        sset = ((24, 12, 16), (V0 - 4, 2, MC0 + 4))
        assert MC0 + 8 <= (224 if duty else 256)
        def sread(t):
            p, R, N = sset[t & 1]
            k.ds(f"ds_read2_b32 v[{p}:{p+1}], v34 offset0:{16*t} offset1:{16*t + 128}", ('s', t))
            k.ds(f"ds_read_b128 v[{R}:{R+3}], v35 offset:{64*t}", ('s', t))
            k.ds(f"ds_read_b128 v[{N}:{N+3}], v35 offset:{64*t + 512}", ('s', t))
        sread(0)
        for r in range(8):
            fg(f"v_mov_b32_dpp v{ck(r) + (r & 1)}, v{K+r} row_newbcast:0 row_mask:0xf bank_mask:0xf")
            fg(f"v_mov_b32_dpp v{CSQ+r}, v{Q+r} row_newbcast:0 row_mask:0xf bank_mask:0xf")
        fg(f"""v_mov_b32 v{CSV}, v{V0}
              v_mov_b32 v2, v{V0}
              v_mov_b32 v{CSV+1}, v{V1}
              v_mov_b32 v3, v{V1}
              v_permlane16_swap_b32 v{CSV}, v2
              v_permlane16_swap_b32 v{CSV+1}, v3
              v_mov_b32 v2, v{CSV}
              v_mov_b32 v3, v{CSV+1}
              s_nop 0
              v_permlane32_swap_b32 v{CSV}, v2
              v_permlane32_swap_b32 v{CSV+1}, v3""")
        qs = (28 ** -0.5) * math.log2(math.e)
        SP = lambda t: Q + 8*t + 4
        SC = lambda t: K + 8*t + 4
        def smf(t):
            if t: fg(f"v_mfma_f32_16x16x32_bf16 v[{SP(t)}:{SP(t)+3}], v[{K+8*(t-1)}:{K+8*(t-1)+3}], v[{Q+8*t}:{Q+8*t+3}], 0")
            m = MC if t else MC0
            fg(f"v_mfma_f32_16x16x32_bf16 v[{SC(t)}:{SC(t)+3}], v[{K+8*t}:{K+8*t+3}], v[{Q+8*t}:{Q+8*t+3}], v[{m}:{m+3}]")
        for t in range(NT):
            if t + 1 < NT: sread(t + 1)
            k.lwait(('s', t))
            p, R, N = sset[t & 1]
            for h in range(0, 8, 2):
                d = K + 8*t + h
                fg(f"v_pk_fma_f32 v[{d}:{d+1}], v[{ck(h)}:{ck(h)+1}], v[{p}:{p+1}], v[{d}:{d+1}] op_sel:[0,1,0] op_sel_hi:[1,1,1]")
            for h in range(0, 8, 2):
                d = Q + 8*t + h
                fg(f"v_pk_fma_f32 v[{d}:{d+1}], v[{CSQ+h}:{CSQ+h+1}], v[{p}:{p+1}], v[{d}:{d+1}] op_sel:[0,1,0] op_sel_hi:[1,1,1]")
            for a, VB in enumerate((V0, V1)):
                for h in (0, 2):
                    d = VB + 4*t + h
                    sel = "op_sel:[0,1,0] op_sel_hi:[1,1,1]" if a else "op_sel_hi:[1,0,1]"
                    fg(f"v_pk_fma_f32 v[{d}:{d+1}], v[{N+h}:{N+h+1}], v[{CSV}:{CSV+1}], v[{d}:{d+1}] {sel}")
            for h in range(0, 8, 2):
                d = K + 8*t + h
                fg(f"v_pk_mul_f32 v[{d}:{d+1}], v[{d}:{d+1}], v[{p}:{p+1}] op_sel_hi:[1,0]")
            for a, VB in enumerate((V0, V1)):
                for h in (0, 2):
                    d = VB + 4*t + h
                    fg(f"v_pk_mul_f32 v[{d}:{d+1}], v[{d}:{d+1}], v[{R+h}:{R+h+1}]")
            fg(f"v_mul_f32 v{RQ(t)}, {f2u(qs):#x}, v{p}")
            if t: smf(t - 1)
            if pfq and t % 3 == 2: pfq.pop(0)()
            for h in range(4):
                fg(f"v_cvt_pk_bf16_f32 v{Q+8*t+h}, v{Q+8*t+2*h}, v{Q+8*t+2*h+1}")
            for h in range(4):
                fg(f"v_cvt_pk_bf16_f32 v{K+8*t+h}, v{K+8*t+2*h}, v{K+8*t+2*h+1}")
            for a, VB in enumerate((V0, V1)):
                for h in range(2):
                    fg(f"v_cvt_pk_bf16_f32 v{VB+2*t+h}, v{VB+4*t+2*h}, v{VB+4*t+2*h+1}")
        smf(NT - 1)
        while pfq: pfq.pop(0)()
        TS = range(NT)
        MX = lambda t: RQ(t) + 1
        for t in TS:
            if t:
                for r in range(4):
                    fg(f"v_cndmask_b32 v{SC(t)+r}, v{SC(t)+r}, v{SP(t)+r}, s[{SEL[r]}:{SEL[r]+1}]")
            fg(f"v_max3_f32 v{MX(t)}, v{SC(t)}, v{SC(t)+1}, v{SC(t)+2}")
            fg(f"v_max_f32 v{MX(t)}, v{MX(t)}, v{SC(t)+3}")
        def xmax(g, tmp):
            a, b = MX(g[0]), MX(g[1])
            o = [f"v_permlane16_swap_b32 v{a}, v{b}", f"v_max_f32 v{a}, v{a}, v{b}"]
            if len(g) == 2:
                o += [f"v_mov_b32 v{b}, v{a}", f"v_permlane32_swap_b32 v{a}, v{b}", f"v_max_f32 v{a}, v{a}, v{b}"]
            else:
                cc = MX(g[2]); d = MX(g[3]) if len(g) == 4 else tmp
                if len(g) == 3: o = [f"v_mov_b32 v{d}, v{cc}"] + o
                o += [f"v_permlane16_swap_b32 v{cc}, v{d}", f"v_max_f32 v{cc}, v{cc}, v{d}",
                      f"v_permlane32_swap_b32 v{a}, v{cc}", f"v_max_f32 v{a}, v{a}, v{cc}",
                      f"v_mov_b32 v{cc}, v{a}", f"v_permlane32_swap_b32 v{a}, v{cc}"]
                if len(g) == 4: o += [f"v_mov_b32 v{d}, v{cc}"]
            o += [f"v_mov_b32 v{b}, v{a}"]
            if len(g) == 4: o += [f"v_permlane16_swap_b32 v{cc}, v{d}"]
            o += [f"v_permlane16_swap_b32 v{a}, v{b}"]
            return o
        g1, g2 = xmax(list(TS)[:4], 2), xmax(list(TS)[4:], 3)
        while g1 or g2:
            if g1: fg(g1.pop(0))
            if g2: fg(g2.pop(0))
        for t in TS: fg(f"v_mul_f32 v{MX(t)}, -v{MX(t)}, v{RQ(t)}")
        for t in TS:
            for h in (0, 2):
                fg(f"v_pk_fma_f32 v[{SC(t)+h}:{SC(t)+h+1}], v[{SC(t)+h}:{SC(t)+h+1}], v[{RQ(t)}:{RQ(t)+1}], v[{RQ(t)}:{RQ(t)+1}] op_sel:[0,0,1] op_sel_hi:[1,0,1]")
        def pv(t):
            P = Q + 8*t
            return [f"v_mfma_f32_16x16x32_bf16 v[{K+8*t}:{K+8*t+3}], v[{ONES}:{ONES+3}], v[{P}:{P+3}], 0",
                    f"v_mfma_f32_16x16x32_bf16 v[{SP(t)}:{SP(t)+3}], v[{V0+2*(t-1)}:{V0+2*(t-1)+3}], v[{P}:{P+3}], 0",
                    f"v_mfma_f32_16x16x32_bf16 v[{SC(t)}:{SC(t)+3}], v[{V1+2*(t-1)}:{V1+2*(t-1)+3}], v[{P}:{P+3}], 0"]
        pend = []
        for t in TS:
            P = Q + 8*t
            for r in range(4):
                fg(f"v_exp_f32 v{SC(t)+r}, v{SC(t)+r}")
                if pend and r: fg(pend.pop(0))
            for h in range(2):
                fg(f"v_cvt_pk_bf16_f32 v{P+2+h}, v{SC(t)+2*h}, v{SC(t)+2*h+1}")
            for h in range(2):
                fg(f"v_and_b32 v{P+h}, v{AP+h}, v{P+2+h}" if t else f"v_mov_b32 v{P+h}, 0")
            if t:
                for h in range(2):
                    fg(f"v_xor_b32 v{P+2+h}, v{P+h}, v{P+2+h}")
            pend = pv(t)
        for t in TS:
            if t == NT - 1:
                while pend: fg(pend.pop(0))
            fg(f"v_rcp_f32 v{K+8*t}, v{K+8*t}")
            if pend and t: fg(pend.pop(0))
        for t in TS:
            P = Q + 8*t
            for b in (SP(t), SP(t)+2, SC(t), SC(t)+2):
                k(f"v_pk_mul_f32 v[{b}:{b+1}], v[{b}:{b+1}], v[{K+8*t}:{K+8*t+1}] op_sel_hi:[1,0]")
            k(f"""v_cvt_pk_bf16_f32 v{P}, v{SP(t)}, v{SP(t)+1}
                  v_cvt_pk_bf16_f32 v{P+1}, v{SP(t)+2}, v{SP(t)+3}
                  v_cvt_pk_bf16_f32 v{P+2}, v{SC(t)}, v{SC(t)+1}
                  v_cvt_pk_bf16_f32 v{P+3}, v{SC(t)+2}, v{SC(t)+3}""")
            k.vmem(f"buffer_store_dwordx4 v[{P}:{P+3}], v{7 if t else 27}, s[{sWS}:{sWS+3}], s1 offen sc1", 'ost')
            k(f"s_add_u32 s1, s1, {2*O_OCT}")
        self.stamp(5)
        if duty:
            self.keep = 0
            self.to_p2()
        else:
            k.vwait('ost')
            k("s_barrier")
            self.o_flag(17)
            self.stamp(6)
            k(f"""s_lshl_b32 s{sT0}, s{sWG}, 2
                  s_add_u32 s{sT0}, s{sT0}, s{sWAVE}
                  s_cmp_lg_u32 s{sT0}, {255*4}
                  s_cbranch_scc1 L_fin""")
            for e in range(5):
                if e < 3:
                    k(f"v_add_u32 v2, {64*e}, v1\nv_min_u32 v2, 167, v2\nv_mul_u32_u24 v2, {c.FS}, v2\nv_add_u32 v2, {WS_FU}, v2")
                else:
                    k(f"""v_and_b32 v3, 15, v1
                          v_min_u32 v3, 10, v3
                          v_and_b32 v2, 48, v1
                          v_add3_u32 v2, v2, v3, {64*(e-3)}
                          v_mul_u32_u24 v2, {c.FS}, v2
                          v_add_u32 v2, {WS_FO}, v2""")
                self.poll_issue(2, 4, 'ep'); self.poll_check(2, 4, 'ep')
            k(f"buffer_store_dword v18, v17, s[{sWS}:{sWS+3}], 0 offen sc1")
            k("s_branch L_fin")

    def build(self):
        k, c = self.k, self.c
        self.prologue()
        base_vm = list(k.vm)
        k(f"""s_and_b32 s{sT0+2}, s{sXCD}, 1
              s_mul_i32 s{sT0+1}, s{sT0+2}, 6
              s_sub_u32 s{sT0+1}, 24, s{sT0+1}
              s_cmp_ge_u32 s{sIDX}, s{sT0+1}
              s_cbranch_scc1 L_attn""")
        if c.SKIPM:
            self.bg_reset(); self.start_x(); self.start_rest(); self.ln(sW1); k.vwait('hst'); k("s_barrier"); self.h_flag(17); k("s_branch L_fin")
        else: self.m1()
        k.label("L_attn")
        if c.AMAP == 1:
            k(f"s_lshr_b32 s{sG}, s{sXCD}, 1\ns_and_b32 s{sPAR}, s{sIDX}, 1")
        else:
            k(f"""s_bfe_u32 s{sPAR}, s{sXCD}, 0x10001
              s_lshr_b32 s{sG}, s{sXCD}, 2
              s_lshl_b32 s{sG}, s{sG}, 1
              s_and_b32 s{sT0}, s{sIDX}, 1
              s_add_u32 s{sG}, s{sG}, s{sT0}""")
        k(f"""s_lshl_b32 s{sT0+2}, s{sT0+2}, 1
              s_cmp_ge_u32 s{sIDX}, 28
              s_cbranch_scc1 L_pure
              s_sub_u32 s{sBLK}, s{sIDX}, s{sT0+1}
              s_lshr_b32 s{sBLK}, s{sBLK}, 1
              s_add_u32 s{sBLK}, s{sBLK}, s{sT0+2}
              s_mul_i32 s{sAHI}, s{sBLK}, 11
              s_add_u32 s{sAHI}, s{sAHI}, 52
              s_add_u32 s{sBLK}, s{sBLK}, 4""")
        k.vm = list(base_vm)
        self.attn(6, True)
        k.label("L_pure")
        k(f"""s_bfe_u32 s{sBLK}, s{sIDX}, 0x10001
              s_add_u32 s{sBLK}, s{sBLK}, s{sT0+2}
              s_mul_i32 s{sAHI}, s{sBLK}, 13""")
        k.vm = list(base_vm)
        self.attn(7, False)
        self.p2()
        k.label("L_fin")
        if c.STAMPS:
            k("s_waitcnt vmcnt(0)")
            self.stamp(10)
            k("s_waitcnt lgkmcnt(0)")
            for i in range(22): k(f"v_mov_b32 v{8+i}, s{sSTAMP+i}")
            k(f"""s_lshl_b32 s{sT0}, s{sWG}, 2
                  s_add_u32 s{sT0}, s{sT0}, s{sWAVE}
                  s_lshl_b32 s{sT0}, s{sT0}, 7
                  s_add_u32 s{sT0}, s{sT0}, {WS_TS}
                  v_cmp_eq_u32 vcc, 0, v1
                  v_bfrev_b32 v2, 1
                  v_mov_b32 v30, 0
                  v_mov_b32 v31, 0
                  v_cndmask_b32 v2, v2, 0, vcc""")
            for i in range(6):
                k(f"buffer_store_dwordx4 v[{8+4*i}:{11+4*i}], v2, s[{sWS}:{sWS+3}], s{sT0} offen offset:{16*i}")
        if c.DIAG >= 0:
            k(f"""s_cmp_lg_u32 s{sWG}, {c.DIAGWG}
                  s_cbranch_scc1 L_end
                  s_sub_u32 s4, s{sSTAMP+2*c.DIAG}, s{sSTAMP}
                  {'s_lshr_b32 s4, s4, 1' if c.CYC else 's_mul_i32 s4, s4, 10'}
                  s_min_u32 s4, s4, 60000
                  s_add_u32 s4, s4, 6000""")
            if c.CYC: k(f"s_memrealtime s[{sSTAMP}:{sSTAMP+1}]\ns_waitcnt lgkmcnt(0)")
            k.label("L_diag")
            k(f"""s_memrealtime s[6:7]
                  s_waitcnt lgkmcnt(0)
                  s_sub_u32 s5, s6, s{sSTAMP}
                  s_cmp_lt_u32 s5, s4
                  s_cbranch_scc1 L_diag""")
        k.label("L_end")
        k("s_endpgm")
        lines, nins = hazard_fix(k.lines)
        hdr = open(os.path.join(os.path.dirname(os.path.abspath(__file__)), "..", "cdna_kernels", NAME + ".s.ref")).read().split("; Override launch")[0]
        out = hdr
        out += f"; @launch grid=(256,1,1) block=(256,1,1) lds={self.LDS_SIZE}\n"
        out += f'.amdgcn_target "amdgcn-amd-amdhsa--gfx950"\n.text\n.p2align {12 if c.ALIGN else 8}\n.globl {NAME}_kernel\n.p2align 8\n.type {NAME}_kernel,@function\n{NAME}_kernel:\n'
        body = "\n".join(l if l.endswith(":") else "    " + l for l in lines)
        body = body.replace("CODE_BYTES", "L_end-L_pc")
        out += body + "\n"
        out += f""".section .rodata,"a"
.p2align 6
.amdhsa_kernel {NAME}_kernel
  .amdhsa_next_free_vgpr 512
  .amdhsa_next_free_sgpr 102
  .amdhsa_accum_offset 256
  .amdhsa_group_segment_fixed_size 0
  .amdhsa_kernarg_size 88
  .amdhsa_user_sgpr_count 2
  .amdhsa_user_sgpr_kernarg_segment_ptr 1
  .amdhsa_system_sgpr_workgroup_id_x 1
.end_amdhsa_kernel
"""
        return out, nins, len(lines)

if __name__ == "__main__":
    c = Cfg()
    outp = sys.argv[1]
    for a in sys.argv[2:]:
        kk, v = a.split("=", 1)
        old = getattr(c, kk)
        if isinstance(old, bool): v = v not in ("0", "False")
        elif isinstance(old, int): v = int(v, 0)
        else: v = (" " + v.replace("+", " ")) if v else ""
        setattr(c, kk, v)
    g = Gen(c)
    txt, nins, nl = g.build()
    open(outp, "w").write(txt)
    print(f"wrote {outp}: {nl} lines, {nins} hazard pads, {g.left} ops left after M2")
```

```python
import sys, struct, math, os
sys.path.insert(0, os.path.dirname(os.path.abspath(__file__)))
from kb import *

NAME = "recurrent_scan__sliding_local_dilated__mixer_token_mlp__prompt"
S, D, F = 2048, 448, 1792

class Cfg:
    FS = 64
    NR = 4
    LAG = 3
    PD1 = 12
    PD2 = 12
    LNW = 1
    HLAG = 8
    XBAR = False
    HDEF = False
    XLATE = False
    S1V = True
    XDMA = True
    PRE0 = 4
    HPOS = 8
    UPOS = 8
    OPOS = 10
    S1W = 0xdb8530
    S1H = 0
    S2W = 0
    S2U = 0
    SAB = 3
    SAG = 0
    AMAP = 2
    TW0 = 7
    E1T = 16
    RGAP = 5
    UMID = False
    WRQ = 4
    WOPRE = 14
    WO0 = 4
    WOT = -1
    WLATE = 50
    RPEND = 0
    ULAG = 12
    PFJ = 2
    EW2 = 4
    ARD = 6
    PFWO = 2
    PFWI = 6
    PFP = 0x3e00
    AKEEP = 0
    PFO = -1
    ATICK = 50
    TICK = 60
    WAUX = ""
    QAUX = ""
    XAUX = ""
    OAUX = ""
    LNA = 0
    PFI = 9
    PFD = 1
    APRE = 10
    AMID = 2
    SIDEH = 100
    ADEEP = 3
    SIDE0 = 200
    SEV0 = 16
    SIDE1 = 100
    HI = -1
    STI = 5
    AQ = 9
    STAMPS = False
    SMODE = 0
    CYC = False
    SPIN = 200000
    ALIGN = True
    BACKOFF = 0
    KA1 = False
    SKIP3 = 1
    CODEPF = True
    DIAG = -1
    DIAGWG = 0
    SKIPA = False
    SKIPM = False
    NOP2 = False
    NOMFMA = False
    NOADV = False
    NOLD = False
    NOX = False

WS_EPOCH = 0
WS_FH = 0x1000
WS_FU = 0x9000
WS_FO = 0xF000
WS_STATS = 0x14000
WS_TS = 0x18000
WS_HT = 0x40000
WS_U = 0x400000
WS_O = 0x740000
WS_END = 0xB80000
SK = 0 if "SKIP3=0" in sys.argv else 1
HL = 9 + SK
FR = 2 << HL
KS = KSU = 29 * FR
O_OCT = 16 << HL
O_PAR = 132 * O_OCT
def lmap(v, t):
    return f"v_add_u32 v{t}, 1, v{v}\nv_lshrrev_b32 v{t}, 2, v{t}\nv_add_u32 v{v}, v{v}, v{t}\n" if SK else ""
def frag_off(d, t):
    return f"""v_bfe_u32 v{t}, v1, 3, 2
              {lmap(t, t+1)}v_and_b32 v{t+1}, 7, v1
              v_lshlrev_b32 v{t+1}, 4, v{t+1}
              v_lshl_add_u32 v{t}, v{t}, 7, v{t+1}
              v_lshrrev_b32 v{t+1}, 5, v1
              v_lshl_add_u32 v{d}, v{t+1}, {HL}, v{t}\n"""
OOB = 0x80000000

def f2u(x): return struct.unpack('<I', struct.pack('<f', x))[0]

sWG, sWAVE = 2, 3
sX, sWQKV, sWO, sW1, sW2, sB1, sB2, sOUT, sWS = 8, 12, 16, 20, 24, 28, 32, 36, 40
sTAG = 44
sXCD, sIDX = 46, 47
sST, sDJ = 48, 49
sFT, sJ = 50, 51
sRING = 52
sWOFF, sWLO, sWHI = 53, 54, 55
sAOFF, sALO, sAHI = 56, 57, 58
sW2OFF, sW2LO, sW2HI = 59, 60, 61
sG, sPAR, sBLK = 62, 63, 64
sSPIN = 65
sUOFF, sULO, sUHI, sWOOFF, sWOM0, sXOFF, sB2OFF, sOOFF = 66, 67, 68, 69, 70, 71, 72, 73
sT0 = 74
sSTAMP = 80

vTR, vW2 = 248, 252
vWOR = 244
vXD = 236
vWOD, vXO, vB2, vUF, vOFL, vOO, vL16 = 224, 225, 227, 228, 229, 230, 231
vPOLL = 232
vUO = 234

LN_PITCH = 960

def cost(line):
    mn = line.split()[0]
    if mn.startswith('v_mfma'): return 16
    if mn in TRANS or mn.startswith('v_permlane'): return 8
    if mn.startswith('ds_write_b128'): return 50
    if mn.startswith('ds_read_b128'): return 16
    if mn.startswith('s_'): return 4
    return 5

class Gap:
    def __init__(self): self.p = 1; self.pd = -9; self.nd = 0; self.v = False
    def take(self, kind):
        p = self.p
        if kind == 'S' or kind == 'V':
            p = max(p, self.pd + 2, 2 if kind == 'V' else 1)
            if p > 3 or self.nd > 1: return False
            self.p = p + 1; self.v |= kind == 'V'
        elif kind == 'T':
            if p > 2 or self.nd: return False
            self.p = 4; self.v = True
        elif kind == 'D':
            if p > 3 or self.v or self.nd > 1: return False
            self.pd = p; self.p = p + 1; self.nd += 1
        else:
            if p > 1: return False
            self.p = 4
        return True

def kind_of(line):
    if '\n' in line.strip(): return 'X'
    mn = line.split()[0]
    if mn in TRANS or mn.startswith('v_permlane'): return 'T'
    if mn.startswith('v_'): return 'V'
    if mn.startswith('ds_read'): return 'D'
    if mn.startswith('s_'): return 'S'
    return 'X'

class Gen:
    def __init__(self, c):
        self.c = c
        self.k = KB()
        self.LDS_WO = 4 * c.NR * 4096
        self.LDS_RED = self.LDS_WO + 58 * 1024
        self.LDS_LN = 157696
        self.LDS_X = self.LDS_RED + 24576
        self.LDS_SIZE = 163840
        assert self.LDS_X + 8192 <= self.LDS_LN
        self.bg_reset()
        self.scc_open = False

    def stamp(self, i, mode=0):
        if self.c.STAMPS and (mode == self.c.SMODE or i in (0, 10)):
            self.k(f"{'s_memtime' if self.c.CYC else 's_memrealtime'} s[{sSTAMP+2*i}:{sSTAMP+2*i+1}]")

    def bg_reset(self):
        self.vq = []
        self.rq = []
        self.nv = 0
        self.nq = 0
        self.budget = 0
        self.keep = 0
        self.reads_done = set()
    def q(self, op):
        self.vq.append(op); self.nq += 1
    def tick(self, n=1, reads=2):
        for _ in range(n):
            if self.vq:
                self.vq.pop(0)(); self.nv += 1
            for _ in range(reads):
                if self.rq and (self.rq[0][0] <= self.nv or not self.vq):
                    self.rq.pop(0)[1]()
    def tick_until(self, count):
        while self.nv < count and self.vq: self.tick()
    def drain_reads(self):
        while self.rq: self.rq.pop(0)[1]()
    def fg(self, text, ds=None, isds=False):
        for l in text.strip('\n').split('\n'):
            l = l.strip()
            if not l: continue
            if isds: self.k.ds(l, ds)
            else: self.k(l)
            self.budget += cost(l)
            if self.budget >= self.c.TICK:
                self.budget -= self.c.TICK
                if len(self.vq) > self.keep: self.tick()

    def q_wstream(self, ns, srd, vq, soff, slo, shi, stride, tag, inserts=None):
        k, c = self.k, self.c
        inserts = inserts or {}
        for n in range(ns):
            slot = n % c.NR
            for qq in range(4):
                if 4*n + qq in inserts: self.q(inserts[4*n + qq])
                def op(n=n, qq=qq, slot=slot):
                    if qq == 0:
                        if n >= c.NR:
                            while (tag, n - c.NR) not in self.reads_done: self.rq.pop(0)[1]()
                            k.lwait((tag, n - c.NR))
                        k(f"s_add_u32 m0, s{sRING}, {slot*16384}")
                        if n: k(f"s_add_u32 s{soff}, s{soff}, {32*stride}\ns_cmp_ge_u32 s{soff}, s{shi}\ns_cselect_b32 s{soff}, s{slo}, s{soff}")
                    off = f" offset:{qq*1024}" if qq else ""
                    k.vmem(f"buffer_load_dwordx4 v{vq+qq}, s[{srd}:{srd+3}], s{soff} offen{off}{c.WAUX} lds", (tag, n))
                self.q(op)
            for a in range(4):
                for h in range(2):
                    def rd(n=n, a=a, h=h, slot=slot):
                        k.vwait((tag, n))
                        b = 16*n + 4*a + 2*h
                        k.ds(f"ds_read_b64_tr_b16 a[{b}:{b+1}], v{vTR+a} offset:{slot*16384 + h*2048}", (tag, n))
                        if a == 3 and h == 1: self.reads_done.add((tag, n))
                    self.rq.append((self.nq + 4*(c.LAG - 1) + 1, rd))

    def prologue(self):
        k, c = self.k, self.c
        self.stamp(0)
        for reg, off in ((sX, 0), (sW1, 32), (sWQKV, 8), (sWS, 80), (sB1, 40)):
            if reg != sWS or not c.KA1: k(f"s_load_dwordx2 s[{reg}:{reg+1}], s[0:1], {off}")
        k(f"""s_cmp_ge_u32 s{sWG}, 256
              s_cbranch_scc1 L_end
              s_lshr_b32 s{sIDX}, s{sWG}, 3
              v_lshrrev_b32 v2, 6, v0""")
        if c.CODEPF:
            k(f"s_getpc_b64 s[{sT0}:{sT0+1}]")
            k.label("L_pc")
            k(f"""v_lshrrev_b32 v7, 4, v0
                  v_lshl_add_u32 v7, v7, 5, s{sIDX}
                  v_lshlrev_b32 v7, 7, v7
                  v_min_u32 v6, CODE_BYTES, v7
                  v_mov_b32 v7, 0
                  v_lshl_add_u64 v[6:7], v[6:7], 0, s[{sT0}:{sT0+1}]""")
            k.vmem(f"global_load_dword v39, v[6:7], off", 'cpf')
        k(f"""v_readfirstlane_b32 s{sWAVE}, v2
              s_and_b32 s{sXCD}, s{sWG}, 7
              v_and_b32 v1, 63, v0""")
        self.stamp(1, 5)

    def start_x(self, ln=True):
        k, c = self.k, self.c
        if ln:
            k(f"""v_lshrrev_b32 v12, 4, v0
              s_lshl_b32 s{sT0+4}, s{sWG}, 4
              v_and_b32 v13, 15, v0
              v_add_u32 v12, s{sT0+4}, v12
              v_cmp_gt_u32 s[{sT0+4}:{sT0+5}], 14, v13
              v_mul_u32_u24 v12, 896, v12
              v_bfrev_b32 v14, 1
              v_lshl_add_u32 v12, v13, 4, v12
              s_mov_b32 s{sW1+2}, {S*F*2}
              s_mov_b32 s{sW1+3}, 0x20000
              v_cndmask_b32 v12, v14, v12, s[{sT0+4}:{sT0+5}]""")
        else:
            k(f"s_mov_b32 s{sWQKV+2}, {D*3*D*2}\ns_mov_b32 s{sWQKV+3}, 0x20000")
        k(f"""s_mov_b32 s{sX+2}, {S*D*2}
              s_mov_b32 s{sX+3}, 0x20000""")
        self.stamp(2, 5)
        k("s_waitcnt lgkmcnt(0)")
        self.stamp(3, 5)
        if ln:
            for e in range(4):
                k.vmem(f"buffer_load_dwordx4 v[{40+4*e}:{43+4*e}], v12, s[{sX}:{sX+3}], 0 offen offset:{224*e}{c.XAUX}", ('lnx', e))

    def tag_code(self):
        return f"""s_mul_i32 s{sTAG+1}, s{sTAG}, 0x2c9277b5
              s_mul_i32 s{sTAG}, s{sTAG}, 0x9e3779b1
              s_add_u32 s{sTAG+1}, s{sTAG+1}, 0x5bd1e995
              s_add_u32 s{sTAG}, s{sTAG}, 0x7f4a7c15"""

    def start_rest(self):
        k, c = self.k, self.c
        if c.KA1: k(f"s_load_dwordx2 s[{sWS}:{sWS+1}], s[0:1], 80\ns_waitcnt lgkmcnt(0)")
        k(f"s_load_dword s{sTAG}, s[{sWS}:{sWS+1}], {WS_EPOCH}")
        for reg, off in ((sWO, 16), (sW2, 48), (sB2, 56), (sOUT, 64)):
            k(f"s_load_dwordx2 s[{reg}:{reg+1}], s[0:1], {off}")
        for reg, n in ((sWS, WS_END), (sWO, D*D*2), (sW2, F*S*2), (sB2, S*2), (sOUT, S*D*2)):
            k(f"s_mov_b32 s{reg+2}, {n}\ns_mov_b32 s{reg+3}, 0x20000")
        if c.STAMPS:
            for i in range({2: 3, 5: 5}.get(c.SMODE, 1), 11): k(f"s_mov_b64 s[{sSTAMP+2*i}:{sSTAMP+2*i+1}], 0")

    def ln(self, sL, weave=lambda: None):
        k, c = self.k, self.c
        LB = self.LDS_WO
        SBL = LB + 16*LN_PITCH
        X, Y, A = 40, 56, 88
        k(f"""v_lshrrev_b32 v92, 4, v0
              v_mul_u32_u24 v{A}, {LN_PITCH}, v92
              v_and_b32 v93, 15, v0
              v_lshl_add_u32 v{A}, v93, 4, v{A}
              v_add_u32 v{A}, {LB}, v{A}
              v_and_b32 v94, 1, v92
              v_lshrrev_b32 v95, 1, v92
              v_lshlrev_b32 v95, 2, v95
              v_lshl_add_u32 v95, v94, 5, v95
              v_add_u32 v{A+1}, {SBL}, v95
              v_bfe_u32 v95, v1, 2, 2
              v_lshl_add_u32 v95, v94, 3, v95
              v_mul_u32_u24 v95, {LN_PITCH}, v95
              v_lshrrev_b32 v96, 5, v1
              v_lshl_add_u32 v95, v96, 5, v95
              v_and_b32 v97, 3, v1
              v_lshl_add_u32 v95, v97, 3, v95
              s_lshl_b32 s{sL}, s{sWAVE}, 6
              s_add_u32 s{sL}, s{sL}, {LB}
              v_add_u32 v{A+2}, s{sL}, v95
              v_bfe_u32 v94, v1, 3, 2
              {lmap(94, 95)}v_and_b32 v93, 7, v1
              v_lshlrev_b32 v93, 4, v93
              v_lshl_add_u32 v93, v94, 7, v93
              v_lshl_add_u32 v93, v96, {HL+1}, v93
              s_lshl_b32 s{sL}, s{sWG}, 24
              s_and_b32 s{sL+3}, s{sL}, {OOB:#x}
              v_or_b32 v{A+3}, s{sL+3}, v93
              s_lshr_b32 s{sL}, s{sWG}, 1
              s_mul_i32 s{sL}, s{sL}, {KS}
              s_and_b32 s{sL+1}, s{sWG}, 1
              s_lshl_b32 s{sL+1}, s{sL+1}, {HL}
              s_add_u32 s{sL}, s{sL}, s{sL+1}
              s_lshl_b32 s{sL+1}, s{sWAVE}, {HL+2}
              s_add_u32 s{sL}, s{sL}, s{sL+1}
              s_add_u32 s{sL}, s{sL}, {WS_HT}
              s_mov_b32 s{sL+2}, 0x3f803f80""")
        for e in range(4):
            k.vwait(('lnx', e))
            if e == 0: self.stamp(1); self.stamp(3, 2)
            if e == 3: self.stamp(4, 2)
            for i in range(4*e, 4*e + 4):
                k(f"v_dot2_f32_bf16 v92, v{X+i}, s{sL+2}, {'v92' if i else '0'}\nv_dot2_f32_bf16 v93, v{X+i}, v{X+i}, {'v93' if i else '0'}")
        un = []
        for i in range(16):
            un.append(f"v_lshlrev_b32 v{Y+2*i}, 16, v{X+i}")
            un.append(f"v_and_b32 v{Y+1+2*i}, 0xffff0000, v{X+i}")
        def fill(n):
            for _ in range(n):
                if un: k(un.pop(0))
        weave()
        fill(3)
        for m in ("quad_perm:[1,0,3,2]", "quad_perm:[2,3,0,1]", "row_half_mirror", "row_mirror"):
            k(f"v_add_f32_dpp v92, v92, v92 {m} row_mask:0xf bank_mask:0xf")
            k(f"v_add_f32_dpp v93, v93, v93 {m} row_mask:0xf bank_mask:0xf")
            fill(1)
        k(f"""v_mul_f32 v92, {f2u(1.0/D):#x}, v92
              v_mul_f32 v93, {f2u(1.0/D):#x}, v93
              v_fma_f32 v93, -v92, v92, v93
              v_max_f32 v93, 0, v93
              v_add_f32 v94, {f2u(1e-5):#x}, v93
              v_rsq_f32 v94, v94""")
        fill(2)
        k(f"""v_mul_f32 v95, v94, v94
              v_mov_b32 v96, {f2u(1e-5):#x}
              v_fmac_f32 v96, v93, v95
              v_rsq_f32 v96, v96
              v_sub_f32 v95, 0, v92""")
        weave()
        fill(2)
        k("v_mul_f32 v98, v94, v96\nv_mul_f32 v99, v95, v98")
        k.ds(f"ds_write2_b32 v{A+1}, v94, v95 offset1:16")
        for e in range(4):
            while len(un) > 24 - 8*e: fill(1)
            for i in range(4*e, 4*e+4):
                k(f"v_pk_fma_f32 v[{Y+2*i}:{Y+1+2*i}], v[{Y+2*i}:{Y+1+2*i}], v[98:99], v[98:99] op_sel:[0,0,1] op_sel_hi:[1,0,1]")
            for i in range(4*e, 4*e+4):
                k(f"v_cvt_pk_bf16_f32 v{X+i}, v{Y+2*i}, v{Y+1+2*i}")
            k.ds(f"ds_write_b128 v{A}, v[{X+4*e}:{X+4*e+3}] offset:{224*e}")
            if e & 1: weave()
        self.stamp(5, 2)
        k.lwait_all()
        k("s_barrier")
        self.stamp(6, 2)
        for e in range(3):
            for h in range(2):
                k.ds(f"ds_read_b64_tr_b16 v[{Y+4*e+2*h}:{Y+4*e+2*h+1}], v{A+2} offset:{h*4*LN_PITCH + e*256}", ('q', e))
        l3, lj = k.newlabel("L_ln3"), k.newlabel("L_lnj")
        k(f"""s_cmp_ge_u32 s{sWAVE}, 2
              s_cbranch_scc1 {l3}
              ds_read_b64_tr_b16 v[{Y+12}:{Y+13}], v{A+2} offset:768
              ds_read_b64_tr_b16 v[{Y+14}:{Y+15}], v{A+2} offset:{4*LN_PITCH + 768}
              v_mov_b32 v92, v{A+3}
              s_add_u32 s{sL+1}, s{sL}, {3*8*FR}
              s_branch {lj}""")
        k.label(l3)
        k(f"""v_and_b32 v94, 7, v1
              v_lshlrev_b32 v93, 4, v94
              v_add_u32 v93, {SBL}, v93
              ds_read_b128 v[{Y+12}:{Y+15}], v93
              v_subrev_u32 v95, 192, v0
              v_cmp_gt_u32 vcc, 8, v95
              v_lshrrev_b32 v92, 1, v94
              v_lshlrev_b32 v92, 12, v92
              v_and_b32 v94, 1, v94
              v_lshl_add_u32 v92, v94, 4, v92
              v_or_b32 v92, s{sL+3}, v92
              v_bfrev_b32 v93, 1
              s_lshl_b32 s{sL+1}, s{sWG}, 5
              s_add_u32 s{sL+1}, s{sL+1}, {WS_STATS}
              v_cndmask_b32 v92, v93, v92, vcc""")
        k.label(lj)
        k(self.tag_code())
        for e in range(3):
            k.lwait(('q', e))
            k.vmem(f"buffer_store_dwordx4 v[{Y+4*e}:{Y+4*e+3}], v{A+3}, s[{sWS}:{sWS+3}], s{sL} offen sc1", 'hst')
            if e < 2: k(f"s_add_u32 s{sL}, s{sL}, {8*FR}")
        k.lwait_all()
        k.vmem(f"buffer_store_dwordx4 v[{Y+12}:{Y+15}], v92, s[{sWS}:{sWS+3}], s{sL+1} offen sc1", 'hst')

    def flag(self, addr_code, vt, epoch=False, so=sT0):
        k = self.k
        skip = k.newlabel("L_flag")
        k(f"s_cmp_lg_u32 s{sWAVE}, 0\ns_cbranch_scc1 {skip}")
        k(f"""v_cmp_eq_u32 vcc, 0, v1
              v_bfrev_b32 v{vt}, 1
              v_mov_b32 v{vt+1}, s{sTAG}
              v_mov_b32 v{vt+2}, s{sTAG+1}
              v_cndmask_b32 v{vt}, v{vt}, 0, vcc""")
        k(addr_code)
        k(f"buffer_store_dwordx2 v[{vt+1}:{vt+2}], v{vt}, s[{sWS}:{sWS+3}], s{so} offen sc1")
        if epoch:
            k(f"s_cmp_lg_u32 s{sWG}, 0\ns_cbranch_scc1 {skip}")
            k(f"buffer_store_dword v{vt+1}, v{vt}, s[{sWS}:{sWS+3}], 0 offen sc1")
        k.label(skip)

    def h_flag(self, vt):
        self.flag(f"s_mul_i32 s{sSPIN}, s{sWG}, {self.c.FS}\ns_add_u32 s{sSPIN}, s{sSPIN}, {WS_FH}", vt, so=sSPIN)
        self.stamp(2)

    def poll_issue(self, vaddr, vt, tok):
        self.k.vmem(f"buffer_load_dwordx2 v[{vt}:{vt+1}], v{vaddr}, s[{sWS}:{sWS+3}], 0 offen sc1", tok)

    def poll_check(self, vaddr, vt, tok):
        k, c = self.k, self.c
        lp, done = k.newlabel("L_poll"), k.newlabel("L_polled")
        k.vwait(tok)
        k(f"""v_cmp_ne_u64 vcc, s[{sTAG}:{sTAG+1}], v[{vt}:{vt+1}]
              s_mov_b32 s{sSPIN}, 0
              s_cbranch_vccz {done}""")
        k.label(lp)
        if c.BACKOFF: k(f"s_sleep {c.BACKOFF}")
        k(f"""buffer_load_dwordx2 v[{vt}:{vt+1}], v{vaddr}, s[{sWS}:{sWS+3}], 0 offen sc1
              s_waitcnt vmcnt(0)
              v_cmp_ne_u64 vcc, s[{sTAG}:{sTAG+1}], v[{vt}:{vt+1}]
              s_add_u32 s{sSPIN}, s{sSPIN}, 1
              s_cbranch_vccz {done}
              s_cmp_lt_u32 s{sSPIN}, {c.SPIN}
              s_cbranch_scc1 {lp}""")
        k.label(done)

    def w_addr_code(self, vq, stride, t=12):
        s = f"""v_lshrrev_b32 v{t}, 3, v1
              v_lshrrev_b32 v{t+1}, 5, v1
              v_and_b32 v{t+2}, 3, v{t}
              v_lshl_add_u32 v{t+1}, v{t+1}, 3, v{t+2}
              v_mul_u32_u24 v{t+1}, {stride}, v{t+1}
              v_and_b32 v{t+2}, 6, v{t}
              v_and_b32 v{t+3}, 7, v1
              v_xor_b32 v{t+2}, v{t+2}, v{t+3}
              v_lshl_add_u32 v{vq}, v{t+2}, 4, v{t+1}\n"""
        for qq in range(1, 4):
            h, G = qq >> 1, qq & 1
            s += f"v_add_u32 v{vq+qq}, {(16*G + 4*h)*stride - qq*1024}, v{vq}\n"
        return s

    def w_tr_code(self, t=12):
        s = f"""v_bfe_u32 v{t}, v1, 2, 3
              v_lshrrev_b32 v{t+1}, 5, v1
              v_lshlrev_b32 v{t+1}, 10, v{t+1}
              v_lshl_add_u32 v{t+1}, v{t}, 7, v{t+1}
              v_and_b32 v{t+2}, 3, v1
              v_lshl_add_u32 v{t+1}, v{t+2}, 3, v{t+1}
              v_add_u32 v{t+1}, s{sRING}, v{t+1}
              v_lshrrev_b32 v{t}, 1, v{t}\n"""
        for a in range(4):
            s += f"""s_add_u32 s{sT0}, s{sWAVE}, {a}
                  s_and_b32 s{sT0}, s{sT0}, 3
                  v_xor_b32 v{t+2}, s{sT0}, v{t}
                  v_lshl_add_u32 v{vTR+a}, v{t+2}, 5, v{t+1}\n"""
        return s

    def p2_setup_code(self, t=12):
        c = self.c
        WO = self.LDS_WO
        a, b, d, e = t, t+1, t+2, t+3
        s = f"""s_mul_i32 s{sT0}, s{sIDX}, 37
              s_lshr_b32 s{sT0}, s{sT0}, 8
              s_mul_i32 s{sT0+1}, s{sT0}, 7
              s_sub_u32 s{sDJ}, s{sIDX}, s{sT0+1}
              s_lshl_b32 s{sST}, s{sXCD}, 2
              s_add_u32 s{sST}, s{sST}, s{sT0}
              s_lshl_b32 s{sT0}, s{sT0}, 2
              s_lshr_b32 s{sT0}, {c.S2U:#x}, s{sT0}
              s_and_b32 s{sT0}, s{sT0}, 15
              s_lshl_b32 s{sT0+1}, s{sDJ}, 2
              s_lshr_b32 s{sT0+1}, {c.S2W:#x}, s{sT0+1}
              s_and_b32 s{sT0+1}, s{sT0+1}, 15
              s_add_u32 s{sT0}, s{sT0}, s{sT0+1}
              s_sub_u32 s{sT0+1}, s{sT0}, 14
              s_min_u32 s{sT0}, s{sT0}, s{sT0+1}
              s_mul_i32 s{sW2LO}, s{sWAVE}, {448*4096}
              s_lshl_b32 s{sT0+1}, s{sST}, 7
              s_add_u32 s{sW2LO}, s{sW2LO}, s{sT0+1}
              s_add_u32 s{sW2HI}, s{sW2LO}, {448*4096}
              s_mul_i32 s{sT0+1}, s{sT0}, {32*4096}
              s_add_u32 s{sW2OFF}, s{sW2LO}, s{sT0+1}
              s_mul_i32 s{sULO}, s{sWAVE}, {14*KSU}
              s_lshl_b32 s{sT0+1}, s{sDJ}, {HL+3}
              s_add_u32 s{sULO}, s{sULO}, s{sT0+1}
              s_add_u32 s{sULO}, s{sULO}, {WS_U}
              s_add_u32 s{sUHI}, s{sULO}, {14*KSU}
              s_mul_i32 s{sT0+1}, s{sT0}, {KSU}
              s_add_u32 s{sUOFF}, s{sULO}, s{sT0+1}\n"""
        s += self.w_addr_code(vW2, 4096, t)
        s += frag_off(vUO, t) + f"v_add_u32 v{vUO+1}, {2*FR}, v{vUO}\n"
        s += f"""v_lshlrev_b32 v{vL16}, 4, v1
              v_lshrrev_b32 v{a}, 3, v1
              v_mul_u32_u24 v{b}, 896, v{a}
              v_and_b32 v{d}, 6, v{a}
              v_and_b32 v{e}, 7, v1
              v_xor_b32 v{d}, v{d}, v{e}
              v_lshl_add_u32 v{vWOD}, v{d}, 4, v{b}
              s_mul_i32 s{sWOOFF}, s{sWAVE}, {112*896}
              s_lshl_b32 s{sT0+2}, s{sDJ}, 7
              s_add_u32 s{sWOOFF}, s{sWOOFF}, s{sT0+2}
              s_mul_i32 s{sWOM0}, s{sWAVE}, {14*1024}
              s_add_u32 s{sWOM0}, s{sWOM0}, {WO}
              v_and_b32 v{a}, 15, v1
              v_mul_u32_u24 v{vXO}, 896, v{a}
              v_bfe_u32 v{b}, v1, 4, 1
              v_lshl_add_u32 v{vXO}, v{b}, 5, v{vXO}
              v_lshrrev_b32 v{b}, 5, v1
              v_lshl_add_u32 v{vXO}, v{b}, 4, v{vXO}
              v_lshlrev_b32 v{vB2-1}, 1, v{a}
              s_lshl_b32 s{sT0}, s{sST}, 2
              s_add_u32 s{sT0}, s{sT0}, s{sWAVE}
              s_mul_i32 s{sXOFF}, s{sT0}, {16*896}
              s_add_u32 s{sXOFF}, s{sXOFF}, s{sT0+2}
              s_lshl_b32 s{sB2OFF}, s{sT0}, 5
              s_lshl_b32 s{sOOFF}, s{sT0}, {HL+4}
              s_add_u32 s{sOOFF}, s{sOOFF}, {WS_O}
              s_mul_i32 s{sT0+1}, s{sT0}, 79
              s_lshr_b32 s{sT0+1}, s{sT0+1}, 10
              s_min_u32 s{sT0+1}, s{sT0+1}, 4
              s_max_u32 s{sT0+3}, s{sT0}, 52
              s_sub_u32 s{sT0+3}, s{sT0+3}, 52
              s_mul_i32 s{sT0+3}, s{sT0+3}, 94
              s_lshr_b32 s{sT0+3}, s{sT0+3}, 10
              s_add_u32 s{sT0+3}, s{sT0+3}, s{sT0+1}
              v_min_u32 v{a}, 13, v1
              v_and_b32 v{b}, 1, v{a}
              v_mul_u32_u24 v{b}, 3, v{b}
              s_lshl_b32 s{sT0+1}, s{sDJ}, 2
              v_add_u32 v{b}, s{sT0+1}, v{b}
              v_mul_u32_u24 v{b}, 52, v{b}
              v_lshrrev_b32 v{b}, 8, v{b}
              v_lshrrev_b32 v{a}, 1, v{a}
              s_mul_i32 s{sT0+1}, s{sWAVE}, 7
              v_add_u32 v{a}, s{sT0+1}, v{a}
              v_mad_u32_u24 v{a}, v{a}, 6, v{b}
              v_mul_u32_u24 v{a}, {c.FS}, v{a}
              v_add_u32 v{vUF}, {WS_FU}, v{a}
              v_and_b32 v{a}, 7, v1
              v_lshl_add_u32 v{a}, v{a}, 4, s{sT0+3}
              v_mul_u32_u24 v{a}, {c.FS}, v{a}
              v_add_u32 v{vOFL}, {WS_FO}, v{a}
              v_and_b32 v{a}, 1, v1
              v_mul_u32_u24 v{a}, {O_PAR}, v{a}
              v_lshrrev_b32 v{b}, 4, v1
              {lmap(b, d)}v_lshl_add_u32 v{a}, v{b}, 7, v{a}
              v_bfe_u32 v{b}, v1, 1, 3
              v_lshl_add_u32 v{vOO}, v{b}, 4, v{a}
              v_lshrrev_b32 v{a}, 2, v1
              v_lshlrev_b32 v{b}, 7, v{a}
              v_and_b32 v{d}, 3, v1
              v_lshl_add_u32 v{b}, v{d}, 3, v{b}
              v_add_u32 v{b}, {WO}, v{b}
              v_bfe_u32 v{a}, v1, 3, 2\n"""
        for i in range(4):
            s += f"v_xor_b32 v{d}, {i}, v{a}\nv_lshl_add_u32 v{vWOR+i}, v{d}, 5, v{b}\n"
        return s

    def red_addr_code(self, v, vl16):
        RED = self.LDS_RED
        o = [f"""s_mul_i32 s{sT0}, s{sWAVE}, 3072
              s_add_u32 s{sT0}, s{sT0}, {RED}
              v_add_u32 v{v}, s{sT0}, v{vl16}"""]
        for a in range(1, 4):
            o.append(f"""s_sub_u32 s{sT0}, s{sWAVE}, {a}
                  s_and_b32 s{sT0}, s{sT0}, 3
                  s_mul_i32 s{sT0}, s{sT0}, 3072
                  s_add_u32 s{sT0}, s{sT0}, {RED + (a-1)*1024}
                  v_add_u32 v{v+a}, s{sT0}, v{vl16}""")
        return o

    def reduce_ops(self, t, acc, vred, R, T, then):
        k = self.k
        par = (t & 1) * 12288
        o = []
        for a in range(1, 4):
            o.append([3, 'X', lambda a=a: k.ds(f"ds_write_b128 v{vred}, v[{acc+4*a}:{acc+4*a+3}] offset:{par + (a-1)*1024}", ('rw', t))])
        o.append([self.c.RGAP, 'X', lambda: (k.lwait(('rw', t)), k("s_barrier"))])
        for a in range(3):
            o.append([0, 'D', lambda a=a: k.ds(f"ds_read_b128 v[{R+4*a}:{R+4*a+3}], v{vred+1+a} offset:{par}", ('rr', t))])
        o.append([5, 'S', lambda: k.lwait(('rr', t))])
        for a in range(3):
            for r in range(4):
                o.append([0, 'V', lambda a=a, r=r: (k(f"v_add_f32 v{T+r}, v{(T if a else acc)+r}, v{R+4*a+r}"), then() if a == 2 and r == 3 else None)])
        return o

    def group(self, mf, sc, fl, fb, rd=None, dfirst=False):
        k = self.k
        sc = list(sc)
        for a in range(4):
            k(mf[a])
            for q in (fl, fb):
                if q and q[0][0] > 0: q[0][0] -= 1
            if a == 3: break
            g = Gap()
            left = 3 - a
            xq = [q for q in (fl, fb) if q and q[0][0] == 0 and q[0][1] == 'X']
            if xq and len(sc) <= 3*(left - 1) and not self.scc_open:
                xq[0].pop(0)[2](); continue
            need = max(0, len(sc) - 2*(left - 1)) if left > 1 else len(sc)
            want = max(need, min(1, len(sc)))
            nd = 0
            if rd and dfirst and need <= 0 and len(sc) <= left - 1 + (left > 1):
                while rd(False) and g.take('D'): rd(True)
                if g.nd: want = 0
            for _ in range(want):
                g.take('S'); sc.pop(0)()
            if rd and (dfirst or not any(q and q[0][0] == 0 for q in (fl, fb))):
                while rd(False) and g.take('D'): rd(True)
            for q in (fl, fb):
                while q and q[0][0] == 0 and q[0][1] != 'X' and g.take(q[0][1]): q.pop(0)[2]()
            while sc and g.take('S'): sc.pop(0)()
        assert not sc

    def adv_ops(self, off, lo, hi, step):
        k = self.k
        def cmp_(): k(f"s_cmp_ge_u32 s{off}, s{hi}"); self.scc_open = True
        def sel(): k(f"s_cselect_b32 s{off}, s{lo}, s{off}"); self.scc_open = False
        return [lambda: k(f"s_add_u32 s{off}, s{off}, {step}"), cmp_, sel]

    def q_p2(self):
        k, c = self.k, self.c
        tail = (1 if c.XLATE else 3) + c.WOPRE
        ins = {56 - (c.UPOS - tail): lambda: self.poll_issue(vUF, vPOLL, 'Upoll')} if c.UPOS > tail else None
        self.q_wstream(14, sW2, vW2, sW2OFF, sW2LO, sW2HI, 4096, 'W2', ins)
        ops = [lambda: k.vmem(f"buffer_load_dwordx4 v[{vXD}:{vXD+3}], v{vXO}, s[{sX}:{sX+3}], s{sXOFF} offen", 'x'),
               lambda: k.vmem(f"buffer_load_dwordx4 v[{vXD+4}:{vXD+7}], v{vXO}, s[{sX}:{sX+3}], s{sXOFF} offen offset:64", 'x'),
               lambda: k.vmem(f"buffer_load_ushort v{vB2}, v{vB2-1}, s[{sB2}:{sB2+3}], s{sB2OFF} offen", 'x')]
        if c.XDMA:
            def xd(e):
                assert self.red_free
                k(f"s_lshr_b32 m0, s{sRING}, 1\ns_add_u32 m0, m0, {self.LDS_X + 1024*e}")
                if e: k(f"s_add_u32 s{sB2OFF}, s{sXOFF}, {8*896}")
                k.vmem(f"buffer_load_dwordx4 v{vWOD}, s[{sX}:{sX+3}], s{sB2OFF if e else sXOFF} offen lds", 'x')
            ops = [ops[2], lambda: xd(0), lambda: xd(1)]
        self.xops = ops[:2]
        if c.XLATE: ops = ops[2:]
        ops += [lambda e=e: self.wo_dma(e) for e in range(c.WOPRE)]
        if c.UPOS <= tail: ops.insert(tail - c.UPOS, lambda: self.poll_issue(vUF, vPOLL, 'Upoll'))
        for op in ops: self.q(op)

    def wo_dma(self, e):
        k = self.k
        assert self.red_free
        k(f"s_add_u32 m0, s{sWOM0}, {e*1024}")
        if e: k(f"s_add_u32 s{sWOOFF}, s{sWOOFF}, {8*896}")
        k.vmem(f"buffer_load_dwordx4 v{vWOD}, s[{sWO}:{sWO+3}], s{sWOOFF} offen lds", 'Wo')

    def to_p2(self):
        k, c = self.k, self.c
        while len(self.vq) > 1:
            if len(self.vq) == 19: self.stamp(3, 3)
            if len(self.vq) == 35: self.stamp(2, 3)
            self.tick()
        while len(self.rq) > c.RPEND: self.rq.pop(0)[1]()
        self.tick(reads=0)
        assert not self.rq and not self.vq and c.WOPRE >= 14
        self.stamp(7); self.stamp(4, 3)
        self.poll_check(vUF, vPOLL, 'Upoll')
        k("s_branch L_fin" if self.c.NOP2 else "s_branch L_p2")

    def m1(self):
        k, c = self.k, self.c
        self.bg_reset()
        ACC, STG = 32, 112
        k(f"""s_mul_i32 s{sT0}, s{sIDX}, 43
              s_lshr_b32 s{sT0}, s{sT0}, 8
              s_mul_i32 s{sT0+1}, s{sT0}, 6
              s_sub_u32 s{sJ}, s{sIDX}, s{sT0+1}
              s_lshr_b32 s{sT0+1}, s{sXCD}, 1
              s_mul_i32 s{sT0+1}, s{sT0+1}, 7
              s_and_b32 s{sT0+2}, s{sXCD}, 1
              s_lshl_b32 s{sT0+3}, s{sT0+2}, 2
              s_add_u32 s{sT0+1}, s{sT0+1}, s{sT0+3}
              s_add_u32 s{sFT}, s{sT0+1}, s{sT0}""")
        stag = f"s_lshl_b32 s{sT0+1}, s{sJ}, 2\ns_lshr_b32 s{sT0+1}, {c.S1W:#x}, s{sT0+1}"
        if c.S1V: stag = f"s_lshl_b32 s{sT0+1}, s{sJ}, 3\ns_add_u32 s{sT0+1}, s{sT0+1}, s{sWAVE}\ns_mul_i32 s{sT0+1}, s{sT0+1}, 86\ns_lshr_b32 s{sT0+1}, s{sT0+1}, 8"
        k(f"""s_lshl_b32 s{sT0}, s{sT0}, 2
              s_lshr_b32 s{sT0}, {c.S1H:#x}, s{sT0}
              {stag}
              s_add_u32 s{sT0}, s{sT0}, s{sT0+1}
              s_and_b32 s{sT0}, s{sT0}, 15
              s_lshl_b32 s{sRING}, s{sWAVE}, 12
              s_mul_i32 s{sWLO}, s{sWAVE}, {512*3584}
              s_lshl_b32 s{sT0+1}, s{sFT}, 7
              s_add_u32 s{sWLO}, s{sWLO}, s{sT0+1}
              s_add_u32 s{sWHI}, s{sWLO}, {512*3584}
              s_mul_i32 s{sT0+1}, s{sT0}, {32*3584}
              s_add_u32 s{sWOFF}, s{sWLO}, s{sT0+1}""")
        k(self.w_addr_code(2, 3584))
        vHF = 26
        self.q_wstream(16, sW1, 2, sWOFF, sWLO, sWHI, 3584, 'W1', {64 - c.HPOS: lambda: self.poll_issue(vHF, 28, 'Hpoll')} if c.HPOS else None)
        if not c.HPOS: self.q(lambda: self.poll_issue(vHF, 28, 'Hpoll'))
        nw1 = self.nq
        self.start_x()
        self.stamp(1, 2); self.stamp(4, 5)
        if c.XBAR: k("s_barrier")
        self.tick(c.PRE0, reads=0)
        self.stamp(2, 2)
        k(f"""v_lshrrev_b32 v12, 4, v1
              v_lshlrev_b32 v12, 3, v12
              s_lshl_b32 s{sT0+2}, s{sFT}, 7
              s_lshl_b32 s{sT0+1}, s{sWAVE}, 5
              s_add_u32 s{sT0+2}, s{sT0+2}, s{sT0+1}
              s_mov_b32 s{sB1+2}, {F*2}
              s_mov_b32 s{sB1+3}, 0x20000""")
        k.vmem(f"buffer_load_dwordx2 v[24:25], v12, s[{sB1}:{sB1+3}], s{sT0+2} offen", 'b1')
        self.start_rest()
        k(f"""s_mul_i32 s{sALO}, s{sWAVE}, {16*KS}
              s_mul_i32 s{sT0+1}, s{sJ}, {5*FR}
              s_add_u32 s{sALO}, s{sALO}, s{sT0+1}
              s_add_u32 s{sALO}, s{sALO}, {WS_HT}
              s_add_u32 s{sAHI}, s{sALO}, {16*KS}
              s_mul_i32 s{sT0+1}, s{sT0}, {KS}
              s_add_u32 s{sAOFF}, s{sALO}, s{sT0+1}""")
        k(self.w_tr_code())
        self.ln(sWQKV, weave=lambda: self.tick(c.LNW, reads=0))
        self.stamp(7, 2)
        if c.HDEF:
            nold = 8 * (self.nv // 4)
            for _ in range(c.HLAG):
                self.tick(reads=0)
                for _ in range(4):
                    if 128 - len(self.rq) < nold: self.rq.pop(0)[1]()
        else: self.tick(c.HLAG, reads=4)
        self.stamp(8, 2)
        k.vwait('hst')
        self.stamp(9, 2)
        k("s_barrier")
        self.h_flag(17)
        self.fg(f"""v_lshlrev_b32 v10, 4, v1
              s_mov_b32 s{sG}, -1
              s_nop 0""")
        self.fg(f"""s_mul_i32 s{sT0}, s{sWAVE}, {32*c.FS}
              s_add_u32 s{sT0}, s{sT0}, {WS_FH}
              v_and_b32 v{vHF}, 31, v1
              v_mul_u32_u24 v{vHF}, {c.FS}, v{vHF}
              v_add_u32 v{vHF}, s{sT0}, v{vHF}""")
        self.fg(self.p2_setup_code())
        self.fg(f"v_add_u32 v11, {4*FR}, v{vUO}")
        for l in self.red_addr_code(6, 10): self.fg(l)
        self.fg(f"""v_bfe_u32 v13, v1, 4, 1
              v_lshrrev_b32 v12, 5, v1
              v_bfe_u32 v14, v1, 3, 1
              v_lshl_add_u32 v12, v12, 1, v14
              {lmap(12, 14)}v_and_b32 v14, 7, v1
              v_lshlrev_b32 v14, 4, v14
              v_lshl_add_u32 v12, v12, 7, v14
              v_lshl_add_u32 v20, v13, {HL+1}, v12
              v_lshl_add_u32 v21, v13, 31, v12""")
        c1 = -2.0 * math.sqrt(2.0 / math.pi) * math.log2(math.e)
        self.fg(f"""v_add_u32 v22, {2*FR}, v20
              v_add_u32 v23, {4*FR}, v21
              v_add_u32 v21, {2*FR}, v21
              s_lshl_b32 s0, s{sFT}, 1
              s_lshr_b32 s{sT0+1}, s{sWAVE}, 1
              s_add_u32 s0, s0, s{sT0+1}
              s_mul_i32 s0, s0, {KSU}
              s_mul_i32 s{sT0+1}, s{sJ}, {5*FR}
              s_add_u32 s0, s0, s{sT0+1}
              s_and_b32 s{sT0+1}, s{sWAVE}, 1
              s_lshl_b32 s{sT0+1}, s{sT0+1}, {HL}
              s_add_u32 s0, s0, s{sT0+1}
              s_add_u32 s0, s0, {WS_U}
              v_mov_b32 v30, {f2u(c1):#x}
              s_mov_b32 s1, {f2u(c1*0.044715):#x}""")
        assert self.nv < nw1 - c.HPOS - 1
        self.tick_until(nw1 - 1)
        k(f"s_cmp_eq_u32 s{sJ}, 5\ns_cbranch_scc1 L_m3")
        st = (list(k.vm), list(k.lg), list(self.vq), list(self.rq), self.nv, self.nq, set(self.reads_done))
        self.m1_rest(5, nw1, vHF)
        k.label("L_m3")
        k.vm, k.lg, self.vq, self.rq, self.nv, self.nq, self.reads_done = st
        self.m1_rest(3, nw1, vHF)

    def m1_rest(self, NL, nw1, vHF):
        k, c = self.k, self.c
        ACC, STG = 32, 112
        RED = self.LDS_RED
        NF = 16*NL
        def hload(n):
            t, i = divmod(n, 16)
            b = STG + 4*(n % c.PD1)
            va, off = (vUO + (t >> 1), (t & 1)*FR) if t < 4 else (11, 0)
            o = f" offset:{off}" if off else ""
            k.vmem(f"buffer_load_dwordx4 v[{b}:{b+3}], v{va}, s[{sWS}:{sWS+3}], s{sAOFF} offen{o} sc1", ('H', n))
            if n < c.PD1 - 1: k(hadv)
        hadv = f"s_add_u32 s{sAOFF}, s{sAOFF}, {KS}\ns_cmp_ge_u32 s{sAOFF}, s{sAHI}\ns_cselect_b32 s{sAOFF}, s{sALO}, s{sAOFF}"
        for n in range(NF): self.q(lambda n=n: hload(n))
        self.tick_until(nw1)
        if NL == 3 and c.PFJ:
            k(f"""v_lshrrev_b32 v12, 2, v1
                  v_lshlrev_b32 v12, 12, v12
                  v_and_b32 v13, 3, v1
                  v_lshl_add_u32 v12, v13, 7, v12
                  s_lshl_b32 s{sT0}, s{sXCD}, 9
                  s_mul_i32 s{sT0+1}, s{sWAVE}, {448*4096}
                  s_add_u32 s{sT0}, s{sT0}, s{sT0+1}
                  s_mul_i32 s{sT0+1}, s{sIDX}, 43
                  s_lshr_b32 s{sT0+1}, s{sT0+1}, 8
                  s_lshl_b32 s{sT0+1}, s{sT0+1}, 16
                  s_add_u32 s{sT0}, s{sT0}, s{sT0+1}
                  s_and_b32 s{sT0+1}, s{sXCD}, 1
                  s_sub_u32 s{sT0+1}, 4, s{sT0+1}
                  s_lshl_b32 s{sT0+1}, s{sT0+1}, 16""")
            for e in range(c.PFJ):
                k.vmem(f"buffer_load_dword v27, v12, s[{sW2}:{sW2+3}], s{sT0} offen", 'pf')
                k(f"s_add_u32 s{sT0}, s{sT0}, s{sT0+1}")
        self.stamp(3)
        self.poll_check(vHF, 28, 'Hpoll')
        self.stamp(4)
        k.vwait('b1')
        k(f"""v_lshlrev_b32 v12, 16, v24
              v_and_b32 v13, 0xffff0000, v24
              v_lshlrev_b32 v14, 16, v25
              v_and_b32 v15, 0xffff0000, v25""")
        self.tick(c.PD1)
        self.drain_reads()
        self.red_free = True
        self.q_p2()
        R, E, PK, TS = 64, 76, 80, 92
        def epi(t):
            return self.reduce_ops(t, ACC + 16*(t & 1), 6, R, TS + 4*(t & 1), lambda: fb.extend(act(t)))
        def act(t):
            d = TS + 4*(t & 1)
            o = []
            pk = PK + 4*(t >> 1)
            L = []
            L += [f"v_mul_f32 v{E+r}, v{d+r}, v{d+r}" for r in range(4)]
            L += [f"v_fma_f32 v{E+r}, v{E+r}, s1, v30" for r in range(4)]
            L += [f"v_mul_f32 v{E+r}, v{E+r}, v{d+r}" for r in range(4)]
            L += [f"v_exp_f32 v{E+r}, v{E+r}" for r in range(4)]
            L += [f"v_add_f32 v{E+r}, 1.0, v{E+r}" for r in range(4)]
            L += [f"v_rcp_f32 v{E+r}, v{E+r}" for r in range(4)]
            L += [f"v_mul_f32 v{E+r}, v{E+r}, v{d+r}" for r in range(4)]
            L += [f"v_cvt_pk_bf16_f32 v{pk+2*(t&1)+h}, v{E+2*h}, v{E+2*h+1}" for h in range(2)]
            o += [[0, kind_of(l), lambda l=l: k(l)] for l in L]
            if t & 1 or t == NL - 1:
                va, off = 19 + t, ""
                o.append([1, 'T', lambda: k(f"v_permlane16_swap_b32 v{pk}, v{pk+2}")])
                o.append([0, 'T', lambda: k(f"v_permlane16_swap_b32 v{pk+1}, v{pk+3}")])
                st = lambda: k.vmem(f"buffer_store_dwordx4 v[{pk}:{pk+3}], v{va}, s[{sWS}:{sWS+3}], s0 offen{off} sc1", 'ust')
                if c.UMID or t == NL - 1: o.append([1, 'X', st])
                else: held.append(st)
            return o
        fl = []; fb = []; held = []
        for n in range(NF):
            t, i = divmod(n, 16)
            b = STG + 4*(n % c.PD1)
            if i == 0:
                assert not fl, len(fl)
                if t: fl = epi(t - 1)
            k.lwait(('W1', i))
            k.vwait(('H', n))
            mf = []
            for a in (1, 2, 3, 0):
                d = ACC + 16*(t & 1) + 4*a
                cin = ("v[12:15]" if a == 0 else "0") if i == 0 else f"v[{d}:{d+3}]"
                mf.append(f"v_mfma_f32_16x16x32_bf16 v[{d}:{d+3}], a[{16*i+4*a}:{16*i+4*a+3}], v[{b}:{b+3}], {cin}")
            sc = self.adv_ops(sAOFF, sALO, sAHI, KS) if n + c.PD1 < NF else []
            if n + 1 < NF: sc.append(lambda: k.vwait(('H', n + 1)))
            self.group(mf, sc, fl, fb)
            if n + c.PD1 == NF: k.lwait(('W1', 15))
            self.tick(reads=0)
        assert not fl
        self.stamp(5); self.stamp(5, 3)
        self.budget = 0
        cnt = 0
        old, fb[:] = list(fb), []
        for gap, _, op in epi(NL - 1):
            if gap >= 3:
                self.tick()
                for _ in range(6):
                    if old: old.pop(0)[2]()
                if not old:
                    while held: held.pop(0)()
            op()
        assert not old and not held
        for gap, _, op in fb:
            op()
            cnt += 1
            if cnt % c.E1T == 0: self.tick()
        self.stamp(6, 3)
        self.tick(min(c.ULAG, len(self.vq) - c.UPOS - 1))
        self.stamp(7, 3)
        k.vwait('ust')
        self.stamp(8, 3)
        k("s_barrier")
        self.stamp(9, 3)
        self.flag(f"""s_mul_i32 s{sT0}, s{sFT}, 6
              s_add_u32 s{sT0}, s{sT0}, s{sJ}
              s_mul_i32 s{sT0}, s{sT0}, {c.FS}
              s_add_u32 s{sT0}, s{sT0}, {WS_FU}""", 17)
        self.stamp(6)
        self.to_p2()

    def p2(self):
        k, c = self.k, self.c
        k.label("L_p2")
        self.bg_reset()
        k.vm = ['Wo']
        k.lg = ['w2r']
        self.red_free = True
        ACC, SAC, G, R, E, STG, WV = 32, 64, 80, 96, 108, 112, 160
        assert STG + 4*c.PD2 <= WV
        self.stamp(8)
        NF = 56
        uadv = f"s_add_u32 s{sUOFF}, s{sUOFF}, {KSU}\ns_cmp_ge_u32 s{sUOFF}, s{sUHI}\ns_cselect_b32 s{sUOFF}, s{sULO}, s{sUOFF}"
        def uload(n):
            t, i = divmod(n, 14)
            b = STG + 4*(n % c.PD2)
            o = f" offset:{FR}" if t & 1 else ""
            if n == NF - c.OPOS: self.poll_issue(vOFL, vPOLL, 'Opoll')
            k.vmem(f"buffer_load_dwordx4 v[{b}:{b+3}], v{vUO + (t >> 1)}, s[{sWS}:{sWS+3}], s{sUOFF} offen{o} sc1", ('U', n))
            if n < c.PD2 - 1: k(uadv)
        def oload(hd):
            if hd == 0: self.poll_check(vOFL, vPOLL, 'Opoll')
            b = STG + 4*((NF + hd) % c.PD2)
            o = f" offset:{(hd&3) << HL}" if hd & 3 else ""
            if hd and hd & 3 == 0: k(f"s_add_u32 s{sOOFF}, s{sOOFF}, {4 << HL}")
            k.vmem(f"buffer_load_dwordx4 v[{b}:{b+3}], v{vOO}, s[{sWS}:{sWS+3}], s{sOOFF} offen{o} sc1", ('U', NF + hd))
        for n in range(NF): self.q(lambda n=n: uload(n))
        for hd in range(16): self.q(lambda hd=hd: oload(hd))
        self.tick(c.PD2)
        self.drain_reads()
        k.vwait('x')
        if c.WOT < 0:
            if c.WOPRE == 14:
                k(f"v_mov_b32 v2, 0\nv_mov_b32 v3, 0\nv_lshlrev_b32 v4, 3, v1\nv_add_u32 v4, {self.LDS_WO + 448*128}, v4")
                k.ds("ds_write_b64 v4, v[2:3]")
                k.lwait_all()
            k.vwait('Wo')
            k(f"s_barrier\ns_cmp_eq_u32 s{sG}, -1\ns_cbranch_scc1 L_noflag")
        else: k(f"s_cmp_eq_u32 s{sG}, -1\ns_cbranch_scc1 L_noflag\ns_barrier")
        self.o_flag(17)
        k.label("L_noflag")
        k.lwait('w2r')
        woq = []
        wo_ok = [None] if c.WOT >= 0 else []
        XF = 2
        for r in range(4): k(f"v_lshlrev_b32 v{20+r}, 16, v{vB2}")
        side = [f"v_permlane16_swap_b32 v{vXD+p}, v{vXD+p+2}" for p in (0, 1, 4, 5)]
        if c.XDMA:
            side = []
            k(f"""v_and_b32 v2, 15, v1
                  v_lshlrev_b32 v3, 7, v2
                  v_lshrrev_b32 v4, 4, v1
                  v_lshl_add_u32 v3, v4, 3, v3
                  s_lshr_b32 s{sT0}, s{sRING}, 1
                  s_add_u32 s{sT0}, s{sT0}, {self.LDS_X}
                  v_add_u32 v3, s{sT0}, v3
                  v_bfe_u32 v2, v1, 1, 2""")
            for t in range(4):
                k(f"v_xor_b32 v4, {t}, v2\nv_lshl_add_u32 v4, v4, 5, v3")
                k.ds(f"ds_read_b64 v[{vXD+2*t}:{vXD+2*t+1}], v4", 'xr')
        for i in range(8):
            side += [f"v_lshlrev_b32 v{XF+2*i}, 16, v{vXD+i}", f"v_and_b32 v{XF+2*i+1}, 0xffff0000, v{vXD+i}"]
        xside = [[0, kind_of(l), lambda l=l: k(l)] for l in side]
        fl = []; fb = [[0, kind_of(l), lambda l=l: k(l)] for l in self.red_addr_code(24, vL16)]
        if c.XDMA: fb = fb + [[0, 'S', lambda: k.lwait('xr')]] + xside
        elif not c.XLATE: fb = xside + fb
        def wreg(hd, o, n):
            if hd < 2: return ar(224 + 16*hd + o, n)
            if hd < 6: return vr(WV + 16*(hd - 2) + o, n)
            return ar(16*(hd - 6) + o, n)
        wr = []
        for hd in range(16):
            for t in range(4):
                for hh in range(2):
                    wr.append((0 if hd < 6 else 42 + hd - 6 + 1, f"ds_read_b64_tr_b16 {wreg(hd, 4*t + 2*hh, 2)}, v{vWOR + (t ^ (2*(hd & 1)))} offset:{(28*hd + 16*hh)*128}", ('wo', hd)))
        nl2e = f"{f2u(-math.log2(math.e)):#x}"
        def epi(t):
            if t == 0: assert not fb
            o = self.reduce_ops(t, ACC + 16*(t & 1), 24, R, G + 4*t, lambda: fb.extend(act(t)))
            if t == c.WOT:
                assert not woq
                bar = o[3][2]
                o[3][2] = lambda: (k.vwait('Wo'), bar(), wo_ok.pop())
            return o
        def act(t):
            d = G + 4*t
            L = []
            L += [f"v_mul_f32 v{E+r}, {nl2e}, v{d+r}" for r in range(4)]
            L += [f"v_exp_f32 v{E+r}, v{E+r}" for r in range(4)]
            L += [f"v_add_f32 v{E+r}, 1.0, v{E+r}" for r in range(4)]
            L += [f"v_rcp_f32 v{E+r}, v{E+r}" for r in range(4)]
            L += [f"v_mul_f32 v{G+4*t+r}, v{E+r}, v{d+r}" for r in range(4)]
            return [[0, kind_of(l), lambda l=l: k(l)] for l in L]
        for n in range(NF + 16):
            t, i = divmod(n, 14)
            b = STG + 4*(n % c.PD2)
            if i == 0 and 1 <= t <= 4:
                assert not fl, len(fl)
                fl = epi(t - 1)
            if n == NF: self.stamp(9)
            if t == 0: k.lwait(('W2', i))
            k.vwait(('U', n))
            if n >= NF:
                assert not any(w[2] == ('wo', n - NF) for w in wr)
                k.lwait(('wo', n - NF))
            mf = []
            for a in (1, 2, 3, 0):
                if n < NF:
                    d = ACC + 16*(t & 1) + 4*a
                    cin = ("v[20:23]" if a == 0 else "0") if i == 0 else f"v[{d}:{d+3}]"
                    mf.append(f"v_mfma_f32_16x16x32_bf16 v[{d}:{d+3}], v[{b}:{b+3}], a[{16*i+4*a}:{16*i+4*a+3}], {cin}")
                else:
                    tt = (a - 1) & 3
                    d = SAC + 4*tt
                    cin = "0" if n == NF else f"v[{d}:{d+3}]"
                    mf.append(f"v_mfma_f32_16x16x32_bf16 v[{d}:{d+3}], {wreg(n - NF, 4*tt, 4)}, v[{b}:{b+3}], {cin}")
            sc = self.adv_ops(sUOFF, sULO, sUHI, KSU) if n + c.PD2 < NF else []
            if n + 1 < NF + 16: sc.append(lambda: k.vwait(('U', n + 1)))
            quota = [c.WRQ]
            def rd(do):
                if not (wr and not wo_ok and wr[0][0] <= n and quota[0]): return False
                if do:
                    w = wr.pop(0); k.ds(w[1], w[2]); quota[0] -= 1
                return True
            self.group(mf, sc, fl, fb, rd, n >= c.WLATE)
            if c.XLATE and n in (1, 3): self.xops[n >> 1]()
            if c.XLATE and n == 4 + c.PD2:
                assert 'x' not in k.vm
                fb[:0] = xside
            if woq and n >= c.WO0: self.wo_dma(woq.pop(0))
            if self.vq: self.tick()
            else:
                quota[0] = 2
                while rd(True): pass
        assert not wr
        self.left = len(fl) + len(fb)
        while fl: fl.pop(0)[2]()
        while fb: fb.pop(0)[2]()
        for t in range(4):
            d = G + 4*t; s_ = SAC + 4*t; x = XF + 4*t
            for h in (0, 2):
                k(f"v_pk_fma_f32 v[{d+h}:{d+h+1}], v[{d+h}:{d+h+1}], v[{s_+h}:{s_+h+1}], v[{x+h}:{x+h+1}]")
            k(f"v_cvt_pk_bf16_f32 v{vXD+2*t}, v{d}, v{d+1}\nv_cvt_pk_bf16_f32 v{vXD+1+2*t}, v{d+2}, v{d+3}")
            if t & 1:
                p = vXD + 4*(t >> 1)
                k(f"v_permlane16_swap_b32 v{p}, v{p+2}\nv_permlane16_swap_b32 v{p+1}, v{p+3}")
                o = " offset:64" if t == 3 else ""
                k.vmem(f"buffer_store_dwordx4 v[{p}:{p+3}], v{vXO}, s[{sOUT}:{sOUT+3}], s{sXOFF} offen{o}{c.OAUX}", 'out')
        self.stamp(8, 4)

    def o_flag(self, vt):
        self.flag(f"""s_lshl_b32 s{sT0}, s{sG}, 1
              s_add_u32 s{sT0}, s{sT0}, s{sPAR}
              s_lshl_b32 s{sT0}, s{sT0}, 4
              s_add_u32 s{sT0}, s{sT0}, s{sBLK}
              s_mul_i32 s{sT0}, s{sT0}, {self.c.FS}
              s_add_u32 s{sT0}, s{sT0}, {WS_FO}""", vt)

    def attn(self, NT, duty):
        k, c = self.k, self.c
        self.bg_reset()
        k.lg = []
        if c.SKIPA:
            self.start_x(); self.start_rest(); self.ln(sW1)
            k(f"s_lshl_b32 s{sRING}, s{sWAVE}, 12")
            if duty: k(self.w_tr_code()); k(self.p2_setup_code())
            k.vwait('hst'); k("s_barrier"); self.h_flag(17); self.o_flag(21)
            if duty:
                k("s_sleep 127\ns_sleep 30")
                self.red_free = True; self.q_p2(); self.to_p2()
            else: k("s_branch L_fin")
            return
        WSLOT, NW = 24576, 4
        XB = NW * WSLOT
        XSLOT, NX = NT * 2048, 3
        nx = 2*NT
        nxe = (nx + 3) // 4
        nxmin = nx // 4
        sWO0, sWO1, sXO, sWM, sXM, sOCT = sWOFF, sWLO, sWHI, sAOFF, sALO, sAHI
        sXE = 4
        vW, vX, vXR, vWR = 2, 3, 8, 30
        Q, K = 40, 40 + 8*NT
        V0 = K + 8*NT + 4
        V1 = V0 + 4*NT + 4
        T0 = V1 + 4*NT
        RQ = lambda t: T0 + 2*t
        CSQ = T0 + 2*NT
        MC, MC0 = CSQ + 8, CSQ + 12
        assert MC0 + 4 <= (224 if duty else 256)
        ONES, AP = 20, 10
        k(f"""s_mul_i32 s{sT0}, s{sBLK}, {c.SAB}
              s_mul_i32 s{sT0+1}, s{sPAR if c.AMAP == 1 else sG}, {c.SAG}
              s_add_u32 s{sT0}, s{sT0}, s{sT0+1}
              s_mul_i32 s{sT0+1}, s{sT0}, 147
              s_lshr_b32 s{sT0+1}, s{sT0+1}, 10
              s_mul_i32 s{sT0+1}, s{sT0+1}, 7
              s_sub_u32 s{sT0}, s{sT0}, s{sT0+1}
              s_lshl_b32 s{sXO}, s{sT0}, 7
              s_mul_i32 s{sWO0}, s{sT0}, {64*2688}
              s_add_u32 s{sWO1}, s{sWO0}, {4*2688}""")
        k(f"""s_and_b32 s{sT0+2}, s{sWAVE}, 1
              s_lshl_b32 s{sT0}, s{sT0+2}, 3
              v_subrev_u32 v12, s{sT0}, v1
              v_mul_u32_u24 v13, 147, v12
              v_lshrrev_b32 v13, 11, v13
              v_mul_u32_u24 v14, 14, v13
              v_sub_u32 v14, v12, v14
              s_lshl_b32 s{sT0+3}, s{sWAVE}, 3
              v_add_u32 v13, s{sT0+3}, v13
              v_mul_u32_u24 v13, 2688, v13
              v_lshl_add_u32 v13, v14, 4, v13
              s_mul_i32 s{sT0}, s{sG}, 224
              v_cmp_gt_u32 s[6:7], 56, v12
              v_add_u32 v13, s{sT0}, v13
              v_bfrev_b32 v14, 1
              s_lshl_b32 s{sWM}, s{sWAVE}, 10
              s_add_u32 s{sXM}, s{sWM}, {XB}
              v_cndmask_b32 v{vW}, v14, v13, s[6:7]""")
        def wdma(i):
            ops = []
            slot = (i + 2) % NW
            for sec in range(3):
                for h in range(2):
                    pre = f"s_add_u32 m0, s{sWM}, {slot*WSLOT + (2*sec+h)*4096 - sec*896}\n"
                    if sec == 0 and h == 0 and i and not c.NOADV:
                        pre += f"s_add_u32 s{sWO0}, s{sWO0}, {32*2688}\n"
                        if i % 2 == 0: pre += f"s_cmp_ge_u32 s{sWO0}, {448*2688}\ns_cselect_b32 s{sWO0}, 0, s{sWO0}\n"
                    if sec == 0 and h == 1 and i:
                        pre += f"s_add_u32 s{sWO1}, s{sWO0}, {4*2688}\n"
                    def op(sec=sec, h=h):
                        if c.NOLD and i >= 2: return
                        o = f" offset:{sec*896}" if sec else ""
                        k.vmem(f"buffer_load_dwordx4 v{vW}, s[{sWQKV}:{sWQKV+3}], s{sWO1 if h else sWO0} offen{o}{c.QAUX} lds", ('W', i))
                    ops.append((max(i - NW, -1), i, pre, op))
            return ops
        def xdma(ch):
            ops = []
            slot = ch % NX
            first = -1 if ch < NX else 2*(ch - NX) + 1
            for e in reversed(range(nxe)):
                pre = f"s_add_u32 m0, s{sXM}, {slot*XSLOT + e*4096}\n"
                if e == nxe - 1 and ch and not c.NOADV:
                    pre += f"s_add_u32 s{sXO}, s{sXO}, 128\ns_cmp_ge_u32 s{sXO}, 896\ns_cselect_b32 s{sXO}, 0, s{sXO}\n"
                def op(e=e):
                    if (c.NOLD or c.NOX) and ch >= 1: return
                    t = f"buffer_load_dwordx4 v{vX+e}, s[{sX}:{sX+3}], s{sXO} offen{c.XAUX} lds"
                    if e >= nxmin:
                        l = k.newlabel("L_xs")
                        k(f"s_cmp_ge_u32 s{sWAVE}, {nx - 4*nxmin}\ns_cbranch_scc1 {l}")
                        k(t); k.label(l)
                    elif e == 0:
                        k(f"s_mov_b64 exec, s[{sXE}:{sXE+1}]")
                        k.vmem(t, ('X', ch))
                        k("s_mov_b64 exec, -1")
                    else:
                        k.vmem(t, ('X', ch))
                ops.append((first, 2*ch, pre, op))
            return ops
        dq = wdma(0) + xdma(0) + wdma(1)
        for ch in range(1, 7):
            dq += xdma(ch) + wdma(2*ch) + wdma(2*ch + 1)
        def pop(n=1):
            for _ in range(n):
                e = dq.pop(0); k(e[2]); e[3]()
        self.start_x(False)
        pop(min(6, c.APRE))
        k(f"""s_lshl_b32 s{sT0}, s{sOCT}, 3
              s_add_u32 s{sT0}, s{sT0}, s{sT0+3}
              s_sub_u32 s{sT0}, s{sT0}, 8
              v_lshrrev_b32 v12, 3, v1
              v_add_u32 v13, s{sT0}, v12
              s_lshl_b32 s{sT0+1}, s{sT0+2}, 2
              v_lshrrev_b32 v12, 1, v12
              v_add_u32 v12, s{sT0+1}, v12
              v_and_b32 v14, 7, v1
              v_xor_b32 v12, v12, v14
              v_lshlrev_b32 v12, 4, v12
              s_mul_i32 s{sT0+1}, s{sPAR}, 896
              v_add_u32 v12, s{sT0+1}, v12
              s_movk_i32 s{sT0+2}, 1023
              s_movk_i32 s{sT0+3}, 1792
              s_cmp_eq_u32 s{sWAVE}, 0
              s_cselect_b32 s{sXE}, 0xffffff00, -1
              s_mov_b32 s{sXE+1}, -1""")
        for e in range(nxe):
            k(f"""v_add_u32 v14, {32*e}, v13
                  v_med3_i32 v14, v14, 0, s{sT0+2}
                  v_mad_u32_u24 v{vX+e}, v14, s{sT0+3}, v12""")
        pop(max(0, c.APRE - 6))
        self.start_rest()
        k(f"""v_mov_b32 v{ONES}, 0x3f803f80
              v_and_b32 v13, 31, v0
              v_lshlrev_b32 v13, 2, v13
              v_add_u32 v13, {XB}, v13""")
        for sl in range(NX):
            k.ds(f"ds_write_b32 v13, v{ONES} offset:{sl*XSLOT}")
        k(f"""v_and_b32 v12, 15, v1
              v_lshrrev_b32 v13, 4, v1
              v_lshrrev_b32 v14, 1, v12
              v_xor_b32 v14, v14, v13
              v_lshlrev_b32 v14, 4, v14
              v_lshl_add_u32 v14, v12, 7, v14
              v_add_u32 v{vXR}, {XB}, v14
              v_xor_b32 v{vXR+1}, 64, v{vXR}
              v_lshlrev_b32 v14, 10, v13
              v_and_b32 v15, 1, v13
              v_xor_b32 v16, 1, v15
              v_mul_u32_u24 v16, 896, v16
              v_add_u32 v16, v14, v16
              v_lshl_add_u32 v14, v15, 7, v14
              v_bfe_u32 v15, v1, 2, 2
              v_mul_u32_u24 v15, 224, v15
              v_add_u32 v14, v14, v15
              v_and_b32 v15, 3, v1
              v_lshl_add_u32 v14, v15, 3, v14
              s_mul_i32 s{sT0}, s{sWAVE}, 56
              v_cmp_eq_u32 s[6:7], 3, v15
              v_add_u32 v{vWR}, s{sT0}, v14
              v_add_u32 v{vWR+1}, {2*WSLOT}, v{vWR}
              v_add_u32 v14, 32, v{vWR}
              v_cndmask_b32 v{vWR+2}, v14, v16, s[6:7]
              v_add_u32 v{vWR+3}, {2*WSLOT}, v{vWR+2}""")
        FB = 4*NT + 24
        def fx(i, t): return 256 - 2*FB + (i & 1)*FB + 4*t
        def fw(i, sec, a): return 256 - 2*FB + (i & 1)*FB + 4*NT + 8*sec + 4*a
        def reads(i):
            ops = []
            ws = (i + 2) % NW; xs = (i >> 1) % NX
            b = fx(i, 0)
            xr = lambda t: f"ds_read_b128 a[{fx(i,t)}:{fx(i,t)+3}], v{vXR + (i & 1)} offset:{xs*XSLOT + t*2048}"
            ops.append(xr(0))
            for sec in range(3):
                for a in range(2):
                    for h in range(2):
                        b = fw(i, sec, a) + 2*h
                        ops.append(f"ds_read_b64_tr_b16 a[{b}:{b+1}], v{vWR + 2*a + (ws >> 1)} offset:{(ws & 1)*WSLOT + (2*sec+h)*4096}")
            for t in range(1, NT): ops.append(xr(t))
            return ops
        def mfmas(i):
            ops = []
            for t in range(NT):
                x = f"a[{fx(i,t)}:{fx(i,t)+3}]"
                for sec in range(3):
                    for a in range(2):
                        w = f"a[{fw(i,sec,a)}:{fw(i,sec,a)+3}]"
                        d = (Q + 8*t + 4*a, K + 8*t + 4*a, (V1 if a else V0) + 4*t)[sec]
                        cin = "0" if i == 0 else f"v[{d}:{d+3}]"
                        A, B = (x, w) if sec == 2 else (w, x)
                        ops.append(f"v_mfma_f32_16x16x32_bf16 v[{d}:{d+3}], {A}, {B}, {cin}")
            return ops
        SB = self.LDS_LN
        side = f"""s_lshl_b32 s{sT0}, s{sOCT}, 1
              s_sub_u32 s{sT0}, s{sT0}, 2
              v_and_b32 v12, 31, v1
              v_min_u32 v12, {4*NT-1}, v12
              v_add_u32 v12, s{sT0}, v12
              s_movk_i32 s{sT0+1}, 255
              v_med3_i32 v12, v12, 0, s{sT0+1}
              v_lshrrev_b32 v13, 1, v12
              v_mul_u32_u24 v13, {c.FS}, v13
              v_add_u32 v24, {WS_FH}, v13
              v_lshrrev_b32 v13, 5, v1
              v_lshlrev_b32 v13, 13, v13
              v_lshl_add_u32 v25, v12, 4, v13
              s_lshl_b32 s0, s{sPAR}, 12
              s_add_u32 s0, s0, {WS_STATS}
              s_lshl_b32 s{sT0}, s{sWAVE}, 10
              s_add_u32 s{sT0}, s{sT0}, {SB}
              v_lshl_add_u32 v26, v1, 4, s{sT0}
              v_and_b32 v12, 15, v1
              v_lshl_add_u32 v34, v12, 2, s{sT0}
              v_lshrrev_b32 v13, 4, v1
              v_lshl_add_u32 v35, v13, 4, s{sT0}
              v_mov_b32 v{ONES+1}, v{ONES}
              v_mov_b32 v{ONES+2}, v{ONES}
              v_mov_b32 v{ONES+3}, v{ONES}
              v_mov_b32 v{V0-2}, 0
              v_mov_b32 v{V0-1}, 0
              v_mov_b32 v{V1-2}, 0
              v_mov_b32 v{V1-1}, 0
              s_lshl_b32 s{sRING}, s{sWAVE}, 12\n"""
        if duty: side += self.w_tr_code() + self.p2_setup_code()
        pfo = c.PFJ if c.PFO < 0 else c.PFO
        side += f"""s_and_b32 s{sT0}, s{sXCD}, 1
              s_mul_i32 s{sT0+1}, s{sT0}, 6\n"""
        if duty:
            side += f"""s_add_u32 s{sT0+5}, s{sT0+1}, 4
              s_add_u32 s{sT0+4}, s{sIDX}, s{sT0+1}
              s_sub_u32 s{sT0+4}, s{sT0+4}, 24
              s_sub_u32 s{sT0}, 4, s{sT0}
              s_mul_i32 s{sT0}, s{sT0}, {pfo}
              s_add_u32 s{sT0+4}, s{sT0+4}, s{sT0}\n"""
        else:
            side += f"""s_add_u32 s{sT0+4}, s{sT0+1}, 4
              s_mul_i32 s{sT0+4}, s{sT0+4}, {c.PFD}
              s_sub_u32 s{sT0+1}, 4, s{sT0}
              s_mul_i32 s{sT0+1}, s{sT0+1}, {pfo}
              s_add_u32 s{sT0+4}, s{sT0+4}, s{sT0+1}
              s_and_b32 s{sT0+1}, s{sIDX}, 3
              s_add_u32 s{sT0+4}, s{sT0+4}, s{sT0+1}
              s_mov_b32 s{sT0+5}, 4
              s_lshl_b32 s{sT0+1}, s{sT0+1}, 2
              s_add_u32 s{sT0+1}, s{sT0+1}, s{sWAVE}
              s_lshl_b32 s{sT0+1}, s{sT0+1}, 13
              v_lshl_add_u32 v36, v1, 7, s{sT0+1}
              s_and_b32 s{sT0+1}, s{sIDX}, 3
              s_lshl_b32 s{sT0+1}, s{sT0+1}, 3
              s_add_u32 s{sT0+1}, s{sT0+1}, s{sXCD}
              s_lshl_b32 s{sT0}, s{sWAVE}, 5
              s_add_u32 s{sT0+1}, s{sT0+1}, s{sT0}
              s_lshl_b32 s{sT0+1}, s{sT0+1}, 13
              v_lshl_add_u32 v{MC0+9}, v1, 7, s{sT0+1}
              v_mov_b32 v{MC0+8}, v36\n"""
        side += f"""v_lshrrev_b32 v12, 2, v1
              v_lshlrev_b32 v12, 12, v12
              v_and_b32 v13, 3, v1
              v_lshl_add_u32 v12, v13, 7, v12
              s_lshl_b32 s{sT0}, s{sXCD}, 9
              s_mul_i32 s{sT0+1}, s{sWAVE}, {448*4096}
              s_add_u32 s{sT0}, s{sT0}, s{sT0+1}
              v_add_u32 v38, s{sT0}, v12\n"""
        def pf_w2():
            k(f"""s_lshl_b32 s{sT0}, s{sT0+4}, 16
                  s_cmp_ge_u32 s{sT0+4}, 28
                  s_cselect_b32 s{sT0}, 0x40000000, s{sT0}
                  s_add_u32 s{sT0+4}, s{sT0+4}, s{sT0+5}""")
            k.vmem(f"buffer_load_dword v39, v38, s[{sW2}:{sW2+3}], s{sT0} offen", 'pf')
        def pf_wo(e):
            k(f"s_mov_b32 s{sT0}, {e*16*8192}")
            k.vmem(f"buffer_load_dword v39, v{MC0+8}, s[{sWO}:{sWO+3}], s{sT0} offen", 'pf')
        pfq = []
        if c.PFI >= 0:
            if duty: pfq = [pf_w2] * c.PFD
            else:
                nw2 = max(7 - c.PFD - pfo, -(-(28 - 3*pfo - 10*c.PFD) // 4))
                pfq = [lambda: (k.vmem(f"buffer_load_dword v39, v36, s[{sB2}:{sB2+3}], 0 offen", 'pf'), pf_w2())]
                pfq += [pf_w2] * (nw2 - 1)
                if c.PFWO == 2: pfq += [lambda: (pf_wo(0), pf_wo(3)), lambda: pf_wo(1), lambda: pf_wo(2)]
        SEL = [6, 46, 48, 50]
        side += f"""v_lshrrev_b32 v12, 4, v1
              v_lshlrev_b32 v12, 2, v12
              v_and_b32 v13, 15, v1
              v_sub_u32 v12, v12, v13
              v_mov_b32 v14, 0xff800000
              s_min_u32 s{sT0}, s{sBLK}, 1
              s_sub_u32 s{sT0}, s{sT0}, 1
              s_mov_b32 s{sT0+1}, 0\n"""
        for r in range(4):
            side += f"""v_add_u32 v13, {r+7}, v12
                  v_cmp_gt_u32 s[{sT0+2}:{sT0+3}], 8, v13
                  v_cmp_lt_i32 s[{SEL[r]}:{SEL[r]+1}], 15, v13
                  v_cndmask_b32 v{MC+r}, v14, 0, s[{sT0+2}:{sT0+3}]
                  v_cndmask_b32 v{MC0+r}, v{MC+r}, v14, s[{sT0}:{sT0+1}]\n"""
        side += "v_mov_b32 v14, 0xffff\nv_mov_b32 v15, 0xffff0000\n"
        for h in range(2):
            side += f"""v_cndmask_b32 v{AP+h}, 0, v14, s[{SEL[2*h]}:{SEL[2*h]+1}]
                  v_cndmask_b32 v13, 0, v15, s[{SEL[2*h+1]}:{SEL[2*h+1]+1}]
                  v_or_b32 v{AP+h}, v{AP+h}, v13\n"""
        side += f"""v_bfe_u32 v12, v1, 3, 1
              v_lshrrev_b32 v13, 4, v1
              {lmap(13, 14)}v_lshlrev_b32 v13, 7, v13
              v_and_b32 v14, 7, v1
              v_lshl_add_u32 v13, v14, 4, v13
              v_lshl_add_u32 v7, v12, {HL+4}, v13
              v_xor_b32 v12, 1, v12
              v_lshl_or_b32 v27, v12, 31, v7
              s_mul_i32 s1, s{sPAR}, {O_PAR}
              s_lshl_b32 s{sT0}, s{sOCT}, {HL+4}
              s_add_u32 s1, s1, s{sT0}
              s_lshl_b32 s{sT0}, s{sG}, 2
              s_add_u32 s{sT0}, s{sT0}, s{sWAVE}
              s_lshl_b32 s{sT0}, s{sT0}, {HL}
              s_add_u32 s1, s1, s{sT0}
              s_add_u32 s1, s1, {WS_O - O_OCT}\n"""
        side = [l.strip() for l in side.strip().split('\n') if l.strip()]
        def sidework(n, every=0):
            for e in range(n):
                if side: k(side.pop(0))
                if every and e % every == every - 1 and dq[0][1] < c.ADEEP: pop()
        self.stamp(1)
        sidework(c.SIDE0, c.SEV0)
        while dq[0][1] < c.AMID: pop()
        k.lwait_all()
        k(self.tag_code())
        self.stamp(2)
        k.vwait(('X', 0))
        k("s_barrier")
        for r in reads(0): k.ds(r)
        sidework(c.SIDE1, 12)
        while dq[0][1] < c.ADEEP: pop()
        self.stamp(3)
        for i in range(14):
            if i + 1 < 14:
                assert not dq or dq[0][1] > i + 1
                k.vwait(('W', i+1))
            k.lwait_all()
            k("s_barrier")
            if i in (0, 1, 2, 3, 4, 6, 8, 10, 13): self.stamp(1 + (0, 1, 2, 3, 4, 6, 8, 10, 13).index(i), 1)
            quota = c.AQ
            if duty and i == 11:
                self.red_free = False
                self.q_p2()
            rd = reads(i+1) if i + 1 < 14 else []
            mf = mfmas(i)
            nd = 0
            while nd < len(dq) and dq[nd][0] <= i and (nd < quota or dq[nd][1] <= i + 2): nd += 1
            early = duty and i >= 11
            if early: nd = len(mf) // c.EW2
            nm = len(mf) - 1
            lgaps = {1 + (j * (nm - 1)) // nd for j in range(nd)} if nd else set()
            dm = None
            for n, m in enumerate(mf):
                if not c.NOMFMA or i == 0: k(m)
                if n == nm: break
                if n in lgaps:
                    if dm: dm[3](); dm = None; continue
                    if early and (i >= 12 or self.nv < 12): self.tick(reads=0); continue
                g = Gap()
                if n + 1 in lgaps and not early:
                    dm = dq.pop(0)
                    for l in dm[2].strip().split('\n'): g.take('S'); k(l)
                free = sum(1 for j in range(n, nm - c.ARD) if j not in lgaps)
                want = 2 if len(rd) > free else 1
                while rd and want and g.take('D'):
                    k.ds(rd.pop(0)); want -= 1
                while early and self.rq and self.rq[0][0] <= self.nv and g.take('D'): self.rq.pop(0)[1]()
                while side and g.take(kind_of(side[0])): k(side.pop(0))
            assert not dm
            for r in rd: k.ds(r)
            while dq and dq[0][1] <= i + 2:
                assert dq[0][0] <= i
                pop()
            if i == c.STI:
                self.poll_issue(24, 28, 'Hpoll')
            if i == c.STI + 2:
                self.poll_check(24, 28, 'Hpoll')
                k.vmem(f"buffer_load_dwordx4 v[16:19], v25, s[{sWS}:{sWS+3}], s0 offen sc1", 'st')
            if i == c.STI + 4:
                k.vwait('st')
                k.ds("ds_write_b128 v26, v[16:19]")
            if i == 10: assert not side and not dq, (len(side), len(dq))
            if not duty and c.PFWO == 1 and i == c.PFWI:
                k.vmem(f"buffer_load_dword v39, v{MC0+9}, s[{sWO}:{sWO+3}], 0 offen", 'pf')
            if pfq and (c.PFI == i if duty else c.PFP >> i & 1):
                assert not side
                for _ in range(c.PFD if duty else 1): pfq.pop(0)()
        self.stamp(4)
        if duty:
            assert self.nv <= 40
            self.keep = c.AKEEP
            c.TICK = c.ATICK
            self.red_free = True
            self.tick(max(0, 8 - self.nv), reads=0)
        fg = self.fg
        CSV = 8
        ck = lambda h: (28, 30, 32, 36)[h >> 1]
        sset = ((24, 12, 16), (V0 - 4, 2, MC0 + 4))
        assert MC0 + 8 <= (224 if duty else 256)
        def sread(t):
            p, R, N = sset[t & 1]
            k.ds(f"ds_read2_b32 v[{p}:{p+1}], v34 offset0:{16*t} offset1:{16*t + 128}", ('s', t))
            k.ds(f"ds_read_b128 v[{R}:{R+3}], v35 offset:{64*t}", ('s', t))
            k.ds(f"ds_read_b128 v[{N}:{N+3}], v35 offset:{64*t + 512}", ('s', t))
        sread(0)
        for r in range(8):
            fg(f"v_mov_b32_dpp v{ck(r) + (r & 1)}, v{K+r} row_newbcast:0 row_mask:0xf bank_mask:0xf")
            fg(f"v_mov_b32_dpp v{CSQ+r}, v{Q+r} row_newbcast:0 row_mask:0xf bank_mask:0xf")
        fg(f"""v_mov_b32 v{CSV}, v{V0}
              v_mov_b32 v2, v{V0}
              v_mov_b32 v{CSV+1}, v{V1}
              v_mov_b32 v3, v{V1}
              v_permlane16_swap_b32 v{CSV}, v2
              v_permlane16_swap_b32 v{CSV+1}, v3
              v_mov_b32 v2, v{CSV}
              v_mov_b32 v3, v{CSV+1}
              s_nop 0
              v_permlane32_swap_b32 v{CSV}, v2
              v_permlane32_swap_b32 v{CSV+1}, v3""")
        qs = (28 ** -0.5) * math.log2(math.e)
        SP = lambda t: Q + 8*t + 4
        SC = lambda t: K + 8*t + 4
        def smf(t):
            if t: fg(f"v_mfma_f32_16x16x32_bf16 v[{SP(t)}:{SP(t)+3}], v[{K+8*(t-1)}:{K+8*(t-1)+3}], v[{Q+8*t}:{Q+8*t+3}], 0")
            m = MC if t else MC0
            fg(f"v_mfma_f32_16x16x32_bf16 v[{SC(t)}:{SC(t)+3}], v[{K+8*t}:{K+8*t+3}], v[{Q+8*t}:{Q+8*t+3}], v[{m}:{m+3}]")
        for t in range(NT):
            if t + 1 < NT: sread(t + 1)
            k.lwait(('s', t))
            p, R, N = sset[t & 1]
            for h in range(0, 8, 2):
                d = K + 8*t + h
                fg(f"v_pk_fma_f32 v[{d}:{d+1}], v[{ck(h)}:{ck(h)+1}], v[{p}:{p+1}], v[{d}:{d+1}] op_sel:[0,1,0] op_sel_hi:[1,1,1]")
            for h in range(0, 8, 2):
                d = Q + 8*t + h
                fg(f"v_pk_fma_f32 v[{d}:{d+1}], v[{CSQ+h}:{CSQ+h+1}], v[{p}:{p+1}], v[{d}:{d+1}] op_sel:[0,1,0] op_sel_hi:[1,1,1]")
            for a, VB in enumerate((V0, V1)):
                for h in (0, 2):
                    d = VB + 4*t + h
                    sel = "op_sel:[0,1,0] op_sel_hi:[1,1,1]" if a else "op_sel_hi:[1,0,1]"
                    fg(f"v_pk_fma_f32 v[{d}:{d+1}], v[{N+h}:{N+h+1}], v[{CSV}:{CSV+1}], v[{d}:{d+1}] {sel}")
            for h in range(0, 8, 2):
                d = K + 8*t + h
                fg(f"v_pk_mul_f32 v[{d}:{d+1}], v[{d}:{d+1}], v[{p}:{p+1}] op_sel_hi:[1,0]")
            for a, VB in enumerate((V0, V1)):
                for h in (0, 2):
                    d = VB + 4*t + h
                    fg(f"v_pk_mul_f32 v[{d}:{d+1}], v[{d}:{d+1}], v[{R+h}:{R+h+1}]")
            fg(f"v_mul_f32 v{RQ(t)}, {f2u(qs):#x}, v{p}")
            if t: smf(t - 1)
            if pfq and t % 3 == 2: pfq.pop(0)()
            for h in range(4):
                fg(f"v_cvt_pk_bf16_f32 v{Q+8*t+h}, v{Q+8*t+2*h}, v{Q+8*t+2*h+1}")
            for h in range(4):
                fg(f"v_cvt_pk_bf16_f32 v{K+8*t+h}, v{K+8*t+2*h}, v{K+8*t+2*h+1}")
            for a, VB in enumerate((V0, V1)):
                for h in range(2):
                    fg(f"v_cvt_pk_bf16_f32 v{VB+2*t+h}, v{VB+4*t+2*h}, v{VB+4*t+2*h+1}")
        smf(NT - 1)
        while pfq: pfq.pop(0)()
        TS = range(NT)
        MX = lambda t: RQ(t) + 1
        for t in TS:
            if t:
                for r in range(4):
                    fg(f"v_cndmask_b32 v{SC(t)+r}, v{SC(t)+r}, v{SP(t)+r}, s[{SEL[r]}:{SEL[r]+1}]")
            fg(f"v_max3_f32 v{MX(t)}, v{SC(t)}, v{SC(t)+1}, v{SC(t)+2}")
            fg(f"v_max_f32 v{MX(t)}, v{MX(t)}, v{SC(t)+3}")
        def xmax(g, tmp):
            a, b = MX(g[0]), MX(g[1])
            o = [f"v_permlane16_swap_b32 v{a}, v{b}", f"v_max_f32 v{a}, v{a}, v{b}"]
            if len(g) == 2:
                o += [f"v_mov_b32 v{b}, v{a}", f"v_permlane32_swap_b32 v{a}, v{b}", f"v_max_f32 v{a}, v{a}, v{b}"]
            else:
                cc = MX(g[2]); d = MX(g[3]) if len(g) == 4 else tmp
                if len(g) == 3: o = [f"v_mov_b32 v{d}, v{cc}"] + o
                o += [f"v_permlane16_swap_b32 v{cc}, v{d}", f"v_max_f32 v{cc}, v{cc}, v{d}",
                      f"v_permlane32_swap_b32 v{a}, v{cc}", f"v_max_f32 v{a}, v{a}, v{cc}",
                      f"v_mov_b32 v{cc}, v{a}", f"v_permlane32_swap_b32 v{a}, v{cc}"]
                if len(g) == 4: o += [f"v_mov_b32 v{d}, v{cc}"]
            o += [f"v_mov_b32 v{b}, v{a}"]
            if len(g) == 4: o += [f"v_permlane16_swap_b32 v{cc}, v{d}"]
            o += [f"v_permlane16_swap_b32 v{a}, v{b}"]
            return o
        g1, g2 = xmax(list(TS)[:4], 2), xmax(list(TS)[4:], 3)
        while g1 or g2:
            if g1: fg(g1.pop(0))
            if g2: fg(g2.pop(0))
        for t in TS: fg(f"v_mul_f32 v{MX(t)}, -v{MX(t)}, v{RQ(t)}")
        for t in TS:
            for h in (0, 2):
                fg(f"v_pk_fma_f32 v[{SC(t)+h}:{SC(t)+h+1}], v[{SC(t)+h}:{SC(t)+h+1}], v[{RQ(t)}:{RQ(t)+1}], v[{RQ(t)}:{RQ(t)+1}] op_sel:[0,0,1] op_sel_hi:[1,0,1]")
        def pv(t):
            P = Q + 8*t
            return [f"v_mfma_f32_16x16x32_bf16 v[{K+8*t}:{K+8*t+3}], v[{ONES}:{ONES+3}], v[{P}:{P+3}], 0",
                    f"v_mfma_f32_16x16x32_bf16 v[{SP(t)}:{SP(t)+3}], v[{V0+2*(t-1)}:{V0+2*(t-1)+3}], v[{P}:{P+3}], 0",
                    f"v_mfma_f32_16x16x32_bf16 v[{SC(t)}:{SC(t)+3}], v[{V1+2*(t-1)}:{V1+2*(t-1)+3}], v[{P}:{P+3}], 0"]
        pend = []
        for t in TS:
            P = Q + 8*t
            for r in range(4):
                fg(f"v_exp_f32 v{SC(t)+r}, v{SC(t)+r}")
                if pend and r: fg(pend.pop(0))
            for h in range(2):
                fg(f"v_cvt_pk_bf16_f32 v{P+2+h}, v{SC(t)+2*h}, v{SC(t)+2*h+1}")
            for h in range(2):
                fg(f"v_and_b32 v{P+h}, v{AP+h}, v{P+2+h}" if t else f"v_mov_b32 v{P+h}, 0")
            if t:
                for h in range(2):
                    fg(f"v_xor_b32 v{P+2+h}, v{P+h}, v{P+2+h}")
            pend = pv(t)
        for t in TS:
            if t == NT - 1:
                while pend: fg(pend.pop(0))
            fg(f"v_rcp_f32 v{K+8*t}, v{K+8*t}")
            if pend and t: fg(pend.pop(0))
        for t in TS:
            P = Q + 8*t
            for b in (SP(t), SP(t)+2, SC(t), SC(t)+2):
                k(f"v_pk_mul_f32 v[{b}:{b+1}], v[{b}:{b+1}], v[{K+8*t}:{K+8*t+1}] op_sel_hi:[1,0]")
            k(f"""v_cvt_pk_bf16_f32 v{P}, v{SP(t)}, v{SP(t)+1}
                  v_cvt_pk_bf16_f32 v{P+1}, v{SP(t)+2}, v{SP(t)+3}
                  v_cvt_pk_bf16_f32 v{P+2}, v{SC(t)}, v{SC(t)+1}
                  v_cvt_pk_bf16_f32 v{P+3}, v{SC(t)+2}, v{SC(t)+3}""")
            k.vmem(f"buffer_store_dwordx4 v[{P}:{P+3}], v{7 if t else 27}, s[{sWS}:{sWS+3}], s1 offen sc1", 'ost')
            k(f"s_add_u32 s1, s1, {2*O_OCT}")
        self.stamp(5)
        if duty:
            self.keep = 0
            self.to_p2()
        else:
            k.vwait('ost')
            k("s_barrier")
            self.o_flag(17)
            self.stamp(6)
            k(f"""s_lshl_b32 s{sT0}, s{sWG}, 2
                  s_add_u32 s{sT0}, s{sT0}, s{sWAVE}
                  s_cmp_lg_u32 s{sT0}, {255*4}
                  s_cbranch_scc1 L_fin""")
            for e in range(5):
                if e < 3:
                    k(f"v_add_u32 v2, {64*e}, v1\nv_min_u32 v2, 167, v2\nv_mul_u32_u24 v2, {c.FS}, v2\nv_add_u32 v2, {WS_FU}, v2")
                else:
                    k(f"""v_and_b32 v3, 15, v1
                          v_min_u32 v3, 10, v3
                          v_and_b32 v2, 48, v1
                          v_add3_u32 v2, v2, v3, {64*(e-3)}
                          v_mul_u32_u24 v2, {c.FS}, v2
                          v_add_u32 v2, {WS_FO}, v2""")
                self.poll_issue(2, 4, 'ep'); self.poll_check(2, 4, 'ep')
            k(f"buffer_store_dword v18, v17, s[{sWS}:{sWS+3}], 0 offen sc1")
            k("s_branch L_fin")

    def build(self):
        k, c = self.k, self.c
        self.prologue()
        base_vm = list(k.vm)
        k(f"""s_and_b32 s{sT0+2}, s{sXCD}, 1
              s_mul_i32 s{sT0+1}, s{sT0+2}, 6
              s_sub_u32 s{sT0+1}, 24, s{sT0+1}
              s_cmp_ge_u32 s{sIDX}, s{sT0+1}
              s_cbranch_scc1 L_attn""")
        if c.SKIPM:
            self.bg_reset(); self.start_x(); self.start_rest(); self.ln(sW1); k.vwait('hst'); k("s_barrier"); self.h_flag(17); k("s_branch L_fin")
        else: self.m1()
        k.label("L_attn")
        if c.AMAP == 1:
            k(f"s_lshr_b32 s{sG}, s{sXCD}, 1\ns_and_b32 s{sPAR}, s{sIDX}, 1")
        else:
            k(f"""s_bfe_u32 s{sPAR}, s{sXCD}, 0x10001
              s_lshr_b32 s{sG}, s{sXCD}, 2
              s_lshl_b32 s{sG}, s{sG}, 1
              s_and_b32 s{sT0}, s{sIDX}, 1
              s_add_u32 s{sG}, s{sG}, s{sT0}""")
        k(f"""s_lshl_b32 s{sT0+2}, s{sT0+2}, 1
              s_cmp_ge_u32 s{sIDX}, 28
              s_cbranch_scc1 L_pure
              s_sub_u32 s{sBLK}, s{sIDX}, s{sT0+1}
              s_lshr_b32 s{sBLK}, s{sBLK}, 1
              s_add_u32 s{sBLK}, s{sBLK}, s{sT0+2}
              s_mul_i32 s{sAHI}, s{sBLK}, 11
              s_add_u32 s{sAHI}, s{sAHI}, 52
              s_add_u32 s{sBLK}, s{sBLK}, 4""")
        k.vm = list(base_vm)
        self.attn(6, True)
        k.label("L_pure")
        k(f"""s_bfe_u32 s{sBLK}, s{sIDX}, 0x10001
              s_add_u32 s{sBLK}, s{sBLK}, s{sT0+2}
              s_mul_i32 s{sAHI}, s{sBLK}, 13""")
        k.vm = list(base_vm)
        self.attn(7, False)
        self.p2()
        k.label("L_fin")
        if c.STAMPS:
            k("s_waitcnt vmcnt(0)")
            self.stamp(10)
            k("s_waitcnt lgkmcnt(0)")
            for i in range(22): k(f"v_mov_b32 v{8+i}, s{sSTAMP+i}")
            k(f"""s_lshl_b32 s{sT0}, s{sWG}, 2
                  s_add_u32 s{sT0}, s{sT0}, s{sWAVE}
                  s_lshl_b32 s{sT0}, s{sT0}, 7
                  s_add_u32 s{sT0}, s{sT0}, {WS_TS}
                  v_cmp_eq_u32 vcc, 0, v1
                  v_bfrev_b32 v2, 1
                  v_mov_b32 v30, 0
                  v_mov_b32 v31, 0
                  v_cndmask_b32 v2, v2, 0, vcc""")
            for i in range(6):
                k(f"buffer_store_dwordx4 v[{8+4*i}:{11+4*i}], v2, s[{sWS}:{sWS+3}], s{sT0} offen offset:{16*i}")
        if c.DIAG >= 0:
            k(f"""s_cmp_lg_u32 s{sWG}, {c.DIAGWG}
                  s_cbranch_scc1 L_end
                  s_sub_u32 s4, s{sSTAMP+2*c.DIAG}, s{sSTAMP}
                  {'s_lshr_b32 s4, s4, 1' if c.CYC else 's_mul_i32 s4, s4, 10'}
                  s_min_u32 s4, s4, 60000
                  s_add_u32 s4, s4, 6000""")
            if c.CYC: k(f"s_memrealtime s[{sSTAMP}:{sSTAMP+1}]\ns_waitcnt lgkmcnt(0)")
            k.label("L_diag")
            k(f"""s_memrealtime s[6:7]
                  s_waitcnt lgkmcnt(0)
                  s_sub_u32 s5, s6, s{sSTAMP}
                  s_cmp_lt_u32 s5, s4
                  s_cbranch_scc1 L_diag""")
        k.label("L_end")
        k("s_endpgm")
        lines, nins = hazard_fix(k.lines)
        hdr = open(os.path.join(os.path.dirname(os.path.abspath(__file__)), "..", "cdna_kernels", NAME + ".s.ref")).read().split("; Override launch")[0]
        out = hdr
        out += f"; @launch grid=(256,1,1) block=(256,1,1) lds={self.LDS_SIZE}\n"
        out += f'.amdgcn_target "amdgcn-amd-amdhsa--gfx950"\n.text\n.p2align {12 if c.ALIGN else 8}\n.globl {NAME}_kernel\n.p2align 8\n.type {NAME}_kernel,@function\n{NAME}_kernel:\n'
        body = "\n".join(l if l.endswith(":") else "    " + l for l in lines)
        body = body.replace("CODE_BYTES", "L_end-L_pc")
        out += body + "\n"
        out += f""".section .rodata,"a"
.p2align 6
.amdhsa_kernel {NAME}_kernel
  .amdhsa_next_free_vgpr 512
  .amdhsa_next_free_sgpr 102
  .amdhsa_accum_offset 256
  .amdhsa_group_segment_fixed_size 0
  .amdhsa_kernarg_size 88
  .amdhsa_user_sgpr_count 2
  .amdhsa_user_sgpr_kernarg_segment_ptr 1
  .amdhsa_system_sgpr_workgroup_id_x 1
.end_amdhsa_kernel
"""
        return out, nins, len(lines)

if __name__ == "__main__":
    c = Cfg()
    outp = sys.argv[1]
    for a in sys.argv[2:]:
        kk, v = a.split("=", 1)
        old = getattr(c, kk)
        if isinstance(old, bool): v = v not in ("0", "False")
        elif isinstance(old, int): v = int(v, 0)
        else: v = (" " + v.replace("+", " ")) if v else ""
        setattr(c, kk, v)
    g = Gen(c)
    txt, nins, nl = g.build()
    open(outp, "w").write(txt)
    print(f"wrote {outp}: {nl} lines, {nins} hazard pads, {g.left} ops left after M2")
```
